```python
import torch

def _softmax(x, axis=-1):
    return torch.softmax(x, dim=axis)
def _gelu(x):
    return torch.nn.functional.gelu(x, approximate="tanh")
def _silu(x):
    return torch.nn.functional.silu(x)
def _sigmoid(x):
    return torch.sigmoid(x)
def _layernorm(x, axis=-1, eps=1e-5):
    m = x.mean(dim=axis, keepdim=True)
    v = x.var(dim=axis, keepdim=True, unbiased=False)
    return (x - m) / torch.sqrt(v + eps)
def _scatter_add(tgt, idx, src, axis=0):
    return tgt.clone().index_add_(axis, idx, src)
def _segment_sum(src, seg, n):
    out = torch.zeros((n,) + src.shape[1:], dtype=src.dtype)
    return out.index_add_(0, seg, src)
def _pad(x, pw):
    flat = tuple(v for pair in reversed(pw) for v in pair)
    return torch.nn.functional.pad(x, flat)

kernel_name = 'gated_mix__spectral_gfnet__dense_activation_gelu__prompt'

def setup_inputs():

    _w = (lambda a: (lambda t: t.to(torch.bfloat16) if t.is_floating_point() else t)(torch.as_tensor(a)))
    def _A_setup():
        B, S, D = 1, 2048, 448
        Df = D // 2 + 1
        return {
            "x": _w((lambda *s: torch.randn(*s, dtype=torch.bfloat16) * 0.05)(B, S, D)),
            "w_r": _w((lambda *s: torch.randn(*s, dtype=torch.bfloat16) * 0.8)(S, Df) * 0.02),
            "w_i": _w((lambda *s: torch.randn(*s, dtype=torch.bfloat16) * 0.8)(S, Df) * 0.02),
        }
    _A_in = _A_setup()

    def _B_setup():
        B, S, D, F = 1, 2048, 448, 1792
        return {
            "x": _w((lambda *s: torch.randn(*s, dtype=torch.bfloat16) * 0.05)(B, S, D)),
            "w1": _w((lambda *s: torch.randn(*s, dtype=torch.bfloat16) * 3.2)(D, F) * (D ** -0.5)),
            "b1": _w((lambda *s: torch.randn(*s, dtype=torch.bfloat16) * 3.2)(F) * 0.01),
            "w2": _w((lambda *s: torch.randn(*s, dtype=torch.bfloat16) * 0.05)(F, D) * (F ** -0.5)),
            "b2": _w((lambda *s: torch.randn(*s, dtype=torch.bfloat16) * 0.1)(D) * 0.01),
        }
    _B_in = _B_setup()

    return {
        "A_x": _A_in["x"],
        "A_w_r": _A_in["w_r"],
        "A_w_i": _A_in["w_i"],
        "B_x": _B_in["x"],
        "B_w1": _B_in["w1"],
        "B_b1": _B_in["b1"],
        "B_w2": _B_in["w2"],
        "B_b2": _B_in["b2"],
        "gate_w": _w((lambda *s: torch.randn(*s, dtype=torch.bfloat16) * 0.05)(448) * 16.0),
    }

def reference(A_x, A_w_r, A_w_i, B_x, B_w1, B_b1, B_w2, B_b2, gate_w):
    def _A_ref(x, w_r, w_i):
        B, S, D = x.shape
        X = (lambda x, axes=(-2,-1): torch.fft.rfft2(x.float(), dim=axes))(x, axes=(-2, -1))
        W = w_r + 1j * w_i
        X = X * W
        y = (lambda x, s, axes=(-2,-1): torch.fft.irfft2(x, s=s, dim=axes).to(torch.bfloat16))(X, (S, D), axes=(-2, -1))
        return y

    def _B_ref(x, w1, b1, w2, b2):
        h = torch.einsum("bsd,df->bsf", x, w1) + b1
        h = _gelu(h)
        return torch.einsum("bsf,fd->bsd", h, w2) + b2

    x = A_x
    g = _sigmoid((x * gate_w).sum(-1, keepdims=True))
    a = _A_ref(x, A_w_r, A_w_i)
    b = _B_ref(x, B_w1, B_b1, B_w2, B_b2)
    return g * a + (1 - g) * b
```

```python
import re, struct

def f2u(x):
    return struct.unpack('<I', struct.pack('<f', x))[0]
def fl(x):
    return '0x%08x' % f2u(x)

_REG = re.compile(r'^(-|abs\()?([vas])(?:(\d+)|\[(\d+):(\d+)\])\)?$')
TRANS = ('v_exp_f32', 'v_log_f32', 'v_rcp_f32', 'v_rsq_f32', 'v_sqrt_f32', 'v_sin_f32', 'v_cos_f32')

def regs_of(op):
    op = op.strip()
    if op in ('vcc',): return [('s', 'vcc')]
    if op in ('exec',): return [('s', 'exec')]
    if op == 'm0': return [('s', 'm0')]
    m = _REG.match(op)
    if not m: return []
    k = m.group(2)
    if m.group(3) is not None: return [(k, int(m.group(3)))]
    return [(k, i) for i in range(int(m.group(4)), int(m.group(5)) + 1)]

def split_ops(s):
    out, depth, cur = [], 0, ''
    for ch in s:
        if ch == '[': depth += 1
        if ch == ']': depth -= 1
        if ch == ',' and depth == 0:
            out.append(cur.strip()); cur = ''
        else: cur += ch
    if cur.strip(): out.append(cur.strip())
    mods = ''
    if out:
        parts = out[-1].split(None, 1)
        out[-1] = parts[0]
        if len(parts) > 1: mods = parts[1]
    return out, mods

class Asm:
    def __init__(self):
        self.out = []
        self.pos = 0
        self.vm = []
        self.lg = []
        self.vm_done = 0
        self.lg_done = 0
        self.pend = {}
        self.valu_w = {}
        self.mfma_w = {}
        self.mfma_c = {}
        self.st_r = {}
        self.m0_w = -100
        self.cond = None
        self.condn = 0
        self.nnop = 0
        self.count = {}
    def raw(self, t):
        self.out.append(t)
    def comment(self, t):
        self.out.append('    ; ' + t)
    def _emit(self, t, states=1):
        self.out.append('    ' + t); self.pos += states
    def nop(self, n):
        while n > 0:
            k = min(n, 16)
            self._emit('s_nop %d' % (k - 1), k); n -= k; self.nnop += k
    def _n_after(self, q, idx):
        return sum(1 for (c, t) in q[idx + 1:] if c is None or c == self.cond)
    def _wait(self, vm_idx=None, lg_idx=None):
        parts = []
        if vm_idx is not None and vm_idx >= self.vm_done:
            n = self._n_after(self.vm, vm_idx)
            if n <= 63: parts.append('vmcnt(%d)' % n)
            else: parts.append('vmcnt(63)')
            self.vm_done = vm_idx + 1
        if lg_idx is not None and lg_idx >= self.lg_done:
            n = min(self._n_after(self.lg, lg_idx), 15)
            parts.append('lgkmcnt(%d)' % n)
            self.lg_done = lg_idx + 1
        if parts: self._emit('s_waitcnt ' + ' '.join(parts))
    def wait_vm(self, tag):
        idx = [i for i, (c, t) in enumerate(self.vm) if t == tag]
        assert idx, tag
        self._wait(vm_idx=idx[-1])
    def wait_lg(self, tag=None):
        if tag is None:
            if self.lg: self._wait(lg_idx=len(self.lg) - 1)
            return
        idx = [i for i, (c, t) in enumerate(self.lg) if t == tag]
        assert idx, tag
        self._wait(lg_idx=idx[-1])
    def wait_vm_all(self):
        if self.vm: self._wait(vm_idx=len(self.vm) - 1)
    def barrier(self):
        self._emit('s_barrier')
    def cond_begin(self):
        assert self.cond is None
        self.condn += 1; self.cond = self.condn
        self._sv = (self.pos, self.vm_done, self.lg_done)
    def cond_end(self):
        p0, vd, ld = self._sv
        sh = self.pos - p0
        for dct in (self.valu_w, self.mfma_w, self.mfma_c):
            for k, v in dct.items():
                if v[0] < p0: dct[k] = (v[0] + sh,) + tuple(v[1:])
        for k, v in self.st_r.items():
            if v < p0: self.st_r[k] = v + sh
        if self.m0_w < p0: self.m0_w += sh
        self.vm_done, self.lg_done = vd, ld
        self.cond = None
    def run(self, items):
        for it in items:
            if it is None: continue
            if callable(it): it()
            elif isinstance(it, tuple): self.e(it[0], tag=it[1])
            else: self.e(it)
    def e(self, text, tag=None):
        text = text.strip()
        sp = text.split(None, 1)
        mn = sp[0]
        ops, mods = split_ops(sp[1]) if len(sp) > 1 else ([], '')
        self.count[mn] = self.count.get(mn, 0) + 1
        R = [regs_of(o) for o in ops]
        flat = lambda L: [r for x in L for r in x]
        kind = None; W = []; Rd = []
        if mn.startswith('v_mfma'):
            kind = 'mfma'; W = R[0]; Rd = flat(R[1:])
        elif mn.startswith('v_'):
            kind = 'valu'; W = R[0]; Rd = flat(R[1:])
            if mn.startswith(('v_fmac', 'v_dot2c')) or 'dpp' in mn: Rd = Rd + R[0]
            if mn.startswith(('v_permlane32_swap', 'v_swap', 'v_permlane16_swap')): W = R[0] + R[1]; Rd = W
            if mn.startswith(('v_add_co', 'v_addc_co')): W = R[0] + R[1]; Rd = flat(R[2:])
        elif mn.startswith('ds_read'):
            kind = 'ds'; W = R[0]; Rd = flat(R[1:])
        elif mn.startswith('ds_write'):
            kind = 'ds'; Rd = flat(R)
        elif mn.startswith(('buffer_load', 'global_load')):
            kind = 'vm'
            if ' lds' in (' ' + mods): Rd = flat(R) + [('s', 'm0')]
            else: W = R[0]; Rd = flat(R[1:])
        elif mn.startswith(('buffer_store', 'global_store')):
            kind = 'vm'; Rd = flat(R)
        elif mn.startswith('s_'):
            kind = 'salu'
            if mn.startswith(('s_cmp', 's_cbranch', 's_branch', 's_waitcnt', 's_barrier', 's_nop', 's_sleep', 's_endpgm', 's_setprio')): Rd = flat(R)
            else: W = R[0]; Rd = flat(R[1:])
        else:
            raise ValueError(text)
        vmi = lgi = None
        for r in W + Rd:
            p = self.pend.get(r)
            if p:
                if p[0] == 'vm': vmi = p[1] if vmi is None else max(vmi, p[1])
                else: lgi = p[1] if lgi is None else max(lgi, p[1])
        self._wait(vmi, lgi)
        need = 0
        def req(ppos, n):
            nonlocal need
            need = max(need, n - (self.pos - ppos - 1))
        if kind == 'mfma':
            passes = 8 if '32x32x16' in mn else 4
            for r in Rd:
                if r in self.valu_w: req(self.valu_w[r][0], 3 if self.valu_w[r][1] == 'dot' else 2)
            for r in R[1] + R[2]:
                if r in self.mfma_w: req(self.mfma_w[r][0], self.mfma_w[r][1] + 4)
            for r in R[3]:
                if r in self.mfma_w:
                    pp, ps, rng = self.mfma_w[r]
                    if not (rng == (R[3][0], R[3][-1]) and ps == passes): req(pp, ps + 2)
            if R[3] != R[0]:
                for r in R[0]:
                    if r in self.mfma_w: req(self.mfma_w[r][0], self.mfma_w[r][1] + 2)
        else:
            for r in (W + Rd):
                if r in self.mfma_w and kind != 'salu': req(self.mfma_w[r][0], self.mfma_w[r][1] + 4)
            if kind == 'valu':
                for r in W:
                    if r in self.mfma_c: req(self.mfma_c[r][0], self.mfma_c[r][1] - 1)
                    if r in self.st_r: req(self.st_r[r], 2)
                isdot = mn.startswith('v_dot')
                for r in Rd + W:
                    if r in self.valu_w:
                        pp, k = self.valu_w[r]
                        if k == 'dot' and not isdot: req(pp, 3)
                for r in Rd:
                    if r in self.valu_w:
                        pp, k = self.valu_w[r]
                        if r[0] == 's': req(pp, 4 if 'lane' in mn else 2)
                        else:
                            if k == 'trans': req(pp, 1)
                            if 'dpp' in mn or mn.startswith('v_permlane'): req(pp, 2)
                            if mn.startswith(('v_readfirstlane', 'v_readlane')): req(pp, 1)
            elif kind in ('vm', 'ds'):
                for r in W:
                    if r in self.st_r: req(self.st_r[r], 1)
                for r in Rd:
                    if r[0] == 's' and r in self.valu_w: req(self.valu_w[r][0], 5)
                    if r == ('s', 'm0'): req(self.m0_w, 1)
                    if r in self.valu_w and self.valu_w[r][1] in ('trans', 'dot'): req(self.valu_w[r][0], 3)
            elif kind == 'salu':
                for r in Rd:
                    if r in self.valu_w: req(self.valu_w[r][0], 1)
        if need > 0: self.nop(need)
        p = self.pos
        self._emit(text)
        for r in W:
            self.pend.pop(r, None); self.valu_w.pop(r, None); self.mfma_w.pop(r, None)
        if kind == 'mfma':
            for r in W: self.mfma_w[r] = (p, passes, (W[0], W[-1]))
            for r in R[3]: self.mfma_c[r] = (p, passes)
        elif kind == 'valu':
            k = 'trans' if mn.startswith(TRANS) else ('dot' if mn.startswith('v_dot') else 'plain')
            for r in W: self.valu_w[r] = (p, k)
        elif kind == 'vm':
            self.vm.append((self.cond, tag))
            for r in W: self.pend[r] = ('vm', len(self.vm) - 1)
            if 'store' in mn and ('x4' in mn or 'x3' in mn):
                for r in R[0]: self.st_r[r] = p
        elif kind == 'ds':
            self.lg.append((self.cond, tag))
            for r in W: self.pend[r] = ('lg', len(self.lg) - 1)
        elif kind == 'salu':
            if ('s', 'm0') in W: self.m0_w = p
    def text(self):
        return '\n'.join(self.out) + '\n'

def cost(it):
    if it is None: return 0
    if callable(it): return 4
    t = it[0] if isinstance(it, tuple) else it
    mn = t.split()[0]
    if mn.startswith(TRANS): return 8
    if mn.startswith('s_'): return 4
    return 4

def interleave(main, fill, budget):
    out = []; fi = 0; credit = 0
    for m in main:
        out.append(m)
        credit += budget
        while fi < len(fill) and cost(fill[fi]) <= credit:
            credit -= cost(fill[fi]); out.append(fill[fi]); fi += 1
    out += fill[fi:]
    return out
```

```python
import sys
from asmlib import *

NAME = 'gated_mix__spectral_gfnet__dense_activation_gelu__prompt'
DIAG = '--diag' in sys.argv
FL1, FL2, FL3 = 0x1000, 0x2000, 0x3000
TVB = 0x4000
DIAGB = 0x8000
TB = 0x20000
RB = TB + 1835008
HB = RB + 1835008
WS_SIZE = HB + 7340032
W1H0 = 65536
CB = 122880
TT = 151552
TV = 159744
GW = 160256
B1L = 161280
GL = 161792
LDS_SIZE = 163840
SX, SW1, SW2, SWS, SWR, SWI, SOUT, SGW, SB1, SB2 = ['s[%d:%d]' % (i, i + 3) for i in range(4, 44, 4)]
sMB, sNB, sHALF, sNT, sW, sT1, sT2, sEN = 's44', 's45', 's46', 's47', 's72', 's73', 's74', 's75'
sSQ = 's76'
SPIN = 20000

a = Asm()
e = a.e
def v(i, n=1): return 'v%d' % i if n == 1 else 'v[%d:%d]' % (i, i + n - 1)
def ag(i, n=1): return 'a%d' % i if n == 1 else 'a[%d:%d]' % (i, i + n - 1)
nstamp = [0]
def stamp():
    if not DIAG: return
    a.raw('    s_memtime s[98:99]\n    s_waitcnt lgkmcnt(0)\n    s_mov_b32 s%d, s98' % (80 + nstamp[0]))
    a.pos += 3
    nstamp[0] += 1
W_ = lambda tag: (lambda: a.wait_vm(tag))
L_ = lambda tag=None: (lambda: a.wait_lg(tag))
BAR = lambda: a.barrier()

def flag_store(vtag, soff):
    return [lambda: a.run(['s_mov_b64 exec, 1', ('buffer_store_dword %s, off, %s, %s sc1' % (vtag, SWS, soff), 'flag'), 's_mov_b64 exec, -1'])]

npoll = [0]
def poll_check(loads, regs, stag, lim):
    n = npoll[0]; npoll[0] += 1
    def f():
        for r in regs: e('v_subrev_u32 %s, %s, %s' % (r, stag, r))
        for r in regs[1:]: e('v_max_u32 %s, %s, %s' % (regs[0], regs[0], r))
        e('v_cmp_le_u32 vcc, %d, %s' % (lim, regs[0]))
        a.nop(1)
        e('s_cmp_eq_u64 vcc, 0')
        e('s_cbranch_scc1 L_pd%d' % n)
        t = ['    s_mov_b32 s96, %d' % SPIN, 'L_pl%d:' % n, '    s_sleep 1']
        t += ['    ' + l for l in loads]
        t += ['    s_waitcnt vmcnt(0)']
        for r in regs: t.append('    v_subrev_u32 %s, %s, %s' % (r, stag, r))
        for r in regs[1:]: t.append('    v_max_u32 %s, %s, %s' % (regs[0], regs[0], r))
        t += ['    v_cmp_le_u32 vcc, %d, %s' % (lim, regs[0]), '    s_sub_u32 s96, s96, 1', '    s_cmp_eq_u32 s96, 0', '    s_cbranch_scc1 L_pd%d' % n,
              '    s_cmp_eq_u64 vcc, 0', '    s_cbranch_scc0 L_pl%d' % n, 'L_pd%d:' % n]
        a.raw('\n'.join(t))
    return f

a.raw('%s_kernel:' % NAME)
e('s_cmp_ge_u32 s2, 224')
e('s_cbranch_scc1 L_end')
a.raw('    s_load_dwordx16 s[48:63], s[0:1], 0\n    s_load_dwordx8 s[64:71], s[0:1], 64')
stamp()
e('v_lshrrev_b32 v2, 6, v0')
e('v_and_b32 v1, 63, v0')
e('v_readfirstlane_b32 %s, v2' % sW)
e('s_getpc_b64 s[96:97]')
a.raw('L_pc:')
e('v_lshlrev_b32 v2, 7, v0')
e('v_min_u32 v2, L_end-L_pc, v2')
e('v_mov_b32 v3, s97')
e('v_add_co_u32 v2, vcc, s96, v2')
e('v_addc_co_u32 v3, vcc, 0, v3, vcc')
e('global_load_dword v31, v[2:3], off', tag='pf')
e('s_and_b32 s77, s2, 7')
e('s_lshr_b32 s78, s2, 3')
e('s_and_b32 %s, s77, 1' % sHALF)
e('s_lshr_b32 s77, s77, 1')
e('s_lshl_b32 s77, s77, 2')
e('s_and_b32 %s, s78, 3' % sMB)
e('s_add_u32 %s, %s, s77' % (sMB, sMB))
e('s_lshr_b32 %s, s78, 2' % sNT)
e('s_mul_i32 %s, %s, 7' % (sNB, sHALF))
e('s_add_u32 %s, %s, %s' % (sNB, sNB, sNT))
e('s_lshl_b32 %s, %s, 2' % (sSQ, sMB))
e('s_add_u32 %s, %s, %s' % (sSQ, sSQ, sW))
e('v_lshrrev_b32 v24, 3, v1')
e('v_and_b32 v25, 7, v1')
e('v_lshrrev_b32 v26, 4, v1')
e('v_lshrrev_b32 v27, 5, v1')
e('v_and_b32 v28, 31, v1')
e('v_xor_b32 v29, v25, v26')
e('v_lshlrev_b32 v29, 4, v29')
e('s_mov_b32 s77, %d' % (128 * 896))
e('v_mad_u32_u24 v2, v24, s77, v29')
e('v_xor_b32 v3, 64, v2')
e('v_add_u32 v3, %d, v3' % (1024 * 896 - 1024))
e('v_add_u32 v4, %d, v2' % (64 * 896 - 2048))
e('v_add_u32 v5, %d, v3' % (64 * 896 - 2048))
e('v_and_b32 v29, 1, v26')
e('v_lshlrev_b32 v29, 2, v29')
e('v_xor_b32 v29, v25, v29')
e('v_lshlrev_b32 v29, 4, v29')
e('s_movk_i32 s77, 3584')
e('v_mad_u32_u24 v6, v24, s77, v29')
for u in range(1, 4): e('v_add_u32 v%d, %d, v6' % (6 + u, u * 27648))
e('v_lshlrev_b32 v29, 4, v1')
e('v_lshlrev_b32 v30, 2, v1')
a.raw('    s_waitcnt lgkmcnt(0)')
def srd(d, lo, n):
    e('s_mov_b32 s%d, s%d' % (d, lo)); e('s_mov_b32 s%d, s%d' % (d + 1, lo + 1))
    e('s_mov_b32 s%d, %d' % (d + 2, n)); e('s_mov_b32 s%d, 0x20000' % (d + 3))
srd(4, 48, 1835008); srd(8, 56, 1605632); srd(16, 70, WS_SIZE)
e('s_mul_i32 s48, %s, 896' % sSQ)
srd(20, 50, 921600); srd(24, 52, 921600)
e('s_mul_i32 s49, %s, %d' % (sW, 16 * 3584))
e('s_lshl_b32 s77, %s, 8' % sNB)
e('s_add_u32 s49, s49, s77')
e('s_lshl_b32 s50, %s, 12' % sW)
e('s_lshl_b32 s51, %s, 11' % sW)
e('s_add_u32 s51, s51, %d' % W1H0)

def dma_x(c):
    r = ['s_add_u32 m0, s50, %d' % ((c % 4) * 16384), 's_add_u32 s77, s48, %d' % (128 * c)]
    for u in range(4): r.append(('buffer_load_dwordx4 v%d, %s, s77 offen offset:%d lds' % (2 + u, SX, 1024 * u), 'x%d' % c))
    return r
def dma_w1h0(c):
    r = ['s_add_u32 m0, s51, %d' % (c * 8192), 's_add_u32 s78, s49, %d' % (64 * c * 3584)]
    for u in range(2): r.append(('buffer_load_dwordx4 v%d, %s, s78 offen offset:%d lds' % (6 + u, SW1, 1024 * u), 'x%d' % c))
    return r
def dma_w1h1(slot):
    r = ['s_add_u32 m0, s50, %d' % (slot * 16384), 's_add_u32 s78, s52, %d' % (128 * slot * 3584)]
    for u in range(4): r.append(('buffer_load_dwordx4 v%d, %s, s78 offen offset:%d lds' % (6 + u, SW1, 1024 * u), 'w1h1'))
    return r

a.run(dma_x(0) + dma_w1h0(0))
e('buffer_load_dword v19, off, %s, 0 sc1' % SWS, tag='E')
srd(32, 64, 896); srd(36, 58, 3584)
e('s_mov_b32 m0, %d' % GW)
e('s_lshl_b32 s77, %s, 8' % sNB)
e('buffer_load_dwordx4 v29, %s, 0 offen lds' % SGW, tag='gw')
e('buffer_load_dword v20, v30, %s, s77 offen' % SB1, tag='b1')
a.run(dma_x(1) + dma_w1h0(1))
srd(12, 60, 1605632); srd(40, 62, 896); srd(28, 66, 1835008)
e('s_mul_i32 s52, %s, %d' % (sW, 32 * 3584))
e('s_lshl_b32 s77, %s, 8' % sNB)
e('s_add_u32 s52, s52, s77')
e('s_add_u32 s52, s52, 128')

e('v_bfe_u32 v10, v1, 1, 3')
e('v_xor_b32 v10, v10, v27')
e('v_lshlrev_b32 v10, 4, v10')
e('v_lshl_add_u32 v10, v28, 7, v10')
e('v_add_u32 v10, s50, v10')
for tt in range(1, 4): e('v_xor_b32 v%d, %d, v10' % (10 + tt, 32 * tt))
e('v_bfe_u32 v14, v1, 2, 2')
e('v_lshl_add_u32 v14, v27, 3, v14')
e('v_lshlrev_b32 v14, 7, v14')
e('v_bfe_u32 v15, v1, 3, 1')
e('v_lshl_add_u32 v14, v15, 6, v14')
e('v_bfe_u32 v15, v1, 4, 1')
e('v_lshl_add_u32 v14, v15, 5, v14')
e('v_and_b32 v15, 3, v1')
e('v_lshl_add_u32 v14, v15, 3, v14')
e('v_add_u32 v14, %d, v14' % W1H0)
e('v_xor_b32 v15, 64, v14')
e('v_add_u32 v16, %d, v29' % CB)
e('v_lshlrev_b32 v17, 4, v27')
e('v_add_u32 v17, %d, v17' % GW)
e('v_mov_b32 v18, 0')

def gen_C():
    r = []
    r += ['v_lshrrev_b32 v224, 1, v28',
          's_lshl_b32 s77, %s, 4' % sNB,
          'v_add_u32 v224, s77, v224',
          'v_and_b32 v225, 1, v1',
          'v_cvt_f32_u32 v226, v225',
          'v_mul_f32 v226, 0x3e800000, v226',
          'v_lshl_add_u32 v227, v224, 1, v225',
          'v_cmp_eq_u32 vcc, 1, v227',
          'v_mov_b32 v227, 224',
          'v_cndmask_b32 v224, v224, v227, vcc',
          'v_cndmask_b32 v226, v226, v18, vcc',
          'v_cvt_f32_u32 v224, v224',
          'v_mul_f32 v224, %s, v224' % fl(1.0 / 448),
          's_mul_i32 s77, %s, 112' % sW,
          'v_lshl_add_u32 v227, v27, 3, s77',
          'v_cvt_f32_u32 v227, v227',
          'v_fmac_f32 v226, v224, v227',
          'v_fract_f32 v226, v226',
          's_mul_i32 s77, %s, 7168' % sW,
          'v_add_u32 v227, s77, v16']
    for tt in range(7):
        b = 232 + 12 * (tt & 1)
        for j in range(8): r.append('v_fmamk_f32 v%d, v224, %s, v226' % (b + j, fl(16.0 * tt + j)))
        for j in range(8): r.append('v_cos_f32 v%d, v%d' % (b + j, b + j))
        for j in range(4): r.append('v_cvt_pk_bf16_f32 v%d, v%d, v%d' % (b + 8 + j, b + 2 * j, b + 2 * j + 1))
        r.append('ds_write_b128 v227, %s offset:%d' % (v(b + 8, 4), 1024 * tt))
    return r
a.run(gen_C())
stamp()
a.run(dma_x(2) + dma_w1h0(2))

def gen_F1():
    r = ['v_cvt_f32_u32 v224, v28', 'v_mul_f32 v224, 0x3d000000, v224',
         'v_and_b32 v225, 15, v1', 'v_mul_u32_u24 v225, %s, v225' % sSQ,
         'v_bfe_u32 v226, v1, 4, 1', 's_lshr_b32 s77, %s, 5' % sSQ, 's_lshl_b32 s77, s77, 9',
         'v_mad_u32_u24 v225, v226, s77, v225',
         'v_cvt_f32_u32 v225, v225', 'v_mul_f32 v225, 0x3a000000, v225',
         'v_lshlrev_b32 v226, 3, v27', 'v_cvt_f32_u32 v226, v226', 'v_fmac_f32 v225, v224, v226']
    for c in range(2):
        for j in range(8): r.append('v_fmamk_f32 v%d, v224, %s, v225' % (232 + j, fl(16.0 * (j >> 2) + 2 * (j & 3) + c)))
        for j in range(8): r += ['v_sin_f32 v%d, v%d' % (240 + j, 232 + j), 'v_cos_f32 v%d, v%d' % (232 + j, 232 + j)]
        for j in range(4):
            r += ['v_cvt_pk_bf16_f32 v%d, v%d, v%d' % (248 + j, 232 + 2 * j, 233 + 2 * j), 'v_cvt_pk_bf16_f32 v%d, v%d, v%d' % (252 + j, 240 + 2 * j, 241 + 2 * j)]
        for j in range(4):
            r += ['v_accvgpr_write_b32 a%d, v%d' % (128 + 4 * c + j, 248 + j), 'v_accvgpr_write_b32 a%d, v%d' % (136 + 4 * c + j, 252 + j)]
    return r
def gen_F2():
    r = ['v_and_b32 v224, 15, v1', 'v_lshl_add_u32 v224, v224, 2, %s' % sW, 'v_cvt_f32_u32 v224, v224',
         'v_mul_f32 v224, 0x3c000000, v224',
         'v_lshlrev_b32 v226, 2, v26', 'v_cvt_f32_u32 v226, v226']
    for mt in range(2):
        if mt: r.append('v_add_f32 v224, 0.5, v224')
        r.append('v_mul_f32 v225, v224, v226')
        for j in range(8): r.append('v_fmamk_f32 v%d, v224, %s, v225' % (232 + j, fl(16.0 * (j >> 2) + (j & 3))))
        for j in range(8): r += ['v_sin_f32 v%d, v%d' % (240 + j, 232 + j), 'v_cos_f32 v%d, v%d' % (232 + j, 232 + j)]
        for j in range(8):
            r += ['v_cvt_pk_bf16_f32 v%d, v%d, v%d' % (248 + (j & 3), 232 + j, 240 + j), 'v_cvt_pk_bf16_f32 v%d, -v%d, v%d' % (252 + (j & 3), 240 + j, 232 + j),
                  'v_accvgpr_write_b32 a%d, v%d' % (96 + 8 * mt + j, 248 + (j & 3)), 'v_accvgpr_write_b32 a%d, v%d' % (112 + 8 * mt + j, 252 + (j & 3))]
    return r
a.run(gen_F1())
a.run(dma_x(3) + dma_w1h0(3))
a.run(gen_F2())
stamp()
e('v_readfirstlane_b32 s77, v19')
e('v_lshlrev_b32 v224, 16, v20')
e('v_and_b32 v225, 0xffff0000, v20')
e('v_lshlrev_b32 v226, 3, v1')
e('v_add_u32 v226, %d, v226' % B1L)
e('ds_write_b64 v226, v[224:225]')
e('s_add_u32 %s, s77, 1' % sEN)
e('s_mul_i32 s77, s77, 0x9E3779B1')
e('s_add_u32 %s, s77, 0x7F4A7C15' % sT1)
e('s_add_u32 %s, %s, 1' % (sT2, sT1))
e('v_mov_b32 v19, %s' % sT1)
e('v_mov_b32 v20, %s' % sT2)
for j in range(4):
    for q in range(4):
        e('ds_read_b128 %s, v17 offset:%d' % (v(144 + 16 * j + 4 * q, 4), B1L - GW + (32 * j + 8 * q) * 4))

def A_reads(c):
    bb = 48 * (c & 1)
    r = []
    for tt in range(4): r.append(('ds_read_b128 %s, v%d offset:%d' % (v(32 + 16 * c + 4 * tt, 4), 10 + tt, (c % 4) * 16384), 'xr%d' % c))
    for tt in range(4):
        t = 4 * c + tt
        r.append('ds_read_b128 %s, v16 offset:%d' % (ag(bb + 4 * tt, 4), 1024 * t))
        for j in range(2):
            for aa in range(2):
                r.append('ds_read_b64_tr_b16 %s, v%d offset:%d' % (ag(bb + 16 + 8 * tt + 4 * j + 2 * aa, 2), 14 + j, 2048 * t + 512 * aa))
    return r
def A_gate(c):
    r = []
    for tt in range(4): r.append('ds_read_b128 %s, v17 offset:%d' % (v(224 + 4 * tt, 4), 32 * (4 * c + tt)))
    for k in range(16): r.append('v_dot2c_f32_bf16 v18, v%d, v%d' % (32 + 16 * c + k, 224 + k))
    return r
def A_mfma(c):
    bb = 48 * (c & 1)
    r = []
    for tt in range(4):
        x = v(32 + 16 * c + 4 * tt, 4)
        r.append('v_mfma_f32_32x32x16_bf16 %s, %s, %s, %s' % (v(208, 16), x, ag(bb + 4 * tt, 4), '0' if (c == 0 and tt == 0) else v(208, 16)))
        for j in range(2):
            r.append('v_mfma_f32_32x32x16_bf16 %s, %s, %s, %s' % (v(144 + 16 * j, 16), ag(bb + 16 + 8 * tt + 4 * j, 4), x, v(144 + 16 * j, 16)))
    return r
for c in range(7):
    a.wait_vm('x%d' % c)
    if c == 0: a.wait_lg()
    a.barrier()
    if c == 0: stamp()
    nxt = (dma_x(c + 4) + dma_w1h0(c + 4)) if c < 3 else dma_w1h1((c) % 4)
    rd = A_reads(c)
    fill = rd[:4] + rd[4:12] + [L_('xr%d' % c)] + nxt + rd[12:]
    if c > 0:
        fill = fill + A_gate(c - 1)
        a.run(interleave(A_mfma(c - 1), fill, 24))
    else:
        a.run(fill)
a.run(interleave(A_mfma(6), A_gate(6), 24))
stamp()
a.barrier()
e('v_lshlrev_b32 v2, 1, v26')
e('v_xor_b32 v2, v25, v2')
e('v_lshlrev_b32 v2, 4, v2')
e('s_movk_i32 s77, 896')
e('v_mad_u32_u24 v2, v24, s77, v2')
for u in range(1, 4): e('v_add_u32 v%d, %d, v2' % (2 + u, u * 6144))
e('s_lshr_b32 s54, %s, 1' % sW)
e('s_mul_i32 s54, s54, 28')
e('s_and_b32 s77, %s, 1' % sW)
e('s_add_u32 s54, s54, s77')
e('s_mul_i32 s53, s54, %d' % (32 * 896))
e('s_lshl_b32 s77, %s, 7' % sNT)
e('s_add_u32 s53, s53, s77')
def fb_rel(st): return 4 * (st % 7) + 2 * (st // 7)
def w2_slot(st):
    s = st % 9
    return W1H0 + s * 16384 if s < 5 else (s - 5) * 16384
def dma_w2(st):
    r = ['s_add_u32 m0, s50, %d' % w2_slot(st), 's_add_u32 s78, s53, %d' % (fb_rel(st) * 32 * 896)]
    for u in range(4): r.append(('buffer_load_dwordx4 v%d, %s, s78 offen offset:%d lds' % (2 + u, SW2, 1024 * u), 'w2_%d' % st))
    return r
e('v_mov_b32 v224, v18')
e('v_permlane32_swap_b32 v18, v224')
e('v_add_f32 v18, v18, v224')
e('v_mul_f32 v18, %s, v18' % fl(-1.4426950408889634))
e('v_exp_f32 v18, v18')
e('v_lshlrev_b32 v224, 2, v28')
e('v_add_f32 v18, 1.0, v18')
e('v_rcp_f32 v18, v18')
e('s_lshl_b32 s77, %s, 7' % sW)
e('s_add_u32 s77, s77, %d' % GL)
e('v_add_u32 v224, s77, v224')
e('ds_write_b32 v224, v18')
for j in range(8): e('v_cvt_pk_bf16_f32 v%d, v%d, v%d' % (208 + j, 208 + 2 * j, 209 + 2 * j))
e('v_mfma_f32_32x32x16_bf16 %s, %s, %s, 0' % (v(224, 16), ag(128, 4), v(208, 4)))
e('v_mfma_f32_32x32x16_bf16 %s, %s, %s, 0' % (v(240, 16), ag(136, 4), v(208, 4)))
e('v_mfma_f32_32x32x16_bf16 %s, %s, %s, %s' % (v(224, 16), ag(132, 4), v(212, 4), v(224, 16)))
e('v_mfma_f32_32x32x16_bf16 %s, %s, %s, %s' % (v(240, 16), ag(140, 4), v(212, 4), v(240, 16)))
a.run(dma_w2(0) + dma_w2(1))
e('v_and_b32 v21, 1, v1')
e('v_lshlrev_b32 v22, 1, v21')
e('v_lshlrev_b32 v21, 31, v21')
e('v_or_b32 v21, 1.0, v21')
e('v_lshrrev_b32 v23, 1, v28')
e('v_lshl_add_u32 v22, v23, 4, v22')
e('v_lshl_add_u32 v22, v27, 10, v22')
e('s_lshl_b32 s77, %s, 2' % sW)
e('s_add_u32 s77, s77, %d' % TT)
e('v_add_u32 v22, s77, v22')
e('s_cmp_lg_u32 %s, 0' % sNB)
e('s_cbranch_scc1 L_sp1')
a.cond_begin()
for r in range(16): e('v_cvt_pk_bf16_f32 v%d, v%d, -v%d' % (208 + r, 224 + r, 240 + r))
a.cond_end()
a.raw('L_sp1:')
for r in range(16): e('v_fmac_f32_dpp v%d, v%d, v21 quad_perm:[1,0,3,2] row_mask:0xf bank_mask:0xf' % (224 + r, 240 + r))
for r in range(0, 16, 2):
    e('v_cvt_pk_bf16_f32 v%d, v%d, v%d' % (240 + r // 2, 224 + r, 225 + r))
for r in range(0, 16, 2):
    off = (8 * (r >> 2) + (r & 3)) * 256
    e('ds_write_b16 v22, v%d offset:%d' % (240 + r // 2, off))
    e('ds_write_b16_d16_hi v22, v%d offset:%d' % (240 + r // 2, off + 256))
e('s_cmp_lg_u32 %s, 0' % sNB)
e('s_cbranch_scc1 L_sp2')
a.cond_begin()
e('s_mov_b32 exec_lo, 1'); e('s_mov_b32 exec_hi, 1')
for r in range(16): e('ds_write_b32 v22, v%d offset:%d' % (208 + r, (8 * (r >> 2) + (r & 3)) * 256))
e('s_mov_b64 exec, -1')
e('v_lshlrev_b32 v23, 6, v27')
e('s_lshl_b32 s77, %s, 2' % sW)
e('s_add_u32 s77, s77, %d' % TV)
e('v_add_u32 v23, s77, v23')
e('s_mov_b32 exec_lo, 2'); e('s_mov_b32 exec_hi, 2')
for r in range(16): e('ds_write_b32 v23, v%d offset:%d' % (208 + r, (8 * (r >> 2) + (r & 3)) * 16))
e('s_mov_b64 exec, -1')
a.cond_end()
a.raw('L_sp2:')
a.wait_vm('w1h1')
a.raw('    s_waitcnt lgkmcnt(0)'); a.pos += 1; a.lg_done = len(a.lg)
a.barrier()
stamp()
e('s_lshl_b32 s77, %s, 11' % sW)
e('s_add_u32 s77, s77, %d' % TT)
e('v_add_u32 v22, s77, v29')
e('ds_read_b128 %s, v22' % v(224, 4))
e('ds_read_b128 %s, v22 offset:1024' % v(228, 4))
e('v_and_b32 v23, 15, v1')
e('v_lshlrev_b32 v23, 4, v23')
e('v_lshl_add_u32 v21, v26, 12, v23')
e('s_lshl_b32 s55, %s, 17' % sNB)
e('s_add_u32 s55, s55, %d' % TB)
e('s_lshl_b32 s77, %s, 15' % sW)
e('s_lshl_b32 s78, %s, 8' % sMB)
e('s_add_u32 s77, s77, s78')
e('s_add_u32 s77, s77, s55')
e('s_add_u32 s78, s77, 16384')
e('buffer_store_dwordx4 %s, v21, %s, s77 offen sc1' % (v(224, 4), SWS), tag='T')
e('buffer_store_dwordx4 %s, v21, %s, s78 offen sc1' % (v(228, 4), SWS), tag='T')
e('s_cmp_lg_u32 %s, 0' % sNB)
e('s_cbranch_scc1 L_sp3')
a.cond_begin()
e('s_lshl_b32 s77, %s, 7' % sW)
e('s_add_u32 s77, s77, %d' % TV)
e('v_add_u32 v22, s77, v29')
e('v_lshlrev_b32 v21, 8, v1')
e('s_lshl_b32 s77, %s, 11' % sW)
e('s_lshl_b32 s78, %s, 4' % sMB)
e('s_add_u32 s77, s77, s78')
e('s_add_u32 s77, s77, %d' % TVB)
e('s_mov_b64 exec, 0xff')
e('ds_read_b128 %s, v22' % v(232, 4))
e('buffer_store_dwordx4 %s, v21, %s, s77 offen sc1' % (v(232, 4), SWS), tag='T')
e('s_mov_b64 exec, -1')
a.cond_end()
a.raw('L_sp3:')
for r in range(16): e('v_mov_b32 v%d, 0' % (208 + r))
e('v_and_b32 v23, 15, v1')
e('v_lshlrev_b32 v23, 1, v23')
e('s_mov_b32 s77, %d' % (256 * 450))
e('v_mad_u32_u24 v21, v26, s77, v23')
e('s_lshl_b32 s56, %s, 4' % sW)
e('s_add_u32 s56, s56, %s' % sMB)
e('s_mul_i32 s77, s56, 450')
e('s_lshl_b32 s78, %s, 5' % sNB)
e('s_add_u32 s57, s77, s78')
wl = []
for mt in range(2):
    for r in range(4):
        wl += ['s_add_u32 s79, s57, %d' % ((16 * mt + r) * 28800),
               ('buffer_load_short_d16_hi v%d, v21, %s, s79 offen' % (208 + 4 * mt + r, SWR), 'W'),
               ('buffer_load_short_d16_hi v%d, v21, %s, s79 offen' % (216 + 4 * mt + r, SWI), 'W')]
e('s_cmp_lg_u32 %s, 0' % sNB)
e('s_cbranch_scc1 L_sp4')
a.cond_begin()
for r in range(16): e('v_mov_b32 v%d, 0' % (240 + r))
e('v_lshl_add_u32 v224, v26, 8, s56')
e('v_and_b32 v225, 1, v1')
e('v_cmp_eq_u32 vcc, 1, v225')
e('v_bfe_u32 v225, v1, 1, 1')
e('v_mul_u32_u24 v225, 448, v225')
e('s_movk_i32 s77, 450')
for mt in range(2):
    for r in range(4):
        e('v_add_u32 v226, %d, v224' % (64 * (16 * mt + r)))
        e('v_sub_u32 v227, 2048, v226')
        e('v_and_b32 v227, 2047, v227')
        e('v_cndmask_b32 v226, v226, v227, vcc')
        e('v_mad_u32_u24 v226, v226, s77, v225')
        e('buffer_load_short_d16_hi v%d, v226, %s, 0 offen' % (240 + 4 * mt + r, SWR), tag='Wsp')
        e('buffer_load_short_d16_hi v%d, v226, %s, 0 offen' % (248 + 4 * mt + r, SWI), tag='Wsp')
a.cond_end()
a.raw('L_sp4:')

e('s_mul_i32 s58, %s, 56' % sSQ)
e('s_lshl_b32 s77, %s, 2' % sNB)
e('s_add_u32 s58, s58, s77')
e('s_lshl_b32 s58, s58, 11')
e('s_add_u32 s58, s58, %d' % HB)
e('s_add_u32 s59, s58, 4096')
e('v_mov_b32 v23, %s' % fl(-0.1029432397))
K0 = fl(-2.302208198)
def gelu(j, tb):
    r = []
    A = 144 + 16 * j
    for h in range(2):
        for q in range(2):
            X = [A + 8 * h + 4 * q + i for i in range(4)]
            T = [tb + 4 * q + i for i in range(4)]
            r += ['v_mul_f32 v%d, v%d, v%d' % (t, x, x) for t, x in zip(T, X)]
            r += ['v_fmaak_f32 v%d, v%d, v23, %s' % (t, t, K0) for t in T]
            r += ['v_mul_f32 v%d, v%d, v%d' % (t, t, x) for t, x in zip(T, X)]
            r += ['v_exp_f32 v%d, v%d' % (t, t) for t in T]
            r += ['v_add_f32 v%d, 1.0, v%d' % (t, t) for t in T]
            r += ['v_rcp_f32 v%d, v%d' % (t, t) for t in T]
            r += ['v_mul_f32 v%d, v%d, v%d' % (x, t, x) for t, x in zip(T, X)]
            r += ['v_cvt_pk_bf16_f32 v%d, v%d, v%d' % (A + 8 * h + 2 * q + i, X[2 * i], X[2 * i + 1]) for i in range(2)]
        r.append(('buffer_store_dwordx4 %s, v29, %s, %s offen offset:%d sc1' % (v(A + 8 * h, 4), SWS, 's58' if j < 2 else 's59', (j & 1) * 2048 + h * 1024), 'h%d' % (j >> 1)))
    return r
e('s_lshl_b32 s60, %s, 2' % sNB); e('s_add_u32 s60, s60, %s' % sW); e('s_lshl_b32 s60, s60, 4'); e('s_add_u32 s60, s60, %s' % sMB)
e('s_lshl_b32 s60, s60, 2'); e('s_add_u32 s60, s60, %d' % FL1)
e('s_lshl_b32 s61, %s, 4' % sSQ); e('s_add_u32 s61, s61, %s' % sNB); e('s_lshl_b32 s61, s61, 2'); e('s_add_u32 s61, s61, %d' % FL2)
e('s_lshl_b32 s62, %s, 4' % sW); e('s_add_u32 s62, s62, %s' % sNB); e('s_lshl_b32 s62, s62, 4'); e('s_add_u32 s62, s62, %s' % sMB)
e('s_lshl_b32 s62, s62, 2'); e('s_add_u32 s62, s62, %d' % FL3)
e('v_subrev_u32 v14, %d, v14' % W1H0)
e('v_subrev_u32 v15, %d, v15' % W1H0)
def B_reads(t):
    bb = 8 * (t % 12)
    return ['ds_read_b64_tr_b16 %s, v%d offset:%d' % (ag(bb + 4 * j + 2 * aa, 2), 14 + j, 2048 * t + 512 * aa) for j in range(2) for aa in range(2)]
def B_mfma(t, j):
    return 'v_mfma_f32_32x32x16_bf16 %s, %s, %s, %s' % (v(176 + 16 * j, 16), ag(8 * (t % 12) + 4 * j, 4), v(32 + 4 * t, 4), v(176 + 16 * j, 16))
PD = 2
for t in range(PD): a.run(B_reads(t))
fillB = wl + dma_w2(2) + gelu(0, 224) + dma_w2(3) + [W_('T')] + flag_store('v19', 's60') + gelu(1, 232) + dma_w2(4)
main = []
for t in range(28):
    rd = B_reads(t + PD) if t + PD < 28 else [None] * 4
    main.append([B_mfma(t, 0)] + rd[:2]); main.append([B_mfma(t, 1)] + rd[2:])
tot = sum(cost(x) for x in fillB)
bud = -(-tot // 56)
seq = interleave([(lambda m=m: a.run(m)) for m in main], fillB, bud)
a.run(seq)
stamp()
a.barrier()
a.run(dma_w2(5) + dma_w2(6))
e('v_and_b32 v22, 15, v1')
e('v_lshlrev_b32 v22, 2, v22')
e('s_lshr_b32 s77, %s, 3' % sMB); e('s_and_b32 s78, %s, 1' % sW); e('s_lshl_b32 s79, s78, 1'); e('s_add_u32 s77, s77, s79')
e('s_lshl_b32 s79, %s, 2' % sNB); e('s_add_u32 s77, s77, s79'); e('s_lshl_b32 s77, s77, 6'); e('s_add_u32 s63, s77, %d' % FL1)
p1 = 'buffer_load_dword v31, v22, %s, s63 offen sc1' % SWS
e(p1, tag='p1')
a.run(gelu(2, 224))
a.run([W_('h0')] + flag_store('v19', 's61'))
a.run([poll_check([p1], ['v31'], sT1, 1)])
stamp()
e('s_and_b32 s78, %s, 1' % sW); e('s_lshl_b32 s78, s78, 4'); e('s_add_u32 s78, s78, %s' % sMB)
e('s_lshl_b32 s77, s78, 12'); e('s_add_u32 s77, s77, s55')
for q in range(4): e('buffer_load_dwordx4 %s, v29, %s, s77 offen offset:%d sc1' % (v(32 + 4 * q, 4), SWS, 1024 * q), tag='Tl')
e('s_cmp_lg_u32 %s, 0' % sNB)
e('s_cbranch_scc1 L_sp5')
a.cond_begin()
e('v_and_b32 v22, 15, v1')
e('v_lshlrev_b32 v22, 26, v22')
e('v_lshl_add_u32 v22, v26, 4, v22')
e('s_lshl_b32 s77, s78, 8'); e('s_add_u32 s77, s77, %d' % TVB)
for q in range(4): e('buffer_load_dwordx4 %s, v22, %s, s77 offen offset:%d sc1' % (v(48 + 4 * q, 4), SWS, 64 * q), tag='Tl')
a.cond_end()
a.raw('L_sp5:')
a.run(dma_w2(7) + dma_w2(8))
e('v_min_u32 v22, 6, v25')
e('v_and_b32 v21, 1, v24')
e('v_lshl_add_u32 v22, v21, 4, v22')
e('v_lshlrev_b32 v6, 2, v22')
e('s_lshl_b32 s77, %s, 1' % sHALF); e('s_lshl_b32 s64, %s, 2' % sMB); e('s_add_u32 s64, s64, s77')
e('s_lshl_b32 s77, s64, 4'); e('s_lshr_b32 s78, %s, 1' % sW); e('s_mul_i32 s78, s78, 7'); e('s_add_u32 s77, s77, s78')
e('s_lshl_b32 s77, s77, 2'); e('s_add_u32 s65, s77, %d' % FL2)
a.run(gelu(3, 232))
p2 = 'buffer_load_dword v31, v6, %s, s65 offen sc1' % SWS
e(p2, tag='p2')
stamp()
e('s_lshr_b32 s77, %s, 1' % sW); e('s_mul_i32 s66, s77, 0x80008000')
for k in range(8): e('v_xor_b32 v%d, s66, v%d' % (40 + k, 40 + k))
def F2_fwd(D, B):
    for q in range(4):
        for mt in range(2):
            for part in range(2):
                d = v(D + 8 * mt + 4 * part, 4)
                e('v_mfma_f32_16x16x32_bf16 %s, %s, %s, %s' % (d, ag(96 + 16 * part + 8 * mt + 4 * (q & 1), 4), v(B + 4 * q, 4), '0' if q == 0 else d))
F2_fwd(64, 32)
e('s_cmp_lg_u32 %s, 0' % sNB)
e('s_cbranch_scc1 L_sp6')
a.cond_begin()
for k in range(8): e('v_xor_b32 v%d, s66, v%d' % (56 + k, 56 + k))
F2_fwd(80, 48)
DP = 'row_mask:0xf bank_mask:0xf'
e('v_and_b32 v22, 15, v1')
e('v_cmp_eq_u32 vcc, 0, v22')
for k in range(8):
    e('v_add_f32_dpp v%d, v%d, v%d quad_perm:[1,0,3,2] %s' % (128 + k, 240 + k, 240 + k, DP))
    e('v_subrev_f32_dpp v%d, v%d, v%d quad_perm:[1,0,3,2] %s' % (136 + k, 248 + k, 248 + k, DP))
for k in range(8):
    e('v_cndmask_b32 v%d, v%d, v%d, vcc' % (208 + k, 208 + k, 128 + k))
    e('v_cndmask_b32 v%d, v%d, v%d, vcc' % (216 + k, 216 + k, 136 + k))
    e('v_mov_b32_dpp v%d, v%d quad_perm:[2,2,2,2] %s' % (240 + k, 128 + k, DP))
    e('v_mov_b32_dpp v%d, v%d quad_perm:[2,2,2,2] %s' % (248 + k, 136 + k, DP))
a.cond_end()
a.raw('L_sp6:')
for k in range(8):
    zr = 64 + 8 * (k >> 2) + (k & 3); zi = zr + 4
    e('v_mul_f32 v%d, v%d, v%d' % (128 + k, zr, 208 + k))
    e('v_mul_f32 v%d, v%d, v%d' % (136 + k, zr, 216 + k))
for k in range(8):
    zr = 64 + 8 * (k >> 2) + (k & 3); zi = zr + 4
    e('v_fma_f32 v%d, -v%d, v%d, v%d' % (128 + k, zi, 216 + k, 128 + k))
    e('v_fmac_f32 v%d, v%d, v%d' % (136 + k, zi, 208 + k))
e('s_cmp_lg_u32 %s, 0' % sNB)
e('s_cbranch_scc1 L_sp7')
a.cond_begin()
for k in range(8):
    zr = 80 + 8 * (k >> 2) + (k & 3); zi = zr + 4
    e('v_fma_f32 v%d, -v%d, v%d, v%d' % (128 + k, zr, 248 + k, 128 + k))
    e('v_fmac_f32 v%d, v%d, v%d' % (136 + k, zr, 240 + k))
for k in range(8):
    zr = 80 + 8 * (k >> 2) + (k & 3); zi = zr + 4
    e('v_fma_f32 v%d, -v%d, v%d, v%d' % (128 + k, zi, 240 + k, 128 + k))
    e('v_fma_f32 v%d, -v%d, v%d, v%d' % (136 + k, zi, 248 + k, 136 + k))
a.cond_end()
a.raw('L_sp7:')
e('v_and_b32 v22, 15, v1')
e('v_lshlrev_b32 v22, 4, v22')
e('v_lshl_add_u32 v22, v26, 10, v22')
e('s_lshl_b32 s77, %s, 2' % sW); e('s_add_u32 s77, s77, %d' % TT)
e('v_add_u32 v22, s77, v22')
for k in range(8):
    e('v_cvt_pk_bf16_f32 v%d, v%d, -v%d' % (128 + k, 128 + k, 136 + k))
for k in range(8):
    e('ds_write_b32 v22, v%d offset:%d' % (128 + k, (16 * (k >> 2) + (k & 3)) * 256))
e('v_add_u32 v22, %d, v29' % TT)
e('v_and_b32 v7, 15, v1')
e('v_lshlrev_b32 v7, 4, v7')
e('v_lshl_add_u32 v7, v26, 9, v7')
e('v_add_u32 v8, %d, v7' % (56 * 2048))
e('s_mul_i32 s67, s64, 56'); e('s_add_u32 s67, s67, s54'); e('s_lshl_b32 s67, s67, 11'); e('s_add_u32 s67, s67, %d' % HB)
def h_load(st):
    bb = 128 + 16 * (st % 8)
    r = ['s_add_u32 s79, s67, %d' % (fb_rel(st) * 2048)]
    for rt in range(4):
        r.append(('buffer_load_dwordx4 %s, v%d, %s, s79 offen offset:%d sc1' % (ag(bb + 4 * rt, 4), 7 + (rt >> 1), SWS, 256 * (rt & 1)), 'hl%d' % st))
    return r
a.run([W_('h1')] + flag_store('v20', 's61'))
a.run([poll_check([p2], ['v31'], sT1, 2)])
for st in range(4): a.run(h_load(st))
a.wait_lg()
a.barrier()
stamp()
for q in range(8): e('ds_read_b128 %s, v22 offset:%d' % (v(96 + 4 * q, 4), 1024 * q))
for kb in range(1, 4):
    e('s_mul_i32 s77, %s, %d' % (sW, kb)); e('s_and_b32 s77, s77, 3')
    e('s_and_b32 s78, s77, 1'); e('s_lshl_b32 s%d, s78, 4' % (67 + kb))
    e('s_lshr_b32 s78, s77, 1'); e('s_xor_b32 s79, s77, s78'); e('s_lshl_b32 s79, s79, 31'); e('s_lshl_b32 s78, s78, 15')
    e('s_or_b32 s%d, s79, s78' % (47 + kb if kb < 3 else 71))
MSK = {1: 's48', 2: 's49', 3: 's71'}
for q in range(8):
    kb, t = q >> 1, q & 1
    if kb:
        for j in range(4):
            r = 96 + 4 * q + j
            if kb != 2: e('v_alignbit_b32 v%d, v%d, v%d, s%d' % (r, r, r, 67 + kb))
        for j in range(4):
            r = 96 + 4 * q + j
            e('v_xor_b32 v%d, %s, v%d' % (r, MSK[kb], r))
    for mt in range(2):
        for part in range(2):
            d = v(64 + 8 * mt + 4 * part, 4)
            e('v_mfma_f32_16x16x32_bf16 %s, %s, %s, %s' % (d, v(96 + 4 * q, 4), ag(96 + 16 * part + 8 * mt + 4 * t, 4), '0' if q == 0 else d))
for st in range(4, 7): a.run(h_load(st))
e('v_and_b32 v22, 15, v1')
e('s_mov_b32 s77, %d' % (4 * 14336))
e('v_lshlrev_b32 v21, 4, v26')
e('v_mad_u32_u24 v22, v22, s77, v21')
e('s_mul_i32 s77, %s, 14336' % sW); e('s_mul_i32 s78, %s, 896' % sMB); e('s_add_u32 s77, s77, s78')
e('s_lshl_b32 s78, %s, 6' % sNB); e('s_add_u32 s77, s77, s78'); e('s_add_u32 s77, s77, %d' % RB)
e('s_add_u32 s78, s77, %d' % (64 * 14336))
for mt in range(2):
    for r in range(4): e('v_cvt_pk_bf16_f32 v%d, v%d, -v%d' % (128 + 4 * mt + r, 64 + 8 * mt + r, 68 + 8 * mt + r))
    e('buffer_store_dwordx4 %s, v22, %s, %s offen sc1' % (v(128 + 4 * mt, 4), SWS, 's77' if mt == 0 else 's78'), tag='R')
stamp()
e('v_lshrrev_b32 v10, 5, v1')
e('v_bfe_u32 v11, v1, 4, 1')
e('v_bfe_u32 v12, v1, 2, 2')
e('v_lshl_add_u32 v10, v10, 4, v12')
e('v_lshl_add_u32 v10, v11, 2, v10')
e('v_lshlrev_b32 v10, 7, v10')
e('v_bfe_u32 v12, v1, 3, 2')
e('v_lshl_add_u32 v10, v12, 5, v10')
e('v_and_b32 v12, 3, v1')
e('v_lshl_add_u32 v10, v12, 3, v10')
e('v_add_u32 v14, s50, v10')
for ct in range(1, 4): e('v_xor_b32 v%d, %d, v14' % (14 + ct, 32 * ct))
for ct in range(4): e('v_add_u32 v%d, %d, v%d' % (10 + ct, W1H0, 14 + ct))
AC = [18, 21, 22, 23]
for ct in range(4): e('v_add_u32 v%d, %d, v%d' % (AC[ct], 131072, 14 + ct))
def D_reads(st):
    s = st % 9
    bb = 64 + 16 * (st & 1)
    r = [W_('w2_%d' % st)]
    for ct in range(4):
        if s < 4: ar, off = 10 + ct, s * 16384
        elif s == 4: ar, off = AC[ct], 0
        else: ar, off = 14 + ct, (s - 5) * 16384
        for aa in range(2):
            r.append(('ds_read_b64_tr_b16 %s, v%d offset:%d' % (ag(bb + 4 * ct + 2 * aa, 2), ar, off + 1024 * aa), 'dr%d' % st))
    return r
def D_mfma(st):
    r = []
    for ct in range(4):
        for rt in range(4):
            d = v(32 + 16 * ct + 4 * rt, 4)
            r.append('v_mfma_f32_16x16x32_bf16 %s, %s, %s, %s' % (d, ag(64 + 16 * (st & 1) + 4 * ct, 4), ag(128 + 16 * (st % 8) + 4 * rt, 4), '0' if st == 0 else d))
    return r
def gen_inv():
    r = ['v_and_b32 v240, 15, v1', 's_lshl_b32 s68, %s, 6' % sNT, 'v_add_u32 v240, s68, v240', 'v_cvt_f32_u32 v240, v240',
         's_mul_i32 s68, %s, 56' % sW, 'v_lshl_add_u32 v241, v26, 4, s68', 'v_cvt_f32_u32 v241, v241']
    for ct in range(4):
        r += ['v_add_f32 v242, %s, v240' % fl(16.0 * ct), 'v_mul_f32 v242, %s, v242' % fl(1.0 / 448), 'v_mul_f32 v243, v242, v241', 'v_fract_f32 v243, v243']
        for c in range(4):
            for q in range(4): r.append('v_fmamk_f32 v%d, v242, %s, v243' % (244 + q, fl(4.0 * q + c)))
            for q in range(4): r += ['v_sin_f32 v%d, v%d' % (248 + q, 244 + q), 'v_cos_f32 v%d, v%d' % (244 + q, 244 + q)]
            for q in range(4): r.append('v_cvt_pk_bf16_f32 v%d, v%d, -v%d' % (96 + 16 * c + 4 * ct + q, 244 + q, 248 + q))
    r += ['v_and_b32 v242, 1, v1', 'v_lshlrev_b32 v242, 31, v242', 'v_or_b32 v242, 0x3e803e80, v242', 'v_cmp_eq_u32 vcc, 0, v241', 's_nop 0']
    for ct in range(4): r.append('v_cndmask_b32 v%d, v%d, v242, vcc' % (96 + 4 * ct, 96 + 4 * ct))
    return r
def gen_s4():
    r = ['v_and_b32 v240, 15, v1', 's_lshl_b32 s68, %s, 8' % sHALF, 's_add_u32 s68, s68, %d' % GL, 'v_lshl_add_u32 v241, v240, 2, s68']
    for rt in range(4): r.append('ds_read_b32 v%d, v241 offset:%d' % (252 + rt, 64 * rt))
    r += ['v_lshl_add_u32 v240, v240, 7, s64', 'v_cvt_f32_u32 v240, v240', 'v_lshlrev_b32 v241, 2, v26', 'v_cvt_f32_u32 v241, v241']
    for rt in range(4): r += ['v_sub_f32 v%d, 1.0, v%d' % (236 + rt, 252 + rt), 'v_mul_f32 v%d, %s, v%d' % (252 + rt, fl(1.0 / (224 * 2048)), 252 + rt)]
    for rt in range(4):
        r += ['v_add_f32 v242, %s, v240' % fl(64.0 * (rt & 1) + (rt >> 1)), 'v_mul_f32 v242, 0x3a000000, v242', 'v_mul_f32 v243, v242, v241']
        for q in range(4): r.append('v_fmamk_f32 v%d, v242, %s, v243' % (244 + q, fl(1.0 * q)))
        for q in range(4): r += ['v_sin_f32 v%d, v%d' % (248 + q, 244 + q), 'v_cos_f32 v%d, v%d' % (244 + q, 244 + q)]
        for q in range(8): r.append('v_mul_f32 v%d, v%d, v%d' % (244 + q, 252 + rt, 244 + q))
        for q in range(4):
            r += ['v_cvt_pk_bf16_f32 v%d, v%d, -v%d' % (160 + 8 * rt + q, 244 + q, 248 + q), 'v_cvt_pk_bf16_f32 v%d, v%d, v%d' % (164 + 8 * rt + q, 248 + q, 244 + q)]
    return r
genf = gen_inv() + gen_s4()
gpos = 0
per = -(-len(genf) // 14)
e('s_mul_i32 s77, %s, 7' % sW); e('s_lshr_b32 s77, s77, 1'); e('s_lshl_b32 s78, %s, 5' % sHALF); e('s_add_u32 s77, s77, s78')
e('s_lshl_b32 s77, s77, 6'); e('s_add_u32 s63, s77, %d' % FL3)
e('v_and_b32 v9, 15, v1')
e('v_cmp_lt_u32 vcc, 13, v9')
e('v_lshlrev_b32 v9, 4, v9')
e('s_movk_i32 s77, 3584')
e('v_mad_u32_u24 v9, v26, s77, v9')
e('v_mov_b32 v31, 0x40000000')
e('v_cndmask_b32 v9, v9, v31, vcc')
e('s_mul_i32 s66, s64, 14336'); e('s_mul_i32 s77, %s, 224' % sW); e('s_add_u32 s66, s66, s77'); e('s_add_u32 s66, s66, %d' % RB)
p3 = ['buffer_load_dword v31, v30, %s, s63 offen sc1' % SWS, 'buffer_load_dword v0, v30, %s, s63 offen offset:1024 sc1' % SWS]
def R_load(rt):
    r = ['s_add_u32 s79, s66, %d' % ((64 * (rt & 1) + (rt >> 1)) * 14336)]
    for j in range(4): r.append(('buffer_load_dwordx4 %s, v9, %s, s79 offen offset:%d sc1' % (ag(16 * rt + 4 * j, 4), SWS, 896 * j), 'Rl%d' % rt))
    return r
a.run(D_reads(0))
for st in range(14):
    fill = []
    if st + 1 < 14: fill += D_reads(st + 1)
    if st == 0: fill += [(p2, 'p2b')]
    if st == 1: fill += [W_('R')] + flag_store('v19', 's62')
    if st == 2: fill += [poll_check([p2], ['v31'], sT2, 1)] + h_load(7) + h_load(8) + h_load(9)
    if 3 <= st <= 6: fill += h_load(st + 7)
    if st + 9 < 14: fill += [L_('dr%d' % st)] + dma_w2(st + 9)
    if st == 7: fill += [(p3[0], 'p3'), (p3[1], 'p3')]
    if st == 9: fill += [poll_check(p3, ['v31', 'v0'], sT1, 1)] + R_load(0) + R_load(1)
    if st == 10: fill += R_load(2) + R_load(3)
    if st == 11:
        fill += ['v_lshlrev_b32 v31, 4, v25', 's_lshl_b32 s69, %s, 7' % sNT, ('buffer_load_dwordx4 %s, v31, %s, s69 offen' % (v(232, 4), SB2), 'b2')]
    fill += genf[gpos:gpos + per]; gpos += per
    a.run(interleave(D_mfma(st), fill, -(-sum(cost(x) for x in fill) // 16)))
stamp()
for rt in range(4):
    for c in range(4):
        for j in range(4): e('v_accvgpr_read_b32 v%d, a%d' % (192 + 4 * c + j, 16 * rt + 4 * j + c))
    for ct in range(4):
        for r in range(4): e('v_mul_f32 v%d, v%d, v%d' % (32 + 16 * ct + 4 * rt + r, 236 + rt, 32 + 16 * ct + 4 * rt + r))
    for c in range(4):
        for part in range(2):
            D4 = (208, 216, 240, 248)[c]
            e('v_mfma_f32_16x16x32_bf16 %s, %s, %s, 0' % (v(D4 + 4 * part, 4), v(192 + 4 * c, 4), v(160 + 8 * rt + 4 * part, 4)))
    for c in range(4):
        D4 = (208, 216, 240, 248)[c]
        for r in range(4): e('v_cvt_pk_bf16_f32 v%d, v%d, v%d' % (D4 + r, D4 + r, D4 + 4 + r))
        for ct in range(4):
            d = v(32 + 16 * ct + 4 * rt, 4)
            e('v_mfma_f32_16x16x32_bf16 %s, %s, %s, %s' % (d, v(96 + 16 * c + 4 * ct, 4), v(D4, 4), d))
stamp()
a.wait_lg()
a.barrier()
e('v_xor_b32 v2, v26, v25')
e('v_lshlrev_b32 v2, 4, v2')
e('v_and_b32 v3, 15, v1')
e('v_lshl_add_u32 v2, v3, 8, v2')
e('s_lshl_b32 s77, %s, 14' % sW)
e('v_add_u32 v2, s77, v2')
for ct in range(1, 4): e('v_xor_b32 v%d, %d, v2' % (2 + ct, 64 * ct))
for rt in range(4):
    for ct in range(4): e('ds_write_b128 v%d, %s offset:%d' % (2 + ct, v(32 + 16 * ct + 4 * rt, 4), 4096 * rt))
e('v_lshlrev_b32 v6, 1, v25')
e('v_xor_b32 v6, v6, v24')
e('v_lshlrev_b32 v6, 4, v6')
e('v_lshl_add_u32 v6, v24, 8, v6')
e('v_add_u32 v6, s50, v6')
e('v_xor_b32 v7, 16, v6')
e('s_lshl_b32 s77, %s, 8' % sHALF); e('s_lshl_b32 s78, %s, 6' % sW); e('s_add_u32 s77, s77, s78'); e('s_add_u32 s77, s77, %d' % GL)
e('v_lshl_add_u32 v8, v24, 2, s77')
e('ds_read_b32 v10, v8')
e('ds_read_b32 v11, v8 offset:32')
for k in range(4):
    e('v_lshlrev_b32 v%d, 16, v%d' % (224 + 2 * k, 232 + k))
    e('v_and_b32 v%d, 0xffff0000, v%d' % (225 + 2 * k, 232 + k))
e('s_mov_b32 s77, %d' % (128 * 896))
e('v_lshlrev_b32 v9, 4, v25')
e('v_mad_u32_u24 v9, v24, s77, v9')
e('s_and_b32 s77, %s, 1' % sW); e('s_lshl_b32 s77, s77, 6'); e('s_lshr_b32 s78, %s, 1' % sW); e('s_add_u32 s77, s77, s78'); e('s_add_u32 s77, s77, s64')
e('s_mul_i32 s77, s77, 896'); e('s_lshl_b32 s78, %s, 7' % sNT); e('s_add_u32 s77, s77, s78'); e('s_add_u32 s78, s77, %d' % (1024 * 896))
e('v_sub_f32 v10, 1.0, v10')
e('v_sub_f32 v11, 1.0, v11')
a.wait_lg()
a.barrier()
for hr in range(2):
    for sw in range(4):
        for k in range(2):
            e('ds_read_b128 %s, v%d offset:%d' % (v(96 + 32 * hr + 8 * sw + 4 * k, 4), 6 + k, 16384 * sw + 2048 * hr))
for hr in range(2):
    B = 96 + 32 * hr
    for k in range(8): e('v_fmac_f32 v%d, v%d, v%d' % (B + k, 10 + hr, 224 + k))
    for k in range(8): e('v_add_f32 v%d, v%d, v%d' % (B + k, B + k, B + 8 + k))
    for k in range(8): e('v_add_f32 v%d, v%d, v%d' % (B + 16 + k, B + 16 + k, B + 24 + k))
    for k in range(8): e('v_add_f32 v%d, v%d, v%d' % (B + k, B + k, B + 16 + k))
    for k in range(4): e('v_cvt_pk_bf16_f32 v%d, v%d, v%d' % (B + k, B + 2 * k, B + 2 * k + 1))
    e('buffer_store_dwordx4 %s, v9, %s, %s offen' % (v(B, 4), SOUT, 's77' if hr == 0 else 's78'), tag='out')
e('s_or_b32 s77, s2, %s' % sW)
e('s_cmp_lg_u32 s77, 0')
e('s_cbranch_scc1 L_fin')
a.cond_begin()
e('v_mov_b32 v2, %s' % sEN)
e('s_mov_b64 exec, 1')
e('buffer_store_dword v2, off, %s, 0 sc1' % SWS)
e('s_mov_b64 exec, -1')
a.cond_end()
a.raw('L_fin:')
if DIAG:
    a.raw('    s_waitcnt vmcnt(0)')
    stamp()
    a.raw('    s_memrealtime s[98:99]\n    s_waitcnt lgkmcnt(0)\n    s_mov_b32 s95, s98')
    e('s_lshl_b32 s77, s2, 2'); e('s_add_u32 s77, s77, %s' % sW); e('s_lshl_b32 s77, s77, 6'); e('s_add_u32 s77, s77, %d' % DIAGB)
    e('s_mov_b64 exec, 1')
    for k in range(16):
        e('v_mov_b32 v2, s%d' % (80 + k))
        e('buffer_store_dword v2, off, %s, s77 offset:%d' % (SWS, 4 * k))
a.raw('L_end:')
a.raw('    s_endpgm')

hdr = open('cdna_kernels/%s.s.ref' % NAME).read().split('; Override')[0]
txt = hdr + '; @launch grid=(224,1,1) block=(256,1,1) lds=%d\n' % LDS_SIZE
txt += '.amdgcn_target "amdgcn-amd-amdhsa--gfx950"\n.text\n.globl %s_kernel\n.p2align 8\n.type %s_kernel,@function\n' % (NAME, NAME)
txt += a.text()
txt += '''.section .rodata,"a"
.p2align 6
.amdhsa_kernel %s_kernel
  .amdhsa_next_free_vgpr 512
  .amdhsa_next_free_sgpr 102
  .amdhsa_accum_offset 256
  .amdhsa_group_segment_fixed_size 0
  .amdhsa_kernarg_size 96
  .amdhsa_user_sgpr_count 2
  .amdhsa_user_sgpr_kernarg_segment_ptr 1
  .amdhsa_system_sgpr_workgroup_id_x 1
.end_amdhsa_kernel
''' % NAME
out = [x for x in sys.argv[1:] if not x.startswith('--')]
open(out[0] if out else 'cdna_kernels/%s.s' % NAME, 'w').write(txt)
print('instrs', sum(a.count.values()), 'nop states', a.nnop, 'stamps', nstamp[0], file=sys.stderr)
```

```python
import re, struct

def f2u(x):
    return struct.unpack('<I', struct.pack('<f', x))[0]
def fl(x):
    return '0x%08x' % f2u(x)

_REG = re.compile(r'^(-|abs\()?([vas])(?:(\d+)|\[(\d+):(\d+)\])\)?$')
TRANS = ('v_exp_f32', 'v_log_f32', 'v_rcp_f32', 'v_rsq_f32', 'v_sqrt_f32', 'v_sin_f32', 'v_cos_f32')

def regs_of(op):
    op = op.strip()
    if op in ('vcc',): return [('s', 'vcc')]
    if op in ('exec',): return [('s', 'exec')]
    if op == 'm0': return [('s', 'm0')]
    m = _REG.match(op)
    if not m: return []
    k = m.group(2)
    if m.group(3) is not None: return [(k, int(m.group(3)))]
    return [(k, i) for i in range(int(m.group(4)), int(m.group(5)) + 1)]

def split_ops(s):
    out, depth, cur = [], 0, ''
    for ch in s:
        if ch == '[': depth += 1
        if ch == ']': depth -= 1
        if ch == ',' and depth == 0:
            out.append(cur.strip()); cur = ''
        else: cur += ch
    if cur.strip(): out.append(cur.strip())
    mods = ''
    if out:
        parts = out[-1].split(None, 1)
        out[-1] = parts[0]
        if len(parts) > 1: mods = parts[1]
    return out, mods

class Asm:
    def __init__(self):
        self.out = []
        self.pos = 0
        self.vm = []
        self.lg = []
        self.vm_done = 0
        self.lg_done = 0
        self.pend = {}
        self.valu_w = {}
        self.mfma_w = {}
        self.mfma_c = {}
        self.st_r = {}
        self.m0_w = -100
        self.cond = None
        self.condn = 0
        self.nnop = 0
        self.count = {}
    def raw(self, t):
        self.out.append(t)
    def comment(self, t):
        self.out.append('    ; ' + t)
    def _emit(self, t, states=1):
        self.out.append('    ' + t); self.pos += states
    def nop(self, n):
        while n > 0:
            k = min(n, 16)
            self._emit('s_nop %d' % (k - 1), k); n -= k; self.nnop += k
    def _n_after(self, q, idx):
        return sum(1 for (c, t) in q[idx + 1:] if c is None or c == self.cond)
    def _wait(self, vm_idx=None, lg_idx=None):
        parts = []
        if vm_idx is not None and vm_idx >= self.vm_done:
            n = self._n_after(self.vm, vm_idx)
            if n <= 63: parts.append('vmcnt(%d)' % n)
            else: parts.append('vmcnt(63)')
            self.vm_done = vm_idx + 1
        if lg_idx is not None and lg_idx >= self.lg_done:
            n = min(self._n_after(self.lg, lg_idx), 15)
            parts.append('lgkmcnt(%d)' % n)
            self.lg_done = lg_idx + 1
        if parts: self._emit('s_waitcnt ' + ' '.join(parts))
    def wait_vm(self, tag):
        idx = [i for i, (c, t) in enumerate(self.vm) if t == tag]
        assert idx, tag
        self._wait(vm_idx=idx[-1])
    def wait_lg(self, tag=None):
        if tag is None:
            if self.lg: self._wait(lg_idx=len(self.lg) - 1)
            return
        idx = [i for i, (c, t) in enumerate(self.lg) if t == tag]
        assert idx, tag
        self._wait(lg_idx=idx[-1])
    def wait_vm_all(self):
        if self.vm: self._wait(vm_idx=len(self.vm) - 1)
    def barrier(self):
        self._emit('s_barrier')
    def cond_begin(self):
        assert self.cond is None
        self.condn += 1; self.cond = self.condn
        self._sv = (self.pos, self.vm_done, self.lg_done)
    def cond_end(self):
        p0, vd, ld = self._sv
        sh = self.pos - p0
        for dct in (self.valu_w, self.mfma_w, self.mfma_c):
            for k, v in dct.items():
                if v[0] < p0: dct[k] = (v[0] + sh,) + tuple(v[1:])
        for k, v in self.st_r.items():
            if v < p0: self.st_r[k] = v + sh
        if self.m0_w < p0: self.m0_w += sh
        self.vm_done, self.lg_done = vd, ld
        self.cond = None
    def run(self, items):
        for it in items:
            if it is None: continue
            if callable(it): it()
            elif isinstance(it, tuple): self.e(it[0], tag=it[1])
            else: self.e(it)
    def e(self, text, tag=None):
        text = text.strip()
        sp = text.split(None, 1)
        mn = sp[0]
        ops, mods = split_ops(sp[1]) if len(sp) > 1 else ([], '')
        self.count[mn] = self.count.get(mn, 0) + 1
        R = [regs_of(o) for o in ops]
        flat = lambda L: [r for x in L for r in x]
        kind = None; W = []; Rd = []
        if mn.startswith('v_mfma'):
            kind = 'mfma'; W = R[0]; Rd = flat(R[1:])
        elif mn.startswith('v_'):
            kind = 'valu'; W = R[0]; Rd = flat(R[1:])
            if mn.startswith(('v_fmac', 'v_dot2c')) or 'dpp' in mn: Rd = Rd + R[0]
            if mn.startswith(('v_permlane32_swap', 'v_swap', 'v_permlane16_swap')): W = R[0] + R[1]; Rd = W
            if mn.startswith(('v_add_co', 'v_addc_co')): W = R[0] + R[1]; Rd = flat(R[2:])
        elif mn.startswith('ds_read'):
            kind = 'ds'; W = R[0]; Rd = flat(R[1:])
        elif mn.startswith('ds_write'):
            kind = 'ds'; Rd = flat(R)
        elif mn.startswith(('buffer_load', 'global_load')):
            kind = 'vm'
            if ' lds' in (' ' + mods): Rd = flat(R) + [('s', 'm0')]
            else: W = R[0]; Rd = flat(R[1:])
        elif mn.startswith(('buffer_store', 'global_store', 'buffer_atomic')):
            kind = 'vm'; Rd = flat(R)
        elif mn.startswith('s_'):
            kind = 'salu'
            if mn.startswith(('s_cmp', 's_bitcmp', 's_cbranch', 's_branch', 's_waitcnt', 's_barrier', 's_nop', 's_sleep', 's_endpgm', 's_setprio')): Rd = flat(R)
            else: W = R[0]; Rd = flat(R[1:])
        else:
            raise ValueError(text)
        vmi = lgi = None
        for r in W + Rd:
            p = self.pend.get(r)
            if p:
                if p[0] == 'vm': vmi = p[1] if vmi is None else max(vmi, p[1])
                else: lgi = p[1] if lgi is None else max(lgi, p[1])
        self._wait(vmi, lgi)
        need = 0
        def req(ppos, n):
            nonlocal need
            need = max(need, n - (self.pos - ppos - 1))
        if kind == 'mfma':
            passes = 8 if '32x32x16' in mn else 4
            for r in Rd:
                if r in self.valu_w: req(self.valu_w[r][0], 3 if self.valu_w[r][1] == 'dot' else 2)
            for r in R[1] + R[2]:
                if r in self.mfma_w: req(self.mfma_w[r][0], self.mfma_w[r][1] + 4)
            for r in R[3]:
                if r in self.mfma_w:
                    pp, ps, rng = self.mfma_w[r]
                    if not (rng == (R[3][0], R[3][-1]) and ps == passes): req(pp, ps + 2)
            if R[3] != R[0]:
                for r in R[0]:
                    if r in self.mfma_w: req(self.mfma_w[r][0], self.mfma_w[r][1] + 2)
        else:
            for r in (W + Rd):
                if r in self.mfma_w and kind != 'salu': req(self.mfma_w[r][0], self.mfma_w[r][1] + 4)
            if kind == 'valu':
                for r in W:
                    if r in self.mfma_c: req(self.mfma_c[r][0], self.mfma_c[r][1] - 1)
                    if r in self.st_r: req(self.st_r[r], 2)
                isdot = mn.startswith('v_dot')
                for r in Rd + W:
                    if r in self.valu_w:
                        pp, k = self.valu_w[r]
                        if k == 'dot' and not isdot: req(pp, 3)
                for r in Rd:
                    if r in self.valu_w:
                        pp, k = self.valu_w[r]
                        if r[0] == 's': req(pp, 4 if 'lane' in mn else 2)
                        else:
                            if k == 'trans': req(pp, 1)
                            if 'dpp' in mn or mn.startswith('v_permlane'): req(pp, 2)
                            if mn.startswith(('v_readfirstlane', 'v_readlane')): req(pp, 1)
            elif kind in ('vm', 'ds'):
                for r in W:
                    if r in self.st_r: req(self.st_r[r], 1)
                for r in Rd:
                    if r[0] == 's' and r in self.valu_w: req(self.valu_w[r][0], 5)
                    if r == ('s', 'm0'): req(self.m0_w, 1)
                    if r in self.valu_w and self.valu_w[r][1] in ('trans', 'dot'): req(self.valu_w[r][0], 3)
            elif kind == 'salu':
                for r in Rd:
                    if r in self.valu_w: req(self.valu_w[r][0], 1)
        if need > 0: self.nop(need)
        p = self.pos
        self._emit(text)
        for r in W:
            self.pend.pop(r, None); self.valu_w.pop(r, None); self.mfma_w.pop(r, None)
        if kind == 'mfma':
            for r in W: self.mfma_w[r] = (p, passes, (W[0], W[-1]))
            for r in R[3]: self.mfma_c[r] = (p, passes)
        elif kind == 'valu':
            k = 'trans' if mn.startswith(TRANS) else ('dot' if mn.startswith('v_dot') else 'plain')
            for r in W: self.valu_w[r] = (p, k)
        elif kind == 'vm':
            self.vm.append((self.cond, tag))
            for r in W: self.pend[r] = ('vm', len(self.vm) - 1)
            if 'store' in mn and ('x4' in mn or 'x3' in mn):
                for r in R[0]: self.st_r[r] = p
        elif kind == 'ds':
            self.lg.append((self.cond, tag))
            for r in W: self.pend[r] = ('lg', len(self.lg) - 1)
        elif kind == 'salu':
            if ('s', 'm0') in W: self.m0_w = p
    def text(self):
        return '\n'.join(self.out) + '\n'

def cost(it):
    if it is None: return 0
    if callable(it): return 4
    t = it[0] if isinstance(it, tuple) else it
    mn = t.split()[0]
    if mn.startswith(TRANS): return 8
    if mn.startswith('s_'): return 4
    return 4

def interleave(main, fill, budget):
    out = []; fi = 0; credit = 0
    for m in main:
        out.append(m)
        credit += budget
        while fi < len(fill) and cost(fill[fi]) <= credit:
            credit -= cost(fill[fi]); out.append(fill[fi]); fi += 1
    out += fill[fi:]
    return out

def weave(main, *streams):
    main = [x for x in main if x is not None] or ['s_nop 0']
    m = len(main)
    slots = [[] for _ in range(m)]
    for s in streams:
        lo, hi = 0, m
        if isinstance(s, tuple): s, lo, hi = s
        s = [x for x in s if x is not None]
        tot = sum(cost(x) for x in s)
        acc = 0
        for it in s:
            k = lo + (acc * (hi - lo)) // max(tot, 1)
            slots[min(k, m - 1)].append(it); acc += cost(it)
    out = []
    for i in range(m):
        out.append(main[i]); out += slots[i]
    return out
```

```python
import sys
from asmlib import *

NAME = 'gated_mix__spectral_gfnet__dense_activation_gelu__prompt'
DIAG = '--diag' in sys.argv
def opt(name, default):
    for x in sys.argv:
        if x.startswith('--%s=' % name): return int(x.split('=')[1])
    return default
FL1, FL3, FL2 = 0x1000, 0x10000, 0x80000
GB = 0x8000
SPB = 0x40000
TVB = 0x50000

TB = 0x100000
RB = TB + 1835008
HB = RB + 1835008
PXB = HB + 7340032
DIAGB = PXB + 16 * 16 * 16384
WS_SIZE = DIAGB + (256 * 2048 if DIAG else 0)
W1H1 = 57344
CB = 122880
RED = 90112
YX = 114688
TT = 151552
TV = 159744
GW = 160256
B1L = 161280
GL = 161792
SYM = 162304; SYF = 162320; SYM2 = 162336; SYX = 162352
LDS_SIZE = 163840
SX, SW1, SW2, SWS, SWR, SWI, SOUT, SGW, SB1, SB2 = ['s[%d:%d]' % (i, i + 3) for i in range(4, 44, 4)]
sMB, sNB, sHALF, sNT, sW, sT1, sT2, sEN, sSQ = 's44', 's45', 's46', 's47', 's72', 's73', 's74', 's75', 's76'
sROT = 's3'
SPIN = 20000
NWG = 256 if opt('aux', 1) else 224
DP = 'row_mask:0xf bank_mask:0xf'
def v(i, n=1): return 'v%d' % i if n == 1 else 'v[%d:%d]' % (i, i + n - 1)
def ag(i, n=1): return 'a%d' % i if n == 1 else 'a[%d:%d]' % (i, i + n - 1)
lab = [0]

class Role(Asm):
    def __init__(self):
        super().__init__(); self.ns = 1; self.names = ['start']
    def stamp(self, name=''):
        if not DIAG: return
        assert self.ns < 60
        self.raw('    s_memtime s[98:99]\n    s_waitcnt lgkmcnt(0)\n    v_writelane_b32 v0, s98, %d' % self.ns); self.pos += 3
        self.names.append(name); self.ns += 1
    def S(self, name=''): return lambda: self.stamp(name)
    def W(self, tag): return lambda: self.wait_vm(tag)
    def L(self, tag=None): return lambda: self.wait_lg(tag)
    def U(self, items): return lambda: self.run(items)
    def flag(self, vtag, soff):
        if opt('nopoll', 0) >= 2: return None
        if opt('onlyfl2', 0) and soff != 's61': return None
        if opt('fullfl', 0) and soff == 's61':
            return self.U(['s_mov_b64 exec, 0x%x' % ((1 << opt('fullfl', 0)) - 1), ('buffer_store_dword %s, v5, %s, %s offen sc1' % (vtag, SWS, soff), 'flag'), 's_mov_b64 exec, -1'])
        return self.U(['s_mov_b64 exec, 1', ('buffer_store_dword %s, off, %s, %s sc1' % (vtag, SWS, soff), 'flag'), 's_mov_b64 exec, -1'])
    def spin(self, loads, waitc, tests, sleep):
        n = lab[0]; lab[0] += 1
        def f():
            for t in tests: self.e(t)
            self.nop(1)
            self.e('s_cmp_eq_u64 vcc, 0'); self.e('s_cbranch_scc1 L_pd%d' % n)
            t = ['    s_mov_b32 s96, %d' % SPIN, 'L_pl%d:' % n] + (['    s_sleep %d' % sleep] if sleep else [])
            t += ['    ' + l for l in loads] + ['    s_waitcnt ' + waitc] + ['    ' + x for x in tests]
            t += ['    s_sub_u32 s96, s96, 1', '    s_cmp_eq_u32 s96, 0', '    s_cbranch_scc1 L_pd%d' % n,
                  '    s_cmp_eq_u64 vcc, 0', '    s_cbranch_scc0 L_pl%d' % n, 'L_pd%d:' % n]
            self.raw('\n'.join(t))
        return f
    def poll(self, loads, regs, stag, lim):
        if opt('nopoll', 0): return None
        tests = ['v_subrev_u32 %s, %s, %s' % (r, stag, r) for r in regs] + ['v_max_u32 %s, %s, %s' % (regs[0], regs[0], r) for r in regs[1:]]
        tests += ['v_cmp_le_u32 vcc, %d, %s' % (lim, regs[0])]
        return self.spin(loads, 'vmcnt(0)', tests, opt('gsleep', 10))
    def signal(self, base, k):
        return self.U(['v_mov_b32 v28, %d' % k, 'ds_write_b32 v26, v28 offset:%d' % (base - SYM)])
    def sread(self, base): return 'ds_read_b128 v[28:31], v27 offset:%d' % (base - SYM)
    def scheck(self, base, k):
        tests = ['v_min_u32 v28, v28, v29', 'v_min3_u32 v28, v28, v30, v31', 'v_cmp_gt_u32 vcc, %d, v28' % k]
        return self.spin([self.sread(base)], 'lgkmcnt(0)', tests, opt('lsleep', 1))
    def sread1(self, base): return 'ds_read_b32 v28, v26 offset:%d' % (base - SYM)
    def scheck1(self, base, k):
        return self.spin([self.sread1(base)], 'lgkmcnt(0)', ['v_cmp_gt_u32 vcc, %d, v28' % k], opt('lsleep', 1))
    def chtab(self, regs, shift):
        e = self.e
        e('s_mov_b32 s77, %s' % sROT)
        for p in range(7):
            e('s_lshl_b32 %s, s77, %d' % (regs[p], shift))
            if p < 6: e('s_add_u32 s77, s77, 1'); e('s_cmp_eq_u32 s77, 7'); e('s_cselect_b32 s77, 0, s77')
    def srd(self, d, lo, n):
        e = self.e
        e('s_mov_b32 s%d, s%d' % (d, lo)); e('s_mov_b32 s%d, s%d' % (d + 1, lo + 1))
        e('s_mov_b32 s%d, %d' % (d + 2, n)); e('s_mov_b32 s%d, 0x20000' % (d + 3))
    def tags(self):
        e = self.e
        e('v_readfirstlane_b32 s77, v24')
        e('s_add_u32 %s, s77, 1' % sEN); e('s_mul_i32 s77, s77, 0x9E3779B1')
        e('s_add_u32 %s, s77, 0x7F4A7C15' % sT1); e('s_add_u32 %s, %s, 1' % (sT2, sT1))
        e('v_mov_b32 v24, %s' % sT1)
    def xread_addrs(self, b):
        e = self.e
        e('v_bfe_u32 v%d, v1, 1, 3' % b); e('v_xor_b32 v%d, v%d, v5' % (b, b)); e('v_lshlrev_b32 v%d, 4, v%d' % (b, b))
        e('v_lshl_add_u32 v%d, v6, 7, v%d' % (b, b)); e('v_add_u32 v%d, s50, v%d' % (b, b))
        for tt in range(1, 4): e('v_xor_b32 v%d, %d, v%d' % (b + tt, 32 * tt, b))
    def ifnb0(self, label):
        self.e('s_cmp_lg_u32 %s, 0' % sNB); self.e('s_cbranch_scc1 %s' % label); self.cond_begin()
    def endc(self, label):
        self.cond_end(); self.raw(label + ':')
    def finish(self, role):
        if DIAG:
            e = self.e
            self.raw('    s_waitcnt vmcnt(0)')
            self.stamp('end')
            self.raw('    s_memrealtime s[98:99]\n    s_waitcnt lgkmcnt(0)\n    v_writelane_b32 v0, s98, 63\n    v_writelane_b32 v0, s94, 62\n    v_writelane_b32 v0, s80, 0')
            e('s_lshl_b32 s77, s2, 3'); e('s_add_u32 s77, s77, %s' % sW); e('s_lshl_b32 s77, s77, 8'); e('s_add_u32 s77, s77, %d' % (DIAGB + 1024 * role))
            e('v_lshlrev_b32 v2, 2, v1')
            e('buffer_store_dword v0, v2, %s, s77 offen' % SWS)
        self.raw('    s_endpgm')

c = Role(); e = c.e
c.raw('%s_kernel:' % NAME)
e('s_cmp_ge_u32 s2, %d' % NWG)
e('s_cbranch_scc1 L_end')
if DIAG: c.raw('    s_memrealtime s[98:99]\n    s_waitcnt lgkmcnt(0)\n    s_mov_b32 s94, s98\n    s_memtime s[98:99]\n    s_waitcnt lgkmcnt(0)\n    s_mov_b32 s80, s98')
c.raw('    s_load_dwordx16 s[48:63], s[0:1], 0\n    s_load_dwordx8 s[64:71], s[0:1], 64')
e('v_lshrrev_b32 v2, 6, v0')
e('v_and_b32 v1, 63, v0')
e('v_readfirstlane_b32 s79, v2')
e('s_cmp_ge_u32 s2, 224')
e('s_cbranch_scc1 L_aux')
e('s_getpc_b64 s[96:97]')
c.raw('L_pc:')
e('v_lshlrev_b32 v2, 7, v0')
e('v_min_u32 v2, L_end-L_pc, v2')
e('v_mov_b32 v3, s97')
e('v_add_co_u32 v2, vcc, s96, v2')
e('v_addc_co_u32 v3, vcc, 0, v3, vcc')
c.raw('    global_load_dword v143, v[2:3], off')
e('s_and_b32 s77, s2, 7'); e('s_lshr_b32 s78, s2, 3')
e('s_and_b32 %s, s77, 1' % sHALF); e('s_lshr_b32 s77, s77, 1'); e('s_lshl_b32 s77, s77, 2')
e('s_and_b32 %s, s78, 3' % sMB); e('s_add_u32 %s, %s, s77' % (sMB, sMB))
e('s_lshr_b32 %s, s78, 2' % sNT); e('s_mul_i32 %s, %s, 7' % (sNB, sHALF)); e('s_add_u32 %s, %s, %s' % (sNB, sNB, sNT))
e('s_and_b32 %s, s79, 3' % sW)
e('s_and_b32 s77, s78, 3'); e('s_lshl_b32 s77, s77, 1'); e('s_add_u32 s77, s77, %s' % sNT); e('s_sub_u32 s78, s77, 7'); e('s_cmp_ge_u32 s77, 7'); e('s_cselect_b32 %s, s78, s77' % sROT)
if not opt('rot', 1): e('s_mov_b32 %s, 0' % sROT)
e('s_lshl_b32 %s, %s, 2' % (sSQ, sMB)); e('s_add_u32 %s, %s, %s' % (sSQ, sSQ, sW))
e('v_lshrrev_b32 v2, 3, v1'); e('v_and_b32 v3, 7, v1'); e('v_lshrrev_b32 v4, 4, v1'); e('v_lshrrev_b32 v5, 5, v1')
e('v_and_b32 v6, 31, v1'); e('v_lshlrev_b32 v7, 4, v1'); e('v_and_b32 v8, 15, v1')
e('v_mov_b32 v27, %d' % SYM); e('s_lshl_b32 s78, %s, 2' % sW); e('v_add_u32 v26, s78, v27')
e('s_cmp_lt_u32 s79, 4') if opt('fftfirst', 1) else e('s_cmp_ge_u32 s79, 4')
e('s_cbranch_scc1 L_fft')

F1ADDR = ['s_lshl_b32 s77, %s, 12' % sW, 's_cmp_ge_u32 %s, 2' % sW, 's_mov_b32 s78, %d' % TT, 's_cselect_b32 s78, %d, s78' % (YX - 8192), 's_add_u32 s77, s77, s78', 'v_add_u32 v35, s77, v7']
m = Role(); e = m.e
e('s_setprio %d' % opt('mprio', 1))
e('v_xor_b32 v17, v3, v4'); e('v_lshlrev_b32 v17, 4, v17'); e('s_mov_b32 s77, %d' % (128 * 896)); e('v_mad_u32_u24 v9, v2, s77, v17')
e('v_xor_b32 v10, 64, v9'); e('v_add_u32 v10, %d, v10' % (1024 * 896 - 1024))
e('v_add_u32 v11, %d, v9' % (64 * 896 - 2048)); e('v_add_u32 v12, %d, v10' % (64 * 896 - 2048))
XCH = ['s%d' % (20 + p) for p in range(7)]
e('s_mul_i32 s100, %s, 896' % sSQ)
for u in range(4): e('v_add_u32 v%d, s100, v%d' % (9 + u, 9 + u))
m.chtab(XCH, 7)
e('s_lshl_b32 s101, %s, 12' % sW)
m.raw('    s_waitcnt lgkmcnt(0)')
m.srd(32, 48, 1835008)
def dma_x(p):
    return ['s_add_u32 m0, s101, %d' % (p * 16384)] + [('buffer_load_dwordx4 v%d, s[32:35], %s offen offset:%d lds' % (9 + u, XCH[p], 1024 * u), 'x%d' % p) for u in range(4)]
for p in range(4): m.run(dma_x(p))
m.stamp('xiss')
m.srd(16, 70, WS_SIZE); m.srd(36, 58, 3584)
m.srd(8, 56, 1605632); m.srd(12, 60, 1605632); m.srd(28, 66, 1835008)
e('s_lshl_b32 s50, %s, 12' % sW); e('s_lshl_b32 s51, %s, 11' % sW)
e('v_and_b32 v17, 1, v4'); e('v_lshlrev_b32 v17, 2, v17'); e('v_xor_b32 v17, v3, v17'); e('v_lshlrev_b32 v17, 4, v17')
e('s_movk_i32 s77, 3584'); e('v_mad_u32_u24 v13, v2, s77, v17'); e('s_lshl_b32 s78, %s, 8' % sNB); e('v_add_u32 v13, s78, v13')
for u in range(1, 4): e('v_add_u32 v%d, %d, v13' % (13 + u, u * 27648))
m.xread_addrs(17)
m.barrier()
m.stamp('bar0')
def dma_w1(p):
    r = ['s_add_u32 s77, %s, %d' % (sW, 4 * p), 's_sub_u32 s78, s77, 14', 's_cmp_ge_u32 s77, 14', 's_cselect_b32 s77, s78, s77', 's_cselect_b32 s79, 128, 0',
         's_lshl_b32 s78, %s, 1' % sROT, 's_add_u32 s77, s77, s78', 's_sub_u32 s78, s77, 14', 's_cmp_ge_u32 s77, 14', 's_cselect_b32 s77, s78, s77',
         's_mul_i32 s77, s77, %d' % (32 * 3584), 's_add_u32 s60, s77, s79', 's_add_u32 m0, s50, %d' % (p * 16384)]
    return r, [('buffer_load_dwordx4 v%d, %s, s60 offen offset:%d lds' % (13 + u, SW1, 1024 * u), 'w1_%d' % p) for u in range(4)]
CH = ['s4', 's5', 's6', 's7', 's40', 's41', 's42']
CW = XCH
setup0 = ['s_lshl_b32 %s, %s, 6' % (CH[k], XCH[k]) for k in range(7)] + ['s_mul_i32 %s, %s, 896' % (CW[k], XCH[k]) for k in range(7)]
setup = []
setup += ['v_bfe_u32 v21, v1, 2, 2', 'v_lshl_add_u32 v21, v5, 3, v21', 'v_lshlrev_b32 v21, 7, v21', 'v_bfe_u32 v22, v1, 3, 1', 'v_lshl_add_u32 v21, v22, 6, v21',
          'v_bfe_u32 v22, v1, 4, 1', 'v_lshl_add_u32 v21, v22, 5, v21', 'v_and_b32 v22, 3, v1', 'v_lshl_add_u32 v21, v22, 3, v21', 'v_xor_b32 v22, 64, v21',
          'v_lshlrev_b32 v128, 16, v25', 'v_and_b32 v129, 0xffff0000, v25', 'v_lshlrev_b32 v130, 3, v1', 'v_add_u32 v130, %d, v130' % B1L, 'ds_write_b64 v130, v[128:129]',
          'v_lshlrev_b32 v130, 4, v5', 'v_add_u32 v130, %d, v130' % B1L]
for j in range(4):
    for q in range(4): setup.append('ds_read_b128 %s, v130 offset:%d' % (v(32 + 16 * j + 4 * q, 4), (32 * j + 8 * q) * 4))
setup.append(m.tags)
setup2 = setup0 + ['s_mul_i32 s53, %s, 896' % sHALF, 's_lshl_b32 s78, %s, 4' % sW, 's_add_u32 s53, s53, s78', 's_mul_i32 s53, s53, 896', 's_lshl_b32 s78, %s, 7' % sNT, 's_add_u32 s53, s53, s78',
          'v_lshlrev_b32 v9, 1, v4', 'v_xor_b32 v9, v3, v9', 'v_lshl_add_u32 v9, v9, 4, s53', 's_movk_i32 s78, 896', 'v_mad_u32_u24 v9, v2, s78, v9', 'v_add_u32 v10, 6144, v9',
          'v_add_u32 v11, %d, v9' % (64 * 896), 'v_add_u32 v12, %d, v10' % (64 * 896),
          'v_mov_b32 v23, %s' % fl(-0.1029432397),
          's_mul_i32 s58, %s, 56' % sSQ, 's_lshl_b32 s78, %s, 2' % sNB, 's_add_u32 s58, s58, s78', 's_lshl_b32 s58, s58, 11', 's_add_u32 s58, s58, %d' % HB, 's_add_u32 s59, s58, 4096',
          's_lshl_b32 s61, %s, 4' % sSQ, 's_add_u32 s61, s61, %s' % sNB, 's_lshl_b32 s61, s61, 7', 's_add_u32 s61, s61, %d' % FL2,
          's_lshl_b32 s62, %s, 4' % sMB, 's_add_u32 s62, s62, %s' % sNB, 's_lshl_b32 s62, s62, 2', 's_add_u32 s62, s62, %s' % sW,
          's_lshl_b32 s63, s62, 12', 's_add_u32 s63, s63, %d' % PXB,
          's_lshr_b32 s78, %s, 1' % sW, 's_lshl_b32 s79, %s, 2' % sMB, 's_add_u32 s78, s78, s79', 's_lshl_b32 s79, %s, 1' % sHALF, 's_add_u32 s55, s78, s79', 's_xor_b32 s54, s55, 2',
          's_lshl_b32 s65, s78, 4', 's_mul_i32 s79, %s, 7' % sHALF, 's_add_u32 s65, s65, s79', 's_lshl_b32 s65, s65, 7', 's_add_u32 s65, s65, %d' % FL2,
          's_mov_b32 s64, s55', 's_mul_i32 s79, %s, 28' % sHALF, 's_and_b32 s78, %s, 1' % sW, 's_lshl_b32 s78, s78, 8', 's_add_u32 s78, s78, %d' % HB]
for r in (54, 55): setup2 += ['s_mul_i32 s%d, s%d, 56' % (r, r), 's_add_u32 s%d, s%d, s79' % (r, r), 's_lshl_b32 s%d, s%d, 11' % (r, r), 's_add_u32 s%d, s%d, s78' % (r, r)]
setup3 = ['v_lshlrev_b32 v13, 4, v8', 'v_lshl_add_u32 v13, v4, 9, v13', 'v_add_u32 v15, s55, v13', 'v_add_u32 v13, s54, v13', 'v_add_u32 v14, 4096, v13', 'v_add_u32 v16, 4096, v15',
          'v_bfe_u32 v17, v1, 2, 2', 'v_lshl_add_u32 v17, v5, 4, v17', 'v_bfe_u32 v18, v1, 4, 1', 'v_lshl_add_u32 v17, v18, 2, v17', 'v_lshlrev_b32 v17, 7, v17',
          'v_bfe_u32 v18, v1, 3, 2', 'v_lshl_add_u32 v17, v18, 5, v17', 'v_and_b32 v18, 3, v1', 'v_lshl_add_u32 v17, v18, 3, v17', 'v_add_u32 v17, %d, v17' % CB]
setup3 += ['v_xor_b32 v%d, %d, v17' % (17 + ct, 32 * ct) for ct in range(1, 4)]
setup3 += ['v_lshlrev_b32 v5, 2, v1', 'v_min_u32 v25, 6, v3', 'v_and_b32 v6, 1, v2', 'v_lshl_add_u32 v25, v6, 5, v25', 'v_lshlrev_b32 v25, 7, v25']
for k in range(1, 4): setup3.append('s_add_u32 s%d, s65, %d' % (67 + k, 0x20000 * k))
LAG = opt('lag', 3)
ns = -(-len(setup) // 4)
for it in range(7 + LAG):
    if it <= 6:
        m.run([m.W('x%d' % it), m.signal(SYX, it + 1)])
        if it == 4:
            for tt in range(4): e('v_add_u32 v%d, 65536, v%d' % (17 + tt, 17 + tt))
        for tt in range(4): e('ds_read_b128 %s, v%d offset:%d' % (ag(16 * it + 4 * tt, 4), 17 + tt, (it % 4) * 16384), tag='xr%d' % it)
    if it >= LAG: e(m.sread1(SYF))
    if it <= 2: m.run(dma_x(it + 4))
    if it == 2:
        e('v_lshlrev_b32 v12, 2, v1'); e('s_lshl_b32 s78, %s, 8' % sNB)
        e('buffer_load_dword v24, off, %s, 0 sc1' % SWS); e('buffer_load_dword v25, v12, %s, s78 offen' % SB1)
    if it >= LAG:
        rr = it - LAG; pre, L = dma_w1(rr)
        m.run(pre + [m.scheck1(SYF, rr + 1), m.L('xr%d' % rr)] + L)
    if it >= 3 + LAG: m.run(setup[ns * (it - 3 - LAG):ns * (it - 2 - LAG)])
    if it in (0, 3, 6): m.stamp('X%d' % it)
m.stamp('Xend')
K0 = fl(-2.302208198)
PK = opt('pk', 0)
def gelu(j, tb, pk=0):
    r = []; A = 32 + 16 * j
    for h in range(2):
        for q in range(2):
            X = [A + 8 * h + 4 * q + i for i in range(4)]; T = [tb + 4 * q + i for i in range(4)]
            if pk:
                P = [(v(T[0], 2), v(X[0], 2)), (v(T[2], 2), v(X[2], 2))]
                r += ['v_pk_mul_f32 %s, %s, %s' % (t, x, x) for t, x in P]
                r += ['v_pk_fma_f32 %s, %s, s[66:67], s[66:67] op_sel:[0,0,1] op_sel_hi:[1,0,1]' % (t, t) for t, x in P]
                r += ['v_pk_mul_f32 %s, %s, %s' % (t, t, x) for t, x in P]
                r += ['v_exp_f32 v%d, v%d' % (t, t) for t in T]
                r += ['v_pk_add_f32 %s, %s, 1.0 op_sel_hi:[1,0]' % (t, t) for t, x in P]
                r += ['v_rcp_f32 v%d, v%d' % (t, t) for t in T]
                r += ['v_pk_mul_f32 %s, %s, %s' % (x, t, x) for t, x in P]
            else:
                r += ['v_mul_f32 v%d, v%d, v%d' % (t, x, x) for t, x in zip(T, X)]
                r += ['v_fmaak_f32 v%d, v%d, v23, %s' % (t, t, K0) for t in T]
                r += ['v_mul_f32 v%d, v%d, v%d' % (t, t, x) for t, x in zip(T, X)]
                r += ['v_exp_f32 v%d, v%d' % (t, t) for t in T]
                r += ['v_add_f32 v%d, 1.0, v%d' % (t, t) for t in T]
                r += ['v_rcp_f32 v%d, v%d' % (t, t) for t in T]
                r += ['v_mul_f32 v%d, v%d, v%d' % (x, t, x) for t, x in zip(T, X)]
            r += ['v_cvt_pk_bf16_f32 v%d, v%d, v%d' % (A + 8 * h + 2 * q + i, X[2 * i], X[2 * i + 1]) for i in range(2)]
        r.append(('buffer_store_dwordx4 %s, v7, %s, %s offen offset:%d%s' % (v(A + 8 * h, 4), SWS, 's58' if j < 2 else 's59', (j & 1) * 2048 + h * 1024, '' if opt('hsp', 0) else ' sc1'), 'h%d' % j))
    return r
setup3 += ['s_mov_b32 s66, %s' % fl(-0.1029432397), 's_mov_b32 s67, %s' % K0]
def w2_lds(mm, late):
    k = mm + 7 * late
    if k < 3: return CB + 8192 * k
    return 8192 * (k - 3)
def dma_w2(mm, late):
    tag = 'w2a' if mm + 7 * late < 10 else 'w2b'
    L = [('buffer_load_dwordx4 v%d, %s, %s offen offset:%d lds' % (9 + 2 * late + u, SW2, CW[mm], 1024 * u), tag) for u in range(2)]
    return [m.U(['s_add_u32 m0, s51, %d' % w2_lds(mm, late), L[0]]), L[1]]
def trG(i):
    r = []
    if i == 28: r += ['v_add_u32 v21, %d, v21' % W1H1, 'v_add_u32 v22, %d, v22' % W1H1]
    return r + ['ds_read_b64_tr_b16 %s, v%d offset:%d' % (v(96 + 8 * (i % 4) + 4 * j + 2 * aa, 2), 21 + j, 2048 * (i % 28) + 512 * aa) for j in range(2) for aa in range(2)]
def g1(i, j):
    d = v(32 + 16 * (2 * (i // 28) + j), 16)
    return 'v_mfma_f32_32x32x16_bf16 %s, %s, %s, %s' % (d, v(96 + 8 * (i % 4) + 4 * j, 4), ag(4 * (i % 28), 4), d)
def hflag(j): return [m.W('h%d' % j), m.flag('v24', 's61'), 's_add_u32 s61, s61, 0x20000']
m.run([m.W('w1_0'), m.signal(SYM, 1), m.sread(SYM), m.scheck(SYM, 1)])
m.run(trG(0) + trG(1))
SYNC = {8: 2, 24: 4, 40: 6}
def g1_items(lo, hi):
    main = []
    for i in range(lo, hi):
        rd = trG(i + 2) if i + 2 < 56 else [None] * 4
        pre = []
        if i + 5 in SYNC: pre = [m.W('w1_%d' % SYNC[i + 5]), m.signal(SYM, SYNC[i + 5])]
        if i + 4 in SYNC: pre = [m.sread(SYM)]
        if i + 2 in SYNC: pre = [m.scheck(SYM, SYNC[i + 2])]
        if i == 9: pre = [m.sread(SYF)]
        if i == 11: pre = [m.scheck(SYF, 7)]
        if i == 29: pre = [m.signal(SYM2, 1)]
        if i == 30: pre = [m.sread(SYM2)]
        if i == 32: pre = [m.scheck(SYM2, 1)]
        if i == opt('hf0', 50): pre = hflag(0)
        if i in (1, 8, 14, 18, 24, 34, 40, 46): pre = pre + [m.S('g1_%d' % i)]
        main.append(m.U(pre + [g1(i, 0)] + rd[:-2])); main.append(m.U([g1(i, 1)] + rd[-2:]))
    return main
w2c = dma_w2(0, 0) + dma_w2(1, 0) + dma_w2(2, 0)
m.run(weave(g1_items(0, 28), (setup2, 0, 22), (w2c, 24, 40), (setup3, 24, 56)))
m.stamp('G1a')
w2a = []
for k in range(3, 10): w2a += dma_w2(k % 7, k // 7)
GE = opt('ge', 48)
m.run(weave(g1_items(28, 56), (gelu(0, 128, PK > 1) + gelu(1, 136, PK > 1), 0, GE), (w2a, 10, 56)))
m.stamp('G1b')
m.run([m.signal(SYM2, 2), m.sread(SYM2)])
def p2(j): return 'buffer_load_dword v6, v25, %s, %s offen sc1' % (SWS, ['s65', 's68', 's69', 's70'][j])
def hcheck(j): return m.poll([p2(j)], ['v6'], sT1, 1)
g2 = gelu(2, 128, PK); n2 = len(g2)
w2b = []
for mm in range(3, 7): w2b += dma_w2(mm, 1)
m.run(g2[:n2 // 5] + [m.scheck(SYM2, 2)] + weave(g2[n2 // 5:n2 * 3 // 4], w2b) + hflag(1) + g2[n2 * 3 // 4:])
m.stamp('gelu2')
g3 = gelu(3, 136, PK); k3 = len(g3) * opt('p0at', 20) // 100
m.run(g3[:k3] + [p2(0)] + g3[k3:])
m.stamp('gelu3')
MERGE = opt('merge', 1)
steps = [(mm, j, (0, 1)) for j in range(MERGE) for mm in range(7)] + [(mm, j, (0,)) for j in range(MERGE, 4) for mm in range(7)] + \
        [(mm, j, (1,)) for j in range(MERGE, 4) for mm in range(7)]
loads = [(i, p) for i, st in enumerate(steps) for p in st[2]]
lidx = {x: k for k, x in enumerate(loads)}
NH = 28; NS = len(steps)
def h_load(k):
    i, p = loads[k]; mm, j, _ = steps[i]
    return 'buffer_load_dwordx4 %s, v%d, %s, %s offen offset:%d%s' % (ag(4 * (k % NH), 4), 13 + 2 * p + (j >> 1), SWS, CH[mm], 2048 * (j & 1), '' if opt('hlp', 0) else ' sc1')
def trD(i):
    mm, j, _ = steps[i]
    ad = w2_lds(mm, j >> 1) + 4096 * (j & 1)
    base, ar = (CB, 17) if ad >= CB else ((0, 64) if ad < W1H1 else (W1H1, 68))
    return ['ds_read_b64_tr_b16 %s, v%d offset:%d' % (v(96 + 16 * (i % 3) + 4 * ct + 2 * aa, 2), ar + ct, ad - base + 1024 * aa) for ct in range(4) for aa in range(2)]
started = set()
def mfD(i):
    r = []
    for p in steps[i][2]:
        for ct in range(4):
            d = v(32 + 16 * p + 4 * ct, 4)
            r.append('v_mfma_f32_16x16x32_bf16 %s, %s, %s, %s' % (d, v(96 + 16 * (i % 3) + 4 * ct, 4), ag(4 * (lidx[(i, p)] % NH), 4), d if p in started else '0'))
        started.add(p)
    return r
first_lvl = {j: min(k for k, (i, p) in enumerate(loads) if steps[i][1] == j) for j in range(4)}
m.run([hcheck(0), m.S('chk0'), m.W('h2'), m.S('Wh2')] + hflag(2)[1:])
issued = 0
PLEAD = opt('plead', 5)
def issue_upto(n, fill):
    global issued
    while issued < min(n, len(loads)):
        for j in range(1, 4):
            if first_lvl[j] == issued: fill.append(hcheck(j))
            if first_lvl[j] - (PLEAD if j > 1 else 1) == issued: fill.append(p2(j))
        fill.append(h_load(issued)); issued += 1
fl0 = []; issue_upto(first_lvl[1], fl0); m.run(fl0)
for ct in range(4): e('v_subrev_u32 v%d, %d, v%d' % (64 + ct, CB, 17 + ct)); e('v_subrev_u32 v%d, %d, v%d' % (68 + ct, CB - W1H1, 17 + ct))
m.run([m.S('L0iss'), m.W('w2b'), m.signal(SYM2, 3), m.sread(SYM2)] + hflag(3)[:2] + [m.S('hf3'), m.scheck(SYM2, 3)])
m.run(trD(0) + trD(1))
m.stamp('hiss')
last_p0 = max(i for i, st in enumerate(steps) if 0 in st[2])
LEAD = opt('lead', 12)
for i in range(NS):
    fill = []
    issue_upto(lidx[(i, steps[i][2][-1])] + 1 + LEAD, fill)
    if i == last_p0 + 1:
        PXR = [72, 73, 74, 76, 77, 78, 80, 81]
        fill += ['v_mov_b32 v%d, %s' % (r, sT1) for r in (75, 79, 83)]
        fill += ['v_cvt_pk_bf16_f32 v%d, v%d, v%d' % (PXR[k], 32 + 2 * k, 33 + 2 * k) for k in range(8)]
        fill += ['buffer_store_dwordx4 %s, v7, %s, s63 offen offset:%d sc1' % (v(72 + 4 * k, 4), SWS, 1024 * k) for k in range(3)]
    if i == NS - 6:
        fill += ['s_mov_b32 s78, %d' % (128 * 896), 'v_and_b32 v14, 1, v4', 'v_lshlrev_b32 v14, 5, v14', 'v_lshrrev_b32 v15, 1, v4', 'v_lshl_add_u32 v14, v15, 4, v14',
                 'v_mad_u32_u24 v14, v8, s78, v14',
                 's_and_b32 s66, %s, 1' % sW, 's_lshl_b32 s66, s66, 6', 's_add_u32 s66, s66, s64', 's_mul_i32 s66, s66, 896', 's_lshl_b32 s78, %s, 7' % sNT, 's_add_u32 s66, s66, s78',
                 's_mul_i32 s78, %s, 6144' % sW, 's_add_u32 s78, s78, %d' % RED, 'v_add_u32 v15, s78, v7',
                 's_lshl_b32 s78, %s, 6' % sW, 's_add_u32 s78, s78, %d' % GL, 'v_lshl_add_u32 v16, v8, 2, s78']
        assert issued == len(loads)
    rd = trD(i + 2) if i + 2 < NS else []
    m.run(weave(mfD(i), rd, fill))
    if i in (0, 6, 13, 20, last_p0, NS - 8): m.stamp('g2_%d' % i)
m.stamp('G2end')
m.barrier()
e('ds_read_b32 v13, v16')
for ct in range(4): e('ds_read_b128 %s, v15 offset:%d' % (v(64 + 4 * ct, 4), 1024 * ct))
e('v_sub_f32 v13, 1.0, v13')
for k in range(16): e('v_fmac_f32 v%d, v13, v%d' % (64 + k, 48 + k))
for k in range(8): e('v_cvt_pk_bf16_f32 v%d, v%d, v%d' % (80 + k, 64 + 2 * k, 65 + 2 * k))
for p in range(2):
    e('v_permlane16_swap_b32 v%d, v%d' % (80 + 4 * p, 82 + 4 * p)); e('v_permlane16_swap_b32 v%d, v%d' % (81 + 4 * p, 83 + 4 * p))
for p in range(2):
    e('buffer_store_dwordx4 %s, v14, %s, s66 offen offset:%d' % (v(80 + 4 * p, 4), SOUT, 64 * p))
e('s_or_b32 s77, s2, %s' % sW); e('s_cmp_lg_u32 s77, 0'); e('s_cbranch_scc1 L_fin'); m.cond_begin()
e('v_mov_b32 v2, %s' % sEN); e('s_mov_b64 exec, 1'); e('buffer_store_dword v2, off, %s, 0 sc1' % SWS); e('s_mov_b64 exec, -1')
m.endc('L_fin')
m.finish(0)

f = Role(); e = f.e
f.raw('L_fft:')
e('s_setprio %d' % opt('fprio', 2))
f.run([f.signal(SYM, 0)]); e('ds_write_b32 v26, v28 offset:%d' % (SYF - SYM)); e('ds_write_b32 v26, v28 offset:%d' % (SYM2 - SYM)); e('ds_write_b32 v26, v28 offset:%d' % (SYX - SYM))
f.run(['v_lshrrev_b32 v32, 1, v6', 's_lshl_b32 s77, %s, 4' % sNB, 'v_add_u32 v32, s77, v32', 'v_and_b32 v33, 1, v1', 'v_cvt_f32_u32 v34, v33',
     'v_mul_f32 v34, 0x3e800000, v34', 'v_lshl_add_u32 v35, v32, 1, v33', 'v_cmp_eq_u32 vcc, 1, v35', 'v_mov_b32 v35, 224',
     'v_cndmask_b32 v32, v32, v35, vcc', 'v_cndmask_b32 v34, v34, v28, vcc', 'v_cvt_f32_u32 v32, v32', 'v_mul_f32 v32, %s, v32' % fl(1.0 / 448),
     's_mul_i32 s77, %s, 112' % sW, 'v_lshl_add_u32 v35, v5, 3, s77', 'v_cvt_f32_u32 v35, v35', 'v_fmac_f32 v34, v32, v35', 'v_fract_f32 v34, v34',
     's_mul_i32 s77, %s, 7168' % sW, 's_add_u32 s77, s77, %d' % CB, 'v_add_u32 v35, s77, v7'])
for tt in range(7):
    b = 40 + 12 * (tt & 1)
    for j in range(8): e('v_fmamk_f32 v%d, v32, %s, v34' % (b + j, fl(16.0 * tt + j)))
    for j in range(8): e('v_cos_f32 v%d, v%d' % (b + j, b + j))
    for j in range(4): e('v_cvt_pk_bf16_f32 v%d, v%d, v%d' % (b + 8 + j, b + 2 * j, b + 2 * j + 1))
    e('ds_write_b128 v35, %s offset:%d' % (v(b + 8, 4), 1024 * tt))
f.raw('    s_waitcnt lgkmcnt(0)'); f.lg_done = len(f.lg)
f.stamp('genC')
f.barrier()
e(f.sread1(SYX))
FCH = ['s%d' % (8 + p) for p in range(7)]
f.chtab(FCH, 12)
f.srd(16, 70, WS_SIZE); f.srd(20, 50, 921600); f.srd(24, 52, 921600); f.srd(40, 62, 896)
e('s_lshl_b32 s50, %s, 12' % sW)
e('v_add_u32 v13, %d, v7' % CB)
f.xread_addrs(9)
e('v_and_b32 v21, 1, v1'); e('v_lshlrev_b32 v22, 1, v21'); e('v_lshlrev_b32 v21, 31, v21'); e('v_or_b32 v21, 1.0, v21')
e('v_lshrrev_b32 v14, 1, v6'); e('v_lshl_add_u32 v22, v14, 4, v22'); e('v_lshl_add_u32 v22, v5, 10, v22')
e('s_lshl_b32 s77, %s, 2' % sW); e('s_add_u32 s77, s77, %d' % TT); e('v_add_u32 v22, s77, v22')
e('s_lshl_b32 s77, %s, 11' % sW); e('s_add_u32 s77, s77, %d' % TT); e('v_add_u32 v15, s77, v7')
e('v_lshlrev_b32 v16, 4, v8'); e('v_lshl_add_u32 v16, v4, 12, v16')
e('s_lshl_b32 s55, %s, 17' % sNB); e('s_add_u32 s55, s55, %d' % TB)
e('s_lshl_b32 s58, %s, 15' % sW); e('s_lshl_b32 s78, %s, 8' % sMB); e('s_add_u32 s58, s58, s78'); e('s_add_u32 s58, s58, s55'); e('s_add_u32 s59, s58, 16384')
gf1 = ['v_cvt_f32_u32 v32, v6', 'v_mul_f32 v32, 0x3d000000, v32', 'v_mul_u32_u24 v33, %s, v8' % sSQ,
     'v_bfe_u32 v34, v1, 4, 1', 's_lshr_b32 s79, %s, 5' % sSQ, 's_lshl_b32 s79, s79, 9', 'v_mad_u32_u24 v33, v34, s79, v33',
     'v_cvt_f32_u32 v33, v33', 'v_mul_f32 v33, 0x3a000000, v33', 'v_lshlrev_b32 v34, 3, v5', 'v_cvt_f32_u32 v34, v34', 'v_fmac_f32 v33, v32, v34']
for cc in range(2):
    for hq in range(2):
        for j in range(4): gf1.append('v_fmamk_f32 v%d, v32, %s, v33' % (36 + j, fl(16.0 * hq + 2 * j + cc)))
        for j in range(4): gf1 += ['v_sin_f32 v%d, v%d' % (40 + j, 36 + j), 'v_cos_f32 v%d, v%d' % (36 + j, 36 + j)]
        for j in range(2): gf1 += ['v_cvt_pk_bf16_f32 v%d, v%d, v%d' % (128 + 4 * cc + 2 * hq + j, 36 + 2 * j, 37 + 2 * j), 'v_cvt_pk_bf16_f32 v%d, v%d, v%d' % (136 + 4 * cc + 2 * hq + j, 40 + 2 * j, 41 + 2 * j)]
def c_reads(p):
    return ['v_add_u32 v23, %s, v13' % FCH[p]] + ['ds_read_b128 %s, v23 offset:%d' % (v(96 + 16 * (p & 1) + 4 * tt, 4), 1024 * tt) for tt in range(4)]
def f1_mfma(p):
    return ['v_mfma_f32_32x32x16_bf16 %s, %s, %s, %s' % (v(80, 16), v(48 + 16 * (p & 1) + 4 * tt, 4), v(96 + 16 * (p & 1) + 4 * tt, 4), '0' if (p == 0 and tt == 0) else v(80, 16)) for tt in range(4)]
f.raw('    s_waitcnt vmcnt(0)')
f.run(c_reads(0))
ng = -(-len(gf1) // 6)
for p in range(7):
    f.run([f.scheck1(SYX, p + 1)])
    if p == 0: f.stamp('x0')
    if p == 4:
        for tt in range(4): e('v_add_u32 v%d, 65536, v%d' % (9 + tt, 9 + tt))
    for tt in range(4): e('ds_read_b128 %s, v%d offset:%d' % (v(48 + 16 * (p & 1) + 4 * tt, 4), 9 + tt, (p % 4) * 16384), tag='xr')
    if p > 0: f.run(weave(f1_mfma(p - 1), gf1[ng * (p - 1):ng * p]))
    if p < 6: f.run(c_reads(p + 1))
    f.run([f.L('xr'), f.signal(SYF, p + 1)])
    if p < 6: e(f.sread1(SYX))
f.run(f1_mfma(6))
e('buffer_load_dword v24, off, %s, 0 sc1' % SWS)
f.stamp('F1end')
for j in range(8): e('v_cvt_pk_bf16_f32 v%d, v%d, v%d' % (80 + j, 80 + 2 * j, 81 + 2 * j))
e('v_mfma_f32_32x32x16_bf16 %s, %s, %s, 0' % (v(32, 16), v(128, 4), v(80, 4)))
e('v_mfma_f32_32x32x16_bf16 %s, %s, %s, 0' % (v(48, 16), v(136, 4), v(80, 4)))
e('v_mfma_f32_32x32x16_bf16 %s, %s, %s, %s' % (v(32, 16), v(132, 4), v(84, 4), v(32, 16)))
e('v_mfma_f32_32x32x16_bf16 %s, %s, %s, %s' % (v(48, 16), v(140, 4), v(84, 4), v(48, 16)))
f.ifnb0('L_sp1')
for k in range(16): e('v_cvt_pk_bf16_f32 v%d, v%d, -v%d' % (64 + k, 32 + k, 48 + k))
f.endc('L_sp1')
for k in range(16): e('v_fmac_f32_dpp v%d, v%d, v21 quad_perm:[1,0,3,2] %s' % (32 + k, 48 + k, DP))
for k in range(0, 16, 2): e('v_cvt_pk_bf16_f32 v%d, v%d, v%d' % (48 + k // 2, 32 + k, 33 + k))
for k in range(0, 16, 2):
    off = (8 * (k >> 2) + (k & 3)) * 256
    e('ds_write_b16 v22, v%d offset:%d' % (48 + k // 2, off)); e('ds_write_b16_d16_hi v22, v%d offset:%d' % (48 + k // 2, off + 256))
f.ifnb0('L_sp2')
e('v_and_b32 v23, 1, v1'); e('s_mov_b32 s77, %d' % (TT - YX + 2)); e('v_mul_u32_u24 v23, s77, v23'); e('v_sub_u32 v23, v22, v23')
e('s_mov_b32 exec_lo, 3'); e('s_mov_b32 exec_hi, 3')
for k in range(16): e('ds_write_b32 v23, v%d offset:%d' % (64 + k, (8 * (k >> 2) + (k & 3)) * 256))
e('s_mov_b64 exec, -1')
f.endc('L_sp2')
f.run([f.signal(SYF, 8), f.sread(SYF)])
f.run([f.scheck(SYF, 8)])
e('ds_read_b128 %s, v15' % v(64, 4)); e('ds_read_b128 %s, v15 offset:1024' % v(68, 4))
e('buffer_store_dwordx4 %s, v16, %s, s58 offen sc1' % (v(64, 4), SWS), tag='T')
e('buffer_store_dwordx4 %s, v16, %s, s59 offen sc1' % (v(68, 4), SWS), tag='T')
f.ifnb0('L_sp3')
e('s_lshl_b32 s77, %s, 11' % sW); e('s_add_u32 s77, s77, %d' % YX); e('v_lshlrev_b32 v21, 8, v1'); e('v_add_u32 v22, s77, v21')
e('v_lshlrev_b32 v21, 11, v1'); e('s_lshl_b32 s77, %s, 14' % sW); e('s_lshl_b32 s78, %s, 7' % sMB); e('s_add_u32 s77, s77, s78'); e('s_add_u32 s77, s77, %d' % TVB)
e('s_mov_b64 exec, 0xff'); e('ds_read_b128 %s, v22' % v(72, 4))
e('buffer_store_dwordx4 %s, v21, %s, s77 offen sc1' % (v(72, 4), SWS), tag='T')
e('s_mov_b64 exec, -1')
f.endc('L_sp3')
f.stamp('Tst')
f.tags()
f.run([f.signal(SYF, 9)])
for k in range(16): e('v_mov_b32 v%d, 0' % (96 + k))
e('v_lshlrev_b32 v19, 1, v8'); e('s_mov_b32 s77, %d' % (256 * 450)); e('v_mad_u32_u24 v19, v4, s77, v19')
e('s_lshl_b32 s56, %s, 4' % sW); e('s_add_u32 s56, s56, %s' % sMB); e('s_mul_i32 s77, s56, 450'); e('s_lshl_b32 s78, %s, 5' % sNB); e('s_add_u32 s57, s77, s78')
wl = []
for k in range(8):
    wl += [f.U(['s_add_u32 s79, s57, %d' % ((16 * (k >> 2) + (k & 3)) * 28800), 'buffer_load_short_d16_hi v%d, v19, %s, s79 offen' % (96 + k, SWR)]),
           'buffer_load_short_d16_hi v%d, v19, %s, s79 offen' % (104 + k, SWI)]
psp = ['buffer_load_dwordx4 %s, v20, %s, s65 offen offset:%d sc1' % (v(128 + 4 * mt, 4), SWS, 256 * mt) for mt in range(2)]
def wsp():
    f.ifnb0('L_sp4')
    e('v_lshrrev_b32 v20, 2, v1'); e('v_lshlrev_b32 v20, 4, v20'); e('s_lshl_b32 s65, %s, 9' % sSQ); e('s_add_u32 s65, s65, %d' % SPB)
    f.run(psp)
    f.endc('L_sp4')
e('s_lshl_b32 s60, %s, 2' % sNB); e('s_add_u32 s60, s60, %s' % sW); e('s_lshl_b32 s60, s60, 2'); e('s_and_b32 s77, %s, 3' % sMB); e('s_add_u32 s60, s60, s77')
e('s_lshl_b32 s60, s60, 3'); e('s_lshr_b32 s78, %s, 2' % sMB); e('s_add_u32 s60, s60, s78'); e('s_lshl_b32 s60, s60, 4'); e('s_add_u32 s60, s60, %d' % FL1)
e('s_lshl_b32 s62, %s, 2' % sNT); e('s_add_u32 s62, s62, s77'); e('s_lshl_b32 s62, s62, 1'); e('s_and_b32 s77, %s, 1' % sW); e('s_add_u32 s62, s62, s77'); e('s_lshl_b32 s62, s62, 3')
e('s_and_b32 s77, s2, 7'); e('s_add_u32 s62, s62, s77'); e('s_lshl_b32 s62, s62, 4')
e('s_lshr_b32 s77, %s, 1' % sW); e('s_lshl_b32 s77, s77, 13'); e('s_add_u32 s62, s62, s77'); e('s_add_u32 s62, s62, %d' % FL3)
e('s_lshr_b32 s77, %s, 3' % sMB); e('s_and_b32 s78, %s, 1' % sW); e('s_lshl_b32 s79, s78, 1'); e('s_add_u32 s77, s77, s79')
e('s_lshl_b32 s79, %s, 2' % sNB); e('s_add_u32 s77, s77, s79'); e('s_lshl_b32 s77, s77, 9'); e('s_add_u32 s63, s77, %d' % FL1)
e('v_and_b32 v9, 3, v1'); e('v_lshlrev_b32 v9, 7, v9'); e('v_bfe_u32 v10, v1, 2, 2'); e('v_lshl_add_u32 v9, v10, 4, v9')
gi = ['s_lshl_b32 s68, %s, 6' % sNT, 'v_add_u32 v80, s68, v8', 'v_cvt_f32_u32 v80, v80', 's_lshl_b32 s68, %s, 6' % sW, 'v_lshl_add_u32 v81, v4, 4, s68',
      'v_cvt_f32_u32 v81, v81', 'v_and_b32 v84, 1, v1', 'v_lshlrev_b32 v84, 31, v84', 'v_or_b32 v84, 0x3e803e80, v84', 'v_cmp_eq_u32 s[70:71], 0, v81']
gihead = list(gi)
for ct in range(4):
    gi += ['v_add_f32 v82, %s, v80' % fl(16.0 * ct), 'v_mul_f32 v82, %s, v82' % fl(1.0 / 448), 'v_mul_f32 v83, v82, v81', 'v_fract_f32 v83, v83']
    for cc in range(4):
        for q in range(4): gi.append('v_fmamk_f32 v%d, v82, %s, v83' % (88 + q, fl(4.0 * q + cc)))
        for q in range(4): gi += ['v_sin_f32 v%d, v%d' % (92 + q, 88 + q), 'v_cos_f32 v%d, v%d' % (88 + q, 88 + q)]
        for q in range(4): gi.append('v_cvt_pk_bf16_f32 v%d, v%d, -v%d' % (88 + q, 88 + q, 92 + q))
        if cc == 0: gi.append('v_cndmask_b32 v88, v88, v84, s[70:71]')
        for q in range(4): gi.append('v_accvgpr_write_b32 a%d, v%d' % (48 + 16 * cc + 4 * ct + q, 88 + q))
r = []
r += ['v_lshl_add_u32 v32, v8, 2, %s' % sW, 'v_cvt_f32_u32 v32, v32', 'v_mul_f32 v32, 0x3c000000, v32', 'v_lshlrev_b32 v34, 2, v4', 'v_cvt_f32_u32 v34, v34']
for mt in range(2):
    if mt: r.append('v_add_f32 v32, 0.5, v32')
    r.append('v_mul_f32 v33, v32, v34')
    for j in range(8): r.append('v_fmamk_f32 v%d, v32, %s, v33' % (40 + j, fl(16.0 * (j >> 2) + (j & 3))))
    for j in range(8): r += ['v_sin_f32 v%d, v%d' % (48 + j, 40 + j), 'v_cos_f32 v%d, v%d' % (40 + j, 40 + j)]
    for j in range(8):
        r += ['v_cvt_pk_bf16_f32 v%d, v%d, v%d' % (56 + (j & 3), 40 + j, 48 + j), 'v_cvt_pk_bf16_f32 v%d, -v%d, v%d' % (60 + (j & 3), 48 + j, 40 + j),
              'v_accvgpr_write_b32 a%d, v%d' % (8 * mt + j, 56 + (j & 3)), 'v_accvgpr_write_b32 a%d, v%d' % (16 + 8 * mt + j, 60 + (j & 3))]
gi = r + gi
if opt('nogen', 0): gi = ['s_sleep 1'] * 40 + [None] * 500
n1, n2, n3, n4 = opt('gi1', 128), opt('gi2', 200), opt('gi3', 240), opt('gi4', 300)
p1 = 'buffer_load_dword v10, v9, %s, s63 offen sc1' % SWS
LO, HI = 's_setprio %d' % opt('flo', 0), 's_setprio %d' % opt('fprio', 2)
f.run(gi[:n1] + [f.S('preWT'), f.W('T'), f.S('WT'), f.flag('v24', 's60'), LO, wsp] + weave(gi[n1:n2], (wl, 0, 60)) + [(p1, 'p1')] + gi[n2:n3] + [HI, f.S('prepollT'), f.W('p1'), f.S('p1back'), f.poll([p1], ['v10'], sT1, 1)])
f.stamp('pollT')
e('s_and_b32 s78, %s, 1' % sW); e('s_lshl_b32 s78, s78, 4'); e('s_add_u32 s78, s78, %s' % sMB)
e('s_lshl_b32 s77, s78, 12'); e('s_add_u32 s77, s77, s55')
for q in range(4): e('buffer_load_dwordx4 %s, v7, %s, s77 offen offset:%d sc1' % (v(32 + 4 * q, 4), SWS, 1024 * q))
e('s_lshl_b32 s61, %s, 1' % sMB); e('s_add_u32 s61, s61, %s' % sHALF); e('s_lshl_b32 s61, s61, 9'); e('s_add_u32 s61, s61, %d' % GB); e('v_lshlrev_b32 v11, 3, v1')
pg = 'buffer_load_dwordx2 v[12:13], v11, %s, s61 offen sc1' % SWS
e(pg)
f.ifnb0('L_sp5')
e('v_lshlrev_b32 v22, 26, v8'); e('v_lshl_add_u32 v22, v4, 7, v22'); e('s_lshl_b32 s77, s78, 11'); e('s_add_u32 s77, s77, %d' % TVB)
for q in range(4): e('buffer_load_dwordx4 %s, v22, %s, s77 offen offset:%d sc1' % (v(48 + 4 * q, 4), SWS, 512 * q))
f.run([f.poll(psp, ['v130', 'v134'], sT1, 1)])
e('v_cmp_ne_u32 vcc, 0, v8')
for mt in range(2):
    for c2 in range(2):
        e('v_lshlrev_b32 v%d, 16, v%d' % (136 + 4 * mt + 2 * c2, 128 + 4 * mt + c2)); e('v_and_b32 v%d, 0xffff0000, v%d' % (137 + 4 * mt + 2 * c2, 128 + 4 * mt + c2))
for k in range(8):
    mt, kk = k >> 2, k & 3
    sh0 = 'row_shl:%d' % (4 * kk) if kk else 'quad_perm:[0,1,2,3]'
    for ri in range(2):
        e('v_cndmask_b32_dpp v%d, v%d, v%d, vcc %s %s bound_ctrl:0' % (96 + 8 * ri + k, 136 + 4 * mt + ri, 96 + 8 * ri + k, sh0, DP))
        e('v_mov_b32_dpp v%d, v%d %s %s bound_ctrl:0' % (112 + 8 * ri + k, 138 + 4 * mt + ri, sh0, DP))
f.endc('L_sp5')
f.run(gi[n3:n4])
e(f.sread(SYF))
e('s_lshr_b32 s77, %s, 1' % sW); e('s_mul_i32 s66, s77, 0x80008000')
for kb in range(1, 4):
    e('s_mul_i32 s77, %s, %d' % (sW, kb)); e('s_and_b32 s77, s77, 3'); e('s_and_b32 s78, s77, 1'); e('s_lshl_b32 s%d, s78, 4' % (67 + kb))
    e('s_lshr_b32 s78, s77, 1'); e('s_xor_b32 s79, s77, s78'); e('s_lshl_b32 s79, s79, 31'); e('s_lshl_b32 s78, s78, 15'); e('s_or_b32 s%d, s79, s78' % (51 + kb))
e('v_lshlrev_b32 v22, 4, v8'); e('v_lshl_add_u32 v22, v4, 10, v22'); e('s_lshl_b32 s77, %s, 2' % sW); e('s_add_u32 s77, s77, %d' % YX); e('v_add_u32 v22, s77, v22')
e('v_add_u32 v23, %d, v7' % YX)
e('s_mov_b32 s77, %d' % (4 * 28672)); e('v_lshlrev_b32 v21, 4, v3'); e('v_mad_u32_u24 v21, v2, s77, v21')
e('s_mul_i32 s58, %s, 28672' % sW); e('s_mul_i32 s78, %s, 1792' % sMB); e('s_add_u32 s58, s58, s78')
e('s_lshl_b32 s78, %s, 7' % sNB); e('s_add_u32 s58, s58, s78'); e('s_add_u32 s58, s58, %d' % RB); e('s_add_u32 s59, s58, %d' % (32 * 28672))
e('s_lshl_b32 s77, %s, 11' % sW); e('s_add_u32 s77, s77, %d' % TT)
e('v_xor_b32 v14, v4, v3'); e('v_lshlrev_b32 v14, 4, v14'); e('v_lshl_add_u32 v14, v8, 7, v14'); e('v_add_u32 v14, s77, v14'); e('v_xor_b32 v15, 64, v14')
e('v_xor_b32 v16, v2, v3'); e('v_lshlrev_b32 v16, 4, v16'); e('v_lshl_add_u32 v16, v2, 7, v16'); e('v_add_u32 v16, s77, v16')
e('v_lshlrev_b32 v17, 14, v1')
f.run([f.scheck(SYF, 9)])
f.stamp('preF2')
def F2_fwd(D, B):
    for q in range(4):
        if q >= 2:
            for k in range(4): e('v_xor_b32 v%d, s66, v%d' % (B + 4 * q + k, B + 4 * q + k))
        for mt in range(2):
            for part in range(2):
                d = v(D + 8 * mt + 4 * part, 4)
                e('v_mfma_f32_16x16x32_bf16 %s, %s, %s, %s' % (d, ag(16 * part + 8 * mt + 4 * (q & 1), 4), v(B + 4 * q, 4), '0' if q == 0 else d))
F2_fwd(64, 32)
f.ifnb0('L_sp6'); F2_fwd(80, 48); f.endc('L_sp6')
for k in range(8):
    zr = 64 + 8 * (k >> 2) + (k & 3)
    e('v_mul_f32 v%d, v%d, v%d' % (128 + k, zr, 96 + k)); e('v_mul_f32 v%d, v%d, v%d' % (136 + k, zr, 104 + k))
for k in range(8):
    zi = 68 + 8 * (k >> 2) + (k & 3)
    e('v_fma_f32 v%d, -v%d, v%d, v%d' % (128 + k, zi, 104 + k, 128 + k)); e('v_fmac_f32 v%d, v%d, v%d' % (136 + k, zi, 96 + k))
f.ifnb0('L_sp7')
for k in range(8):
    zr = 80 + 8 * (k >> 2) + (k & 3)
    e('v_fma_f32 v%d, -v%d, v%d, v%d' % (128 + k, zr, 120 + k, 128 + k)); e('v_fmac_f32 v%d, v%d, v%d' % (136 + k, zr, 112 + k))
for k in range(8):
    zi = 84 + 8 * (k >> 2) + (k & 3)
    e('v_fma_f32 v%d, -v%d, v%d, v%d' % (128 + k, zi, 112 + k, 128 + k)); e('v_fma_f32 v%d, -v%d, v%d, v%d' % (136 + k, zi, 120 + k, 136 + k))
f.endc('L_sp7')
for k in range(8): e('v_cvt_pk_bf16_f32 v%d, v%d, -v%d' % (128 + k, 128 + k, 136 + k))
for k in range(8): e('ds_write_b32 v22, v%d offset:%d' % (128 + k, (16 * (k >> 2) + (k & 3)) * 256))
f.run([f.S('F2fwd'), f.signal(SYF, 10), f.sread(SYF), f.scheck(SYF, 10), f.S('Ysync')])
for q in range(8): e('ds_read_b128 %s, v23 offset:%d' % (v(32 + 4 * q, 4), 1024 * q))
for q in range(8):
    kb, t = q >> 1, q & 1
    if kb:
        if kb != 2:
            for j in range(4): e('v_alignbit_b32 v%d, v%d, v%d, s%d' % ((32 + 4 * q + j,) * 3 + (67 + kb,)))
        for j in range(4): e('v_xor_b32 v%d, s%d, v%d' % (32 + 4 * q + j, 51 + kb, 32 + 4 * q + j))
    for mt in range(2):
        for part in range(2):
            d = v(64 + 8 * mt + 4 * part, 4)
            e('v_mfma_f32_16x16x32_bf16 %s, %s, %s, %s' % (d, v(32 + 4 * q, 4), ag(16 * part + 8 * mt + 4 * t, 4), '0' if q == 0 else d))
for mt in range(2):
    for k in range(4): e('v_cvt_pk_bf16_f32 v%d, v%d, -v%d' % (128 + 4 * mt + k, 64 + 8 * mt + k, 68 + 8 * mt + k))
    e('ds_write_b128 v%d, %s' % (14 + mt, v(128 + 4 * mt, 4)))
for u in range(2): e('ds_read_b128 %s, v16 offset:%d' % (v(136 + 4 * u, 4), 1024 * u))
e(f.sread(SYM))
for u in range(2): e('buffer_store_dwordx4 %s, v21, %s, %s offen sc1' % (v(136 + 4 * u, 4), SWS, 's58' if u == 0 else 's59'), tag='R')
f.run([f.scheck(SYM, 1), f.poll([pg], ['v13'], sT1, 1), 'v_lshlrev_b32 v11, 2, v1', 'v_add_u32 v11, %d, v11' % GL, 'ds_write_b32 v11, v12'])
f.stamp('Rst')
e('s_lshl_b32 s77, %s, 1' % sHALF); e('s_lshl_b32 s64, %s, 2' % sMB); e('s_add_u32 s64, s64, s77')
gs = ['v_lshlrev_b32 v33, 2, v4', 'v_cvt_f32_u32 v33, v33']
for rho in range(4):
    gs += ['s_add_u32 s77, %s, %d' % (sW, rho), 's_and_b32 s77, s77, 3', 's_and_b32 s78, s77, 1', 's_lshl_b32 s78, s78, 6', 's_lshr_b32 s79, s77, 1',
           's_add_u32 s78, s78, s79', 's_add_u32 s%d, s78, s64' % (52 + rho),
           's_lshl_b32 s77, s77, 6', 's_add_u32 s77, s77, %d' % GL,
           'v_lshl_add_u32 v34, v8, 2, s77', 'ds_read_b32 v%d, v34' % (36 + rho)]
gs += ['v_sub_f32 v11, 1.0, v36']
for rho in range(4):
    gs += ['v_mul_f32 v%d, %s, v%d' % (36 + rho, fl(1.0 / (224 * 2048)), 36 + rho),
           'v_lshl_add_u32 v34, v8, 7, s%d' % (52 + rho), 'v_cvt_f32_u32 v34, v34', 'v_mul_f32 v34, 0x3a000000, v34', 'v_mul_f32 v35, v34, v33']
    for q in range(4): gs.append('v_fmamk_f32 v%d, v34, %s, v35' % (40 + q, fl(1.0 * q)))
    for q in range(4): gs += ['v_sin_f32 v%d, v%d' % (44 + q, 40 + q), 'v_cos_f32 v%d, v%d' % (40 + q, 40 + q)]
    for q in range(8): gs.append('v_mul_f32 v%d, v%d, v%d' % (40 + q, 36 + rho, 40 + q))
    for q in range(4): gs += ['v_cvt_pk_bf16_f32 v%d, v%d, -v%d' % (96 + 8 * rho + q, 40 + q, 44 + q), 'v_cvt_pk_bf16_f32 v%d, v%d, v%d' % (100 + 8 * rho + q, 44 + q, 40 + q)]
gs2 = ['s_and_b32 s77, s2, 7', 's_lshl_b32 s77, s77, 13', 's_add_u32 s63, s77, %d' % FL3, 's_lshl_b32 s77, %s, 2' % sW,
       'v_add_u32 v9, s77, v4', 'v_min_u32 v9, 13, v9', 'v_cmp_lt_u32 vcc, 6, v9', 'v_subrev_u32 v12, 7, v9', 'v_cndmask_b32 v9, v9, v12, vcc', 'v_lshlrev_b32 v9, 10, v9',
       'v_cndmask_b32 v12, 0, 16, vcc', 'v_add_u32 v9, v9, v12', 'v_and_b32 v12, 3, v1', 'v_lshl_add_u32 v9, v12, 8, v9', 'v_bfe_u32 v12, v1, 2, 2', 'v_lshl_add_u32 v9, v12, 5, v9',
       's_cmp_eq_u32 %s, 3' % sW,
       's_cselect_b32 s77, 7, 15', 'v_cmp_lt_u32 vcc, s77, v8', 'v_lshrrev_b32 v10, 2, v8', 'v_lshlrev_b32 v10, 7, v10', 'v_and_b32 v12, 3, v1', 'v_lshl_add_u32 v10, v12, 4, v10',
       's_movk_i32 s77, 7168', 'v_mad_u32_u24 v10, v4, s77, v10', 'v_mov_b32 v12, 0x40000000', 'v_cndmask_b32 v10, v10, v12, vcc',
       's_lshl_b32 s66, %s, 9' % sW, 's_add_u32 s66, s66, %d' % RB]
for rho in range(4):
    gs2 += ['s_and_b32 s77, s%d, 63' % (52 + rho), 's_and_b32 s78, s%d, 64' % (52 + rho), 's_mul_i32 s77, s77, 28672', 's_add_u32 s77, s77, s78', 's_add_u32 s%d, s77, s66' % (52 + rho),
            's_add_u32 s%d, s%d, 3584' % (68 + rho, 52 + rho)]
p3 = ['buffer_load_dword v12, v9, %s, s63 offen sc1' % SWS, 'buffer_load_dword v13, v9, %s, s63 offen offset:128 sc1' % SWS]
flag3 = None if (opt('nopoll', 0) >= 2 or opt('onlyfl2', 0)) else f.U(['s_mov_b64 exec, 15', ('buffer_store_dword v24, v17, %s, s62 offen sc1' % SWS, 'flag'), 's_mov_b64 exec, -1'])
k1 = opt('gs1', 120)
assert (n4 - 127) % 85 == 0 or True
gi2 = gihead + gi[n4:]
f.run(gs[:k1] + [f.S('preWR'), f.W('R'), f.S('WR'), flag3, LO] + gs[k1:] + gi2 + gs2 + ['s_sleep %d' % opt('rsleep', 0) if opt('rsleep', 0) else None, HI, p3[0], (p3[1], 'p3'), f.S('prepollR'), f.W('p3'), f.S('p3back')] + [f.poll(p3, ['v12', 'v13'], sT1, 1)])
f.stamp('pollR')
RO = [1, 2, 3, 0]
slot = {1: 1, 2: 2, 3: 0, 0: 1}
def R_load(rho): return ['buffer_load_dwordx4 %s, v10, %s, s%d offen offset:%d sc1' % (ag(16 * slot[rho] + 4 * j, 4), SWS, (52 if j < 2 else 68) + rho, 1792 * (j & 1)) for j in range(4)]
f.run(R_load(1) + R_load(2) + R_load(3))
e('s_xor_b32 s77, %s, 1' % sHALF); e('s_mul_i32 s77, s77, 7'); e('s_add_u32 s77, s77, %s' % sNT)
e('s_lshl_b32 s78, %s, 4' % sMB); e('s_add_u32 s77, s77, s78'); e('s_lshl_b32 s77, s77, 2'); e('s_add_u32 s77, s77, %s' % sW)
e('s_lshl_b32 s61, s77, 12'); e('s_add_u32 s61, s61, %d' % PXB)
e(f.sread(SYM2))
f.run([f.scheck(SYM2, 2)])
units = [(rho, cc) for rho in RO for cc in range(4)]
D4 = ((12, 16), (20, 28))
def RD(k): rho, cc = units[k]; return ['v_accvgpr_read_b32 v%d, a%d' % (128 + 4 * (k & 3) + j, 16 * slot[rho] + 4 * j + cc) for j in range(4)]
def S4(k): rho, cc = units[k]; return ['v_mfma_f32_16x16x32_bf16 %s, %s, %s, 0' % (v(D4[k & 1][part], 4), v(128 + 4 * (k & 3), 4), v(96 + 8 * rho + 4 * part, 4)) for part in range(2)]
def CV(k): return ['v_cvt_pk_bf16_f32 v%d, v%d, v%d' % (128 + 4 * (k & 3) + j, D4[k & 1][0] + j, D4[k & 1][1] + j) for j in range(4)]
def FD(k):
    rho, cc = units[k]
    return ['v_mfma_f32_16x16x32_bf16 %s, %s, %s, %s' % (v(32 + 16 * rho + 4 * ct, 4), ag(48 + 16 * cc + 4 * ct, 4), v(128 + 4 * (k & 3), 4), '0' if cc == 0 else v(32 + 16 * rho + 4 * ct, 4)) for ct in range(4)]
def ship(prev):
    P = 32 + 16 * prev
    return ['s_add_u32 s77, %s, %d' % (sW, prev), 's_and_b32 s77, s77, 3', 's_mul_i32 s77, s77, 6144', 's_add_u32 s77, s77, %d' % (RED + 2048 * (prev - 1)), 'v_add_u32 v9, s77, v7'] + \
           ['v_cvt_pk_bf16_f32 v%d, v%d, v%d' % (P + k, P + 2 * k, P + 2 * k + 1) for k in range(8)] + ['ds_write_b128 v9, %s' % v(P, 4), 'ds_write_b128 v9, %s offset:1024' % v(P + 4, 4)]
pxl = ['buffer_load_dwordx4 %s, v7, %s, s61 offen offset:%d sc1' % (v(64 + 4 * k, 4), SWS, 1024 * k) for k in range(3)]
f.run(RD(0) + RD(1) + S4(0) + RD(2) + S4(1) + CV(0))
for k in range(16):
    main = (S4(k + 2) if k + 2 < 16 else []) + FD(k)
    fill = (CV(k + 1) if k + 1 < 16 else []) + (RD(k + 3) if k + 3 < 16 else [])
    extra = []
    if k == 1: extra = R_load(0)
    if k in (5, 9, 13): extra = ship(RO[k // 4 - 1])
    if k == 7: extra = ['v_lshlrev_b32 v10, 3, v4', 's_lshl_b32 s77, %s, 7' % sNT] + ['buffer_load_dwordx2 %s, v10, %s, s77 offen offset:%d' % (v(56 + 2 * ct, 2), SB2, 32 * ct) for ct in range(4)]
    if k == 12: extra = pxl
    f.run(weave(main, fill, extra))
f.stamp('F3')
f.run([f.signal(SYF, 11)])
f.run([f.sread(SYF), f.scheck(SYF, 11)])
e('s_mul_i32 s77, %s, 6144' % sW); e('s_add_u32 s77, s77, %d' % RED); e('v_add_u32 v9, s77, v7')
for k in range(6): e('ds_read_b128 %s, v9 offset:%d' % (v(96 + 4 * k, 4), 1024 * k))
for s in range(3):
    for k in range(8):
        e('v_lshlrev_b32 v%d, 16, v%d' % (128 + 2 * k, 96 + 8 * s + k)); e('v_and_b32 v%d, 0xffff0000, v%d' % (129 + 2 * k, 96 + 8 * s + k))
    for k in range(16): e('v_add_f32 v%d, v%d, v%d' % (32 + k, 32 + k, 128 + k))
for k in range(8):
    e('v_lshlrev_b32 v%d, 16, v%d' % (128 + 2 * k, 56 + k)); e('v_and_b32 v%d, 0xffff0000, v%d' % (129 + 2 * k, 56 + k))
for k in range(16): e('v_fmac_f32 v%d, v11, v%d' % (32 + k, 128 + k))
f.stamp('red')
f.run([f.poll(pxl, ['v67', 'v71', 'v75'], sT1, 1)])
f.stamp('px')
for k, r in enumerate([64, 65, 66, 68, 69, 70, 72, 73]):
    e('v_lshlrev_b32 v%d, 16, v%d' % (128 + 2 * k, r)); e('v_and_b32 v%d, 0xffff0000, v%d' % (129 + 2 * k, r))
for k in range(16): e('v_fmac_f32 v%d, v11, v%d' % (32 + k, 128 + k))
for ct in range(4): e('ds_write_b128 v9, %s offset:%d' % (v(32 + 4 * ct, 4), 1024 * ct))
f.wait_lg()
f.barrier()
f.finish(1)

x = Role(); e = x.e
x.raw('L_aux:')
e('s_and_b32 s44, s2, 1')
e('s_bfe_u32 s45, s2, 0x20001')
e('s_bfe_u32 s46, s2, 0x20003'); e('s_lshl_b32 s46, s46, 3'); e('s_add_u32 s46, s46, s79')
e('v_lshrrev_b32 v2, 4, v1'); e('v_and_b32 v3, 15, v1'); e('v_min_u32 v3, 13, v3'); e('v_lshlrev_b32 v3, 7, v3')
e('s_movk_i32 s77, 3584'); e('v_mad_u32_u24 v2, v2, s77, v3')
e('v_lshlrev_b32 v4, 7, v1')
e('v_lshrrev_b32 v5, 4, v1'); e('v_bfe_u32 v6, v1, 2, 2'); e('v_lshl_add_u32 v5, v5, 4, v6'); e('v_mul_u32_u24 v5, 450, v5')
e('v_and_b32 v6, 3, v1'); e('v_lshlrev_b32 v6, 7, v6'); e('v_min_u32 v6, 224, v6'); e('v_add_u32 v5, v5, v6')
e('s_mul_i32 s47, s44, 1792'); e('s_mul_i32 s77, s46, %d' % (4 * 3584)); e('s_add_u32 s47, s47, s77')
e('s_mul_i32 s72, s44, 802816'); e('s_lshl_b32 s77, s46, 13'); e('s_add_u32 s72, s72, s77')
e('s_lshl_b32 s73, s46, 6'); e('s_lshl_b32 s77, s45, 2'); e('s_add_u32 s73, s73, s77'); e('s_mul_i32 s73, s73, 450'); e('s_mul_i32 s77, s44, 224'); e('s_add_u32 s73, s73, s77')
x.raw('    s_waitcnt lgkmcnt(0)')
x.srd(8, 56, 1605632); x.srd(12, 60, 1605632); x.srd(20, 50, 921600); x.srd(24, 52, 921600)
e('v_mov_b32 v8, v2'); e('v_mov_b32 v9, v4'); e('s_mov_b32 s40, s47'); e('s_mov_b32 s41, s72'); e('s_mov_b32 s42, s73')
x.srd(4, 48, 1835008); x.srd(32, 64, 896); x.srd(16, 70, WS_SIZE)
e('buffer_load_dword v24, off, %s, 0 sc1' % SWS)
e('s_lshr_b32 s47, s46, 3'); e('s_lshl_b32 s77, s45, 2'); e('s_add_u32 s47, s47, s77'); e('s_lshl_b32 s47, s47, 1'); e('s_add_u32 s47, s47, s44')
e('s_and_b32 s77, s79, 1'); e('s_lshl_b32 s77, s77, 10'); e('s_bfe_u32 s78, s79, 0x10001'); e('s_lshl_b32 s78, s78, 6'); e('s_add_u32 s77, s77, s78')
e('s_lshr_b32 s78, s79, 2'); e('s_add_u32 s77, s77, s78'); e('s_lshl_b32 s78, s47, 1'); e('s_add_u32 s77, s77, s78'); e('s_mul_i32 s72, s77, 896')
e('v_lshrrev_b32 v2, 3, v1'); e('v_and_b32 v3, 7, v1'); e('v_lshlrev_b32 v3, 4, v3'); e('s_mov_b32 s77, %d' % (128 * 896)); e('v_mad_u32_u24 v4, v2, s77, v3')
for k in range(7):
    e('buffer_load_dwordx4 %s, v4, %s, s72 offen offset:%d' % (v(32 + 4 * k, 4), SX, 128 * k)); e('buffer_load_dwordx4 %s, v3, %s, 0 offen offset:%d' % (v(64 + 4 * k, 4), SGW, 128 * k))
e('s_and_b32 s77, s2, 3'); e('s_lshl_b32 s36, s77, 5'); e('s_add_u32 s36, s36, s46')
e('s_lshr_b32 s77, s36, 3'); e('s_bfe_u32 s78, s36, 0x20001'); e('s_lshl_b32 s78, s78, 4'); e('s_add_u32 s77, s77, s78'); e('s_and_b32 s78, s36, 1'); e('s_lshl_b32 s78, s78, 10'); e('s_add_u32 s77, s77, s78')
e('v_lshrrev_b32 v26, 2, v1'); e('v_lshl_add_u32 v27, v26, 6, s77'); e('v_sub_u32 v28, 2048, v27'); e('v_and_b32 v28, 2047, v28'); e('v_and_b32 v29, 1, v1'); e('v_cmp_eq_u32 vcc, 1, v29')
e('v_bfe_u32 v29, v1, 1, 1'); e('v_mul_u32_u24 v29, 448, v29'); e('v_cndmask_b32 v27, v27, v28, vcc'); e('s_movk_i32 s77, 450'); e('v_mad_u32_u24 v27, v27, s77, v29')
e('s_bitcmp1_b32 s2, 2'); e('s_cselect_b32 s37, 0x40000000, 0')
e('buffer_load_ushort v22, v27, %s, s37 offen' % SWR); e('buffer_load_ushort v23, v27, %s, s37 offen' % SWI)
pfl = []
for k in range(4 if opt('pfw1', 1) else 0): pfl.append(['buffer_load_ubyte v%d, v8, %s, s40 offen' % (10 + k, SW1), 's_add_u32 s40, s40, %d' % (128 * 3584)])
for k in range(3): pfl.append(['buffer_load_ubyte v%d, v9, %s, s41 offen' % (14 + k, SW2), 's_add_u32 s41, s41, %d' % (32 * 8192)])
pfl.append(['buffer_load_ubyte v18, v5, %s, s42 offen' % SWR, 'buffer_load_ubyte v19, v5, %s, s42 offen' % SWI])
pfl.append(['s_cmp_ge_u32 s46, 2', 's_cselect_b32 s41, 0x40000000, s41', 'buffer_load_ubyte v17, v9, %s, s41 offen' % SW2])
PFE = opt('pfe', 0)
for y in pfl[:PFE]: x.run(y)
e('v_mov_b32 v20, 0'); e('v_mov_b32 v21, 0')
x.stamp('iss')
x.tags()
x.stamp('E')
e('v_lshlrev_b32 v22, 16, v22'); e('v_lshlrev_b32 v23, 16, v23')
e('v_add_f32_dpp v28, v22, v22 quad_perm:[1,0,3,2] %s' % DP); e('v_subrev_f32_dpp v29, v23, v23 quad_perm:[1,0,3,2] %s' % DP)
e('v_cvt_pk_bf16_f32 v28, v28, v29'); e('v_mov_b32 v30, v24'); e('v_mov_b32 v31, v24'); e('v_mov_b32_dpp v29, v28 quad_perm:[2,2,2,2] %s' % DP)
e('v_lshlrev_b32 v26, 4, v26'); e('s_lshl_b32 s77, s36, 8'); e('s_add_u32 s77, s77, %d' % SPB); e('s_add_u32 s77, s77, s37')
e('s_mov_b32 exec_lo, 0x11111111'); e('s_mov_b32 exec_hi, 0x11111111')
e('buffer_store_dwordx4 v[28:31], v26, %s, s77 offen sc1' % SWS)
e('s_mov_b64 exec, -1')
x.stamp('sp')
for k in range(28): e('v_dot2c_f32_bf16 v%d, v%d, v%d' % (20 + (k & 1), 32 + k, 64 + k))
e('v_add_f32 v20, v20, v21')
e('v_add_f32_dpp v20, v20, v20 quad_perm:[1,0,3,2] %s' % DP); e('v_add_f32_dpp v20, v20, v20 quad_perm:[2,3,0,1] %s' % DP); e('v_add_f32_dpp v20, v20, v20 row_half_mirror %s' % DP)
e('v_mul_f32 v20, %s, v20' % fl(-1.4426950408889634)); e('v_exp_f32 v20, v20'); e('v_add_f32 v20, 1.0, v20'); e('v_rcp_f32 v20, v20'); e('v_mov_b32 v21, v24')
e('s_lshl_b32 s77, s47, 9'); e('s_lshl_b32 s78, s79, 6'); e('s_add_u32 s77, s77, s78'); e('s_add_u32 s77, s77, %d' % GB); e('v_lshlrev_b32 v2, 3, v2')
e('s_mov_b32 exec_lo, 0x01010101'); e('s_mov_b32 exec_hi, 0x01010101')
e('buffer_store_dwordx2 v[20:21], v2, %s, s77 offen sc1' % SWS)
e('s_mov_b64 exec, -1')
x.stamp('g')
if DIAG: x.wait_vm_all(); x.stamp('ack')
x.barrier()
if opt('pf', 1):
    for y in pfl[PFE:]: x.run(y)
if DIAG: e('s_mov_b32 %s, s79' % sW); x.finish(0)

hdr = open('cdna_kernels/%s.s.ref' % NAME).read().split('; Override')[0]
txt = hdr + '; @launch grid=(%d,1,1) block=(512,1,1) lds=%d\n' % (NWG, LDS_SIZE)
txt += '.amdgcn_target "amdgcn-amd-amdhsa--gfx950"\n.text\n.globl %s_kernel\n.p2align 8\n.type %s_kernel,@function\n' % (NAME, NAME)
txt += c.text() + m.text() + f.text() + x.text() + 'L_end:\n    s_endpgm\n'
txt += '''.section .rodata,"a"
.p2align 6
.amdhsa_kernel %s_kernel
  .amdhsa_next_free_vgpr 256
  .amdhsa_next_free_sgpr 102
  .amdhsa_accum_offset 144
  .amdhsa_group_segment_fixed_size 0
  .amdhsa_kernarg_size 96
  .amdhsa_user_sgpr_count 2
  .amdhsa_user_sgpr_kernarg_segment_ptr 1
  .amdhsa_system_sgpr_workgroup_id_x 1
.end_amdhsa_kernel
''' % NAME
out = [x for x in sys.argv[1:] if not x.startswith('--')]
open(out[0] if out else 'cdna_kernels/%s.s' % NAME, 'w').write(txt)
if DIAG: open('names.txt', 'w').write(repr([m.names, f.names, x.names]))
print('instrs mlp', sum(m.count.values()), 'fft', sum(f.count.values()), 'nops', m.nnop, f.nnop, file=sys.stderr)
```

```python
import sys
from asmlib import *

NAME = 'gated_mix__spectral_gfnet__dense_activation_gelu__prompt'
DIAG = '--diag' in sys.argv
def opt(name, default):
    for x in sys.argv:
        if x.startswith('--%s=' % name): return int(x.split('=')[1])
    return default
FL1, FL3, FL2 = 0x1000, 0x10000, 0x80000
GB = 0x8000
SPB = 0x40000
TVB = 0x50000

TB = 0x100000
RB = TB + 1835008
HB = RB + 1835008
PXB = HB + 7340032
DIAGB = PXB + 16 * 16 * 16384
WS_SIZE = DIAGB + (256 * 2048 if DIAG else 0)
W1H1 = 57344
CB = 122880
RED = 90112
YX = 114688
TT = 151552
TV = 159744
GW = 160256
B1L = 161280
GL = 161792
SYM = 162304; SYF = 162320; SYM2 = 162336; SYX = 162352
LDS_SIZE = 163840
SX, SW1, SW2, SWS, SWR, SWI, SOUT, SGW, SB1, SB2 = ['s[%d:%d]' % (i, i + 3) for i in range(4, 44, 4)]
sMB, sNB, sHALF, sNT, sW, sT1, sT2, sEN, sSQ = 's44', 's45', 's46', 's47', 's72', 's73', 's74', 's75', 's76'
sROT = 's3'
SPIN = 20000
FST = 'buffer_atomic_swap' if opt('atf', 0) else 'buffer_store_dword'
FSC = ['sc1', 'sc0 sc1', 'sc1 nt'][opt('fsc', 0)]
PSC = ['sc1', 'sc0 sc1', 'sc1 nt', 'nt', 'sc0 sc1 nt'][opt('psc', 0)]
NWG = 256 if opt('aux', 1) else 224
DP = 'row_mask:0xf bank_mask:0xf'
def v(i, n=1): return 'v%d' % i if n == 1 else 'v[%d:%d]' % (i, i + n - 1)
def ag(i, n=1): return 'a%d' % i if n == 1 else 'a[%d:%d]' % (i, i + n - 1)
lab = [0]

class Role(Asm):
    def __init__(self):
        super().__init__(); self.ns = 1; self.names = ['start']
    def stamp(self, name=''):
        if not DIAG: return
        assert self.ns < 60
        self.raw('    s_memtime s[98:99]\n    s_waitcnt lgkmcnt(0)\n    v_writelane_b32 v0, s98, %d' % self.ns); self.pos += 3
        self.names.append(name); self.ns += 1
    def S(self, name=''): return lambda: self.stamp(name)
    def W(self, tag): return lambda: self.wait_vm(tag)
    def L(self, tag=None): return lambda: self.wait_lg(tag)
    def U(self, items): return lambda: self.run(items)
    def flag(self, vtag, soff):
        if opt('nopoll', 0) >= 2: return None
        if opt('onlyfl2', 0) and soff != 's61': return None
        if opt('fullfl', 0) and soff == 's61':
            return self.U(['s_mov_b64 exec, 0x%x' % ((1 << opt('fullfl', 0)) - 1), ('buffer_store_dword %s, v5, %s, %s offen sc1' % (vtag, SWS, soff), 'flag'), 's_mov_b64 exec, -1'])
        return self.U(['s_mov_b64 exec, 1', ('%s %s, off, %s, %s %s' % (FST, vtag, SWS, soff, FSC), 'flag'), 's_mov_b64 exec, -1'])
    def spin(self, loads, waitc, tests, sleep):
        n = lab[0]; lab[0] += 1
        def f():
            for t in tests: self.e(t)
            self.nop(1)
            self.e('s_cmp_eq_u64 vcc, 0'); self.e('s_cbranch_scc1 L_pd%d' % n)
            t = ['    s_mov_b32 s96, %d' % SPIN, 'L_pl%d:' % n] + (['    s_sleep %d' % sleep] if sleep else [])
            t += ['    ' + l for l in loads] + ['    s_waitcnt ' + waitc] + ['    ' + x for x in tests]
            t += ['    s_sub_u32 s96, s96, 1', '    s_cmp_eq_u32 s96, 0', '    s_cbranch_scc1 L_pd%d' % n,
                  '    s_cmp_eq_u64 vcc, 0', '    s_cbranch_scc0 L_pl%d' % n, 'L_pd%d:' % n]
            self.raw('\n'.join(t))
        return f
    def poll(self, loads, regs, stag, lim):
        if opt('nopoll', 0): return None
        tests = ['v_subrev_u32 %s, %s, %s' % (r, stag, r) for r in regs] + ['v_max_u32 %s, %s, %s' % (regs[0], regs[0], r) for r in regs[1:]]
        tests += ['v_cmp_le_u32 vcc, %d, %s' % (lim, regs[0])]
        return self.spin(loads, 'vmcnt(0)', tests, opt('gsleep', 10))
    def signal(self, base, k):
        return self.U(['v_mov_b32 v28, %d' % k, 'ds_write_b32 v26, v28 offset:%d' % (base - SYM)])
    def sread(self, base): return 'ds_read_b128 v[28:31], v27 offset:%d' % (base - SYM)
    def scheck(self, base, k):
        tests = ['v_min_u32 v28, v28, v29', 'v_min3_u32 v28, v28, v30, v31', 'v_cmp_gt_u32 vcc, %d, v28' % k]
        return self.spin([self.sread(base)], 'lgkmcnt(0)', tests, opt('lsleep', 1))
    def sread1(self, base): return 'ds_read_b32 v28, v26 offset:%d' % (base - SYM)
    def scheck1(self, base, k):
        return self.spin([self.sread1(base)], 'lgkmcnt(0)', ['v_cmp_gt_u32 vcc, %d, v28' % k], opt('lsleep', 1))
    def chtab(self, regs, shift):
        e = self.e
        e('s_mov_b32 s77, %s' % sROT)
        for p in range(7):
            e('s_lshl_b32 %s, s77, %d' % (regs[p], shift))
            if p < 6: e('s_add_u32 s77, s77, 1'); e('s_cmp_eq_u32 s77, 7'); e('s_cselect_b32 s77, 0, s77')
    def srd(self, d, lo, n):
        e = self.e
        e('s_mov_b32 s%d, s%d' % (d, lo)); e('s_mov_b32 s%d, s%d' % (d + 1, lo + 1))
        e('s_mov_b32 s%d, %d' % (d + 2, n)); e('s_mov_b32 s%d, 0x20000' % (d + 3))
    def tags(self):
        e = self.e
        e('v_readfirstlane_b32 s77, v24')
        e('s_add_u32 %s, s77, 1' % sEN); e('s_mul_i32 s77, s77, 0x9E3779B1')
        e('s_add_u32 %s, s77, 0x7F4A7C15' % sT1); e('s_add_u32 %s, %s, 1' % (sT2, sT1))
        e('v_mov_b32 v24, %s' % sT1)
    def xread_addrs(self, b):
        e = self.e
        e('v_bfe_u32 v%d, v1, 1, 3' % b); e('v_xor_b32 v%d, v%d, v5' % (b, b)); e('v_lshlrev_b32 v%d, 4, v%d' % (b, b))
        e('v_lshl_add_u32 v%d, v6, 7, v%d' % (b, b)); e('v_add_u32 v%d, s50, v%d' % (b, b))
        for tt in range(1, 4): e('v_xor_b32 v%d, %d, v%d' % (b + tt, 32 * tt, b))
    def ifnb0(self, label):
        self.e('s_cmp_lg_u32 %s, 0' % sNB); self.e('s_cbranch_scc1 %s' % label); self.cond_begin()
    def endc(self, label):
        self.cond_end(); self.raw(label + ':')
    def finish(self, role):
        if DIAG:
            e = self.e
            self.raw('    s_waitcnt vmcnt(0)')
            self.stamp('end')
            self.raw('    s_memrealtime s[98:99]\n    s_waitcnt lgkmcnt(0)\n    v_writelane_b32 v0, s98, 63\n    v_writelane_b32 v0, s94, 62\n    v_writelane_b32 v0, s80, 0')
            e('s_lshl_b32 s77, s2, 3'); e('s_add_u32 s77, s77, %s' % sW); e('s_lshl_b32 s77, s77, 8'); e('s_add_u32 s77, s77, %d' % (DIAGB + 1024 * role))
            e('v_lshlrev_b32 v2, 2, v1')
            e('buffer_store_dword v0, v2, %s, s77 offen' % SWS)
        self.raw('    s_endpgm')

c = Role(); e = c.e
c.raw('%s_kernel:' % NAME)
e('s_cmp_ge_u32 s2, %d' % NWG)
e('s_cbranch_scc1 L_end')
if DIAG: c.raw('    s_memrealtime s[98:99]\n    s_waitcnt lgkmcnt(0)\n    s_mov_b32 s94, s98\n    s_memtime s[98:99]\n    s_waitcnt lgkmcnt(0)\n    s_mov_b32 s80, s98')
c.raw('    s_load_dwordx16 s[48:63], s[0:1], 0\n    s_load_dwordx8 s[64:71], s[0:1], 64')
e('v_lshrrev_b32 v2, 6, v0')
e('v_and_b32 v1, 63, v0')
e('v_readfirstlane_b32 s79, v2')
e('s_cmp_ge_u32 s2, 224')
e('s_cbranch_scc1 L_aux')
e('s_getpc_b64 s[96:97]')
c.raw('L_pc:')
e('v_lshlrev_b32 v2, 7, v0')
e('v_min_u32 v2, L_end-L_pc, v2')
e('v_mov_b32 v3, s97')
e('v_add_co_u32 v2, vcc, s96, v2')
e('v_addc_co_u32 v3, vcc, 0, v3, vcc')
c.raw('    global_load_dword v143, v[2:3], off')
e('s_and_b32 s77, s2, 7'); e('s_lshr_b32 s78, s2, 3')
e('s_and_b32 %s, s77, 1' % sHALF); e('s_lshr_b32 s77, s77, 1'); e('s_lshl_b32 s77, s77, 2')
e('s_and_b32 %s, s78, 3' % sMB); e('s_add_u32 %s, %s, s77' % (sMB, sMB))
e('s_lshr_b32 %s, s78, 2' % sNT); e('s_mul_i32 %s, %s, 7' % (sNB, sHALF)); e('s_add_u32 %s, %s, %s' % (sNB, sNB, sNT))
e('s_and_b32 %s, s79, 3' % sW)
e('s_and_b32 s77, s78, 3'); e('s_lshl_b32 s77, s77, 1'); e('s_add_u32 s77, s77, %s' % sNT); e('s_sub_u32 s78, s77, 7'); e('s_cmp_ge_u32 s77, 7'); e('s_cselect_b32 %s, s78, s77' % sROT)
if not opt('rot', 1): e('s_mov_b32 %s, 0' % sROT)
e('s_lshl_b32 %s, %s, 2' % (sSQ, sMB)); e('s_add_u32 %s, %s, %s' % (sSQ, sSQ, sW))
e('v_lshrrev_b32 v2, 3, v1'); e('v_and_b32 v3, 7, v1'); e('v_lshrrev_b32 v4, 4, v1'); e('v_lshrrev_b32 v5, 5, v1')
e('v_and_b32 v6, 31, v1'); e('v_lshlrev_b32 v7, 4, v1'); e('v_and_b32 v8, 15, v1')
e('v_mov_b32 v27, %d' % SYM); e('s_lshl_b32 s78, %s, 2' % sW); e('v_add_u32 v26, s78, v27')
e('s_cmp_lt_u32 s79, 4') if opt('fftfirst', 1) else e('s_cmp_ge_u32 s79, 4')
e('s_cbranch_scc1 L_fft')

F1ADDR = ['s_lshl_b32 s77, %s, 12' % sW, 's_cmp_ge_u32 %s, 2' % sW, 's_mov_b32 s78, %d' % TT, 's_cselect_b32 s78, %d, s78' % (YX - 8192), 's_add_u32 s77, s77, s78', 'v_add_u32 v35, s77, v7']
m = Role(); e = m.e
e('s_setprio %d' % opt('mprio', 1))
e('v_xor_b32 v17, v3, v4'); e('v_lshlrev_b32 v17, 4, v17'); e('s_mov_b32 s77, %d' % (128 * 896)); e('v_mad_u32_u24 v9, v2, s77, v17')
e('v_xor_b32 v10, 64, v9'); e('v_add_u32 v10, %d, v10' % (1024 * 896 - 1024))
e('v_add_u32 v11, %d, v9' % (64 * 896 - 2048)); e('v_add_u32 v12, %d, v10' % (64 * 896 - 2048))
XCH = ['s%d' % (20 + p) for p in range(7)]
e('s_mul_i32 s100, %s, 896' % sSQ)
for u in range(4): e('v_add_u32 v%d, s100, v%d' % (9 + u, 9 + u))
m.chtab(XCH, 7)
e('s_lshl_b32 s101, %s, 12' % sW)
m.raw('    s_waitcnt lgkmcnt(0)')
m.srd(32, 48, 1835008)
def dma_x(p):
    return ['s_add_u32 m0, s101, %d' % (p * 16384)] + [('buffer_load_dwordx4 v%d, s[32:35], %s offen offset:%d lds' % (9 + u, XCH[p], 1024 * u), 'x%d' % p) for u in range(4)]
m.srd(8, 56, 1605632)
e('s_lshl_b32 s43, s2, 2'); e('s_add_u32 s43, s43, %s' % sW); e('s_mul_i32 s49, s43, 1152'); e('s_mul_i32 s43, s43, 1792'); e('v_lshlrev_b32 v23, 7, v1')
def upf(srd, soff, n, dst): return m.U(['s_mov_b64 exec, 0x%x' % ((1 << n) - 1), 'buffer_load_ubyte v%d, v23, %s, %s offen' % (dst, srd, soff), 's_mov_b64 exec, -1'])
W1AT = opt('w1at', 0)
for p in range(4):
    m.run(dma_x(p))
    if p == W1AT: m.run([upf(SW1, 's43', 14, 140)])
m.barrier()
for p in range(4, 7):
    m.run(dma_x(p))
    if p == W1AT: m.run([upf(SW1, 's43', 14, 140)])
m.stamp('xiss')
m.run([m.W('x3'), m.signal(SYX, 1)])
m.srd(16, 70, WS_SIZE); m.srd(36, 58, 3584)
m.srd(12, 60, 1605632); m.srd(28, 66, 1835008); m.srd(4, 50, 921600); m.srd(32, 52, 921600)
pf2 = [upf(SW2, 's43', 14, 141), upf('s[4:7]', 's49', 9, 142), upf('s[32:35]', 's49', 9, 139)]
if opt('pf2at', 0) == 0: m.run(pf2)
e('s_lshl_b32 s50, %s, 12' % sW); e('s_lshl_b32 s51, %s, 11' % sW)
e('v_and_b32 v17, 1, v4'); e('v_lshlrev_b32 v17, 2, v17'); e('v_xor_b32 v17, v3, v17'); e('v_lshlrev_b32 v17, 4, v17')
e('s_movk_i32 s77, 3584'); e('v_mad_u32_u24 v13, v2, s77, v17'); e('s_lshl_b32 s78, %s, 8' % sNB); e('v_add_u32 v13, s78, v13')
for u in range(1, 4): e('v_add_u32 v%d, %d, v13' % (13 + u, u * 27648))
m.xread_addrs(17)
def dma_w1(p):
    r = ['s_add_u32 s77, %s, %d' % (sW, 4 * p), 's_sub_u32 s78, s77, 14', 's_cmp_ge_u32 s77, 14', 's_cselect_b32 s77, s78, s77', 's_cselect_b32 s79, 128, 0',
         's_lshl_b32 s78, %s, 1' % sROT, 's_add_u32 s77, s77, s78', 's_sub_u32 s78, s77, 14', 's_cmp_ge_u32 s77, 14', 's_cselect_b32 s77, s78, s77',
         's_mul_i32 s77, s77, %d' % (32 * 3584), 's_add_u32 s60, s77, s79', 's_add_u32 m0, s50, %d' % (p * 16384)]
    return r, [('buffer_load_dwordx4 v%d, %s, s60 offen offset:%d lds' % (13 + u, SW1, 1024 * u), 'w1_%d' % p) for u in range(4)]
CH = ['s4', 's5', 's6', 's7', 's40', 's41', 's42']
CW = XCH
setup0 = ['s_lshl_b32 %s, %s, 6' % (CH[k], XCH[k]) for k in range(7)] + ['s_mul_i32 %s, %s, 896' % (CW[k], XCH[k]) for k in range(7)]
setup = []
setup += ['v_bfe_u32 v21, v1, 2, 2', 'v_lshl_add_u32 v21, v5, 3, v21', 'v_lshlrev_b32 v21, 7, v21', 'v_bfe_u32 v22, v1, 3, 1', 'v_lshl_add_u32 v21, v22, 6, v21',
          'v_bfe_u32 v22, v1, 4, 1', 'v_lshl_add_u32 v21, v22, 5, v21', 'v_and_b32 v22, 3, v1', 'v_lshl_add_u32 v21, v22, 3, v21', 'v_xor_b32 v22, 64, v21',
          'v_lshlrev_b32 v128, 16, v25', 'v_and_b32 v129, 0xffff0000, v25', 'v_lshlrev_b32 v130, 3, v1', 'v_add_u32 v130, %d, v130' % B1L, 'ds_write_b64 v130, v[128:129]',
          'v_lshlrev_b32 v130, 4, v5', 'v_add_u32 v130, %d, v130' % B1L]
for j in range(4):
    for q in range(4): setup.append('ds_read_b128 %s, v130 offset:%d' % (v(32 + 16 * j + 4 * q, 4), (32 * j + 8 * q) * 4))
setup.append(m.tags)
setup2 = setup0 + ['s_mul_i32 s53, %s, 896' % sHALF, 's_lshl_b32 s78, %s, 4' % sW, 's_add_u32 s53, s53, s78', 's_mul_i32 s53, s53, 896', 's_lshl_b32 s78, %s, 7' % sNT, 's_add_u32 s53, s53, s78',
          'v_lshlrev_b32 v9, 1, v4', 'v_xor_b32 v9, v3, v9', 'v_lshl_add_u32 v9, v9, 4, s53', 's_movk_i32 s78, 896', 'v_mad_u32_u24 v9, v2, s78, v9', 'v_add_u32 v10, 6144, v9',
          'v_add_u32 v11, %d, v9' % (64 * 896), 'v_add_u32 v12, %d, v10' % (64 * 896),
          'v_mov_b32 v23, %s' % fl(-0.1029432397),
          's_mul_i32 s58, %s, 56' % sSQ, 's_lshl_b32 s78, %s, 2' % sNB, 's_add_u32 s58, s58, s78', 's_lshl_b32 s58, s58, 11', 's_add_u32 s58, s58, %d' % HB, 's_add_u32 s59, s58, 4096',
          's_lshl_b32 s61, %s, 4' % sSQ, 's_add_u32 s61, s61, %s' % sNB, 's_lshl_b32 s61, s61, 7', 's_add_u32 s61, s61, %d' % FL2,
          's_lshl_b32 s62, %s, 4' % sMB, 's_add_u32 s62, s62, %s' % sNB, 's_lshl_b32 s62, s62, 2', 's_add_u32 s62, s62, %s' % sW,
          's_lshl_b32 s63, s62, 12', 's_add_u32 s63, s63, %d' % PXB,
          's_lshr_b32 s78, %s, 1' % sW, 's_lshl_b32 s79, %s, 2' % sMB, 's_add_u32 s78, s78, s79', 's_lshl_b32 s79, %s, 1' % sHALF, 's_add_u32 s55, s78, s79', 's_xor_b32 s54, s55, 2',
          's_lshl_b32 s65, s78, 4', 's_mul_i32 s79, %s, 7' % sHALF, 's_add_u32 s65, s65, s79', 's_lshl_b32 s65, s65, 7', 's_add_u32 s65, s65, %d' % FL2,
          's_mov_b32 s64, s55', 's_mul_i32 s79, %s, 28' % sHALF, 's_and_b32 s78, %s, 1' % sW, 's_lshl_b32 s78, s78, 8', 's_add_u32 s78, s78, %d' % HB]
for r in (54, 55): setup2 += ['s_mul_i32 s%d, s%d, 56' % (r, r), 's_add_u32 s%d, s%d, s79' % (r, r), 's_lshl_b32 s%d, s%d, 11' % (r, r), 's_add_u32 s%d, s%d, s78' % (r, r)]
setup3 = ['v_lshlrev_b32 v13, 4, v8', 'v_lshl_add_u32 v13, v4, 9, v13', 'v_add_u32 v15, s55, v13', 'v_add_u32 v13, s54, v13', 'v_add_u32 v14, 4096, v13', 'v_add_u32 v16, 4096, v15',
          'v_bfe_u32 v17, v1, 2, 2', 'v_lshl_add_u32 v17, v5, 4, v17', 'v_bfe_u32 v18, v1, 4, 1', 'v_lshl_add_u32 v17, v18, 2, v17', 'v_lshlrev_b32 v17, 7, v17',
          'v_bfe_u32 v18, v1, 3, 2', 'v_lshl_add_u32 v17, v18, 5, v17', 'v_and_b32 v18, 3, v1', 'v_lshl_add_u32 v17, v18, 3, v17', 'v_add_u32 v17, %d, v17' % CB]
setup3 += ['v_xor_b32 v%d, %d, v17' % (17 + ct, 32 * ct) for ct in range(1, 4)]
setup3 += ['v_lshlrev_b32 v5, 2, v1', 'v_min_u32 v25, 6, v3', 'v_and_b32 v6, 1, v2', 'v_lshl_add_u32 v25, v6, 5, v25', 'v_lshlrev_b32 v25, 7, v25']
for k in range(1, 4): setup3.append('s_add_u32 s%d, s65, %d' % (67 + k, 0x20000 * k))
e('v_lshlrev_b32 v12, 2, v1'); e('s_lshl_b32 s78, %s, 8' % sNB)
e('buffer_load_dword v24, off, %s, 0 sc1' % SWS); e('buffer_load_dword v25, v12, %s, s78 offen' % SB1)
def xrd(p): return [('ds_read_b128 %s, v%d offset:%d' % (ag(16 * p + 4 * tt, 4), 17 + tt, (p % 4) * 16384), 'xr%d' % p) for tt in range(4)]
m.run(xrd(0) + xrd(1) + xrd(2) + xrd(3) + [m.W('x6'), m.signal(SYX, 2), m.sread1(SYF)])
for tt in range(4): e('v_add_u32 v%d, 65536, v%d' % (17 + tt, 17 + tt))
m.stamp('X6')
NR0 = opt('nr0', 2)
w1rest = []
for rr in range(7):
    pre, L = dma_w1(rr)
    if rr < NR0:
        m.run(pre)
        if rr == 0: m.run([m.scheck1(SYF, 4)] + xrd(4) + xrd(5) + xrd(6))
        m.run([m.L('xr%d' % rr)] + L)
    else:
        if rr == 4: pre = [m.sread1(SYF)] + pre + [m.scheck1(SYF, 7)]
        w1rest.append([m.U(pre + [L[0]])] + L[1:])
if opt('pf2at', 0) == 1: m.run(pf2)
m.run(setup)
m.stamp('Xend')
K0 = fl(-2.302208198)
PK = opt('pk', 0)
def gelu(j, tb, pk=0):
    r = []; A = 32 + 16 * j
    for h in range(2):
        for q in range(2):
            X = [A + 8 * h + 4 * q + i for i in range(4)]; T = [tb + 4 * q + i for i in range(4)]
            if pk:
                P = [(v(T[0], 2), v(X[0], 2)), (v(T[2], 2), v(X[2], 2))]
                r += ['v_pk_mul_f32 %s, %s, %s' % (t, x, x) for t, x in P]
                r += ['v_pk_fma_f32 %s, %s, s[66:67], s[66:67] op_sel:[0,0,1] op_sel_hi:[1,0,1]' % (t, t) for t, x in P]
                r += ['v_pk_mul_f32 %s, %s, %s' % (t, t, x) for t, x in P]
                r += ['v_exp_f32 v%d, v%d' % (t, t) for t in T]
                r += ['v_pk_add_f32 %s, %s, 1.0 op_sel_hi:[1,0]' % (t, t) for t, x in P]
                r += ['v_rcp_f32 v%d, v%d' % (t, t) for t in T]
                r += ['v_pk_mul_f32 %s, %s, %s' % (x, t, x) for t, x in P]
            else:
                r += ['v_mul_f32 v%d, v%d, v%d' % (t, x, x) for t, x in zip(T, X)]
                r += ['v_fmaak_f32 v%d, v%d, v23, %s' % (t, t, K0) for t in T]
                r += ['v_mul_f32 v%d, v%d, v%d' % (t, t, x) for t, x in zip(T, X)]
                r += ['v_exp_f32 v%d, v%d' % (t, t) for t in T]
                r += ['v_add_f32 v%d, 1.0, v%d' % (t, t) for t in T]
                r += ['v_rcp_f32 v%d, v%d' % (t, t) for t in T]
                r += ['v_mul_f32 v%d, v%d, v%d' % (x, t, x) for t, x in zip(T, X)]
            r += ['v_cvt_pk_bf16_f32 v%d, v%d, v%d' % (A + 8 * h + 2 * q + i, X[2 * i], X[2 * i + 1]) for i in range(2)]
        r.append(('buffer_store_dwordx4 %s, v7, %s, %s offen offset:%d%s' % (v(A + 8 * h, 4), SWS, 's58' if j < 2 else 's59', (j & 1) * 2048 + h * 1024, '' if opt('hsp', 0) else ' sc1'), 'h%d' % j))
        if opt('hdbl', 0): r.append((r[-1][0].replace(' sc1', ''), 'h%d' % j))
    return r
setup3 += ['s_mov_b32 s66, %s' % fl(-0.1029432397), 's_mov_b32 s67, %s' % K0]
def w2_lds(mm, late):
    k = mm + 7 * late
    if k < 3: return CB + 8192 * k
    return 8192 * (k - 3)
def dma_w2(mm, late):
    tag = 'w2a' if mm + 7 * late < 10 else 'w2b'
    L = [('buffer_load_dwordx4 v%d, %s, %s offen offset:%d lds' % (9 + 2 * late + u, SW2, CW[mm], 1024 * u), tag) for u in range(2)]
    return [m.U(['s_add_u32 m0, s51, %d' % w2_lds(mm, late), L[0]]), L[1]]
def trG(i):
    r = []
    if i == 28: r += ['v_add_u32 v21, %d, v21' % W1H1, 'v_add_u32 v22, %d, v22' % W1H1]
    return r + ['ds_read_b64_tr_b16 %s, v%d offset:%d' % (v(96 + 8 * (i % 4) + 4 * j + 2 * aa, 2), 21 + j, 2048 * (i % 28) + 512 * aa) for j in range(2) for aa in range(2)]
def g1(i, j):
    d = v(32 + 16 * (2 * (i // 28) + j), 16)
    return 'v_mfma_f32_32x32x16_bf16 %s, %s, %s, %s' % (d, v(96 + 8 * (i % 4) + 4 * j, 4), ag(4 * (i % 28), 4), d)
def hflag(j): return [m.W('h%d' % j), m.flag('v24', 's61'), 's_add_u32 s61, s61, 0x20000']
m.run([m.W('w1_0'), m.signal(SYM, 1), m.sread(SYM), m.scheck(SYM, 1)])
m.run(trG(0) + trG(1))
SYNC = {8: 1, 16: 3, 32: 6}
def g1_items(lo, hi):
    main = []
    for i in range(lo, hi):
        rd = trG(i + 2) if i + 2 < 56 else [None] * 4
        pre = []
        if i + 5 in SYNC: pre = [m.W('w1_%d' % SYNC[i + 5]), m.signal(SYM, SYNC[i + 5] + 1)]
        if i + 4 in SYNC: pre = [m.sread(SYM)]
        if i + 2 in SYNC: pre = [m.scheck(SYM, SYNC[i + 2] + 1)]
        if i == 17: pre = [m.sread(SYF)]
        if i == 19: pre = [m.scheck(SYF, 7)]
        if i == 31: pre = [m.signal(SYM2, 1)]
        if i == 32: pre = [m.sread(SYM2)]
        if i == 33: pre = [m.scheck(SYM2, 1)]
        if i == opt('hf0', 50): pre = hflag(0)
        if i in (1, 8, 14, 18, 24, 34, 40, 46): pre = pre + [m.S('g1_%d' % i)]
        main.append(m.U(pre + [g1(i, 0)] + rd[:-2])); main.append(m.U([g1(i, 1)] + rd[-2:]))
    return main
w2c = dma_w2(0, 0) + dma_w2(1, 0) + dma_w2(2, 0)
m.run(weave(g1_items(0, 28), (sum(w1rest[:-3], []), 0, 12), (sum(w1rest[-3:], []), opt('r4lo', 14), opt('r4hi', 34)), ((pf2 if opt('pf2at', 0) == 2 else []) + setup2, 34, 46), (w2c, 46, 56)))
m.run(setup3)
m.stamp('G1a')
w2a = []
for k in range(3, 10): w2a += dma_w2(k % 7, k // 7)
GE = opt('ge', 48)
m.run(weave(g1_items(28, 56), (gelu(0, 128, PK > 1) + gelu(1, 136, PK > 1), 0, GE), (w2a, 12, 56)))
m.stamp('G1b')
m.run([m.signal(SYM2, 2), m.sread(SYM2)])
def p2(j): return 'buffer_load_dword v6, v25, %s, %s offen %s' % (SWS, ['s65', 's68', 's69', 's70'][j], PSC)
def hcheck(j): return m.poll([p2(j)], ['v6'], sT1, 1)
g2 = gelu(2, 128, PK); n2 = len(g2)
w2b = []
for mm in range(3, 7): w2b += dma_w2(mm, 1)
m.run(g2[:n2 // 5] + [m.scheck(SYM2, 2)] + weave(g2[n2 // 5:n2 * 3 // 4], w2b) + [m.W('h1'), p2(0)] + hflag(1)[1:] + g2[n2 * 3 // 4:])
m.stamp('gelu2')
MERGE = opt('merge', 2)
steps = [(mm, j, (0, 1)) for j in range(MERGE) for mm in range(7)] + [(mm, j, (0,)) for j in range(MERGE, 4) for mm in range(7)] + \
        [(mm, j, (1,)) for j in range(MERGE, 4) for mm in range(7)]
loads = [(i, p) for i, st in enumerate(steps) for p in st[2]]
lidx = {x: k for k, x in enumerate(loads)}
NH = 28; NS = len(steps)
def h_load(k):
    i, p = loads[k]; mm, j, _ = steps[i]
    return 'buffer_load_dwordx4 %s, v%d, %s, %s offen offset:%d%s' % (ag(4 * (k % NH), 4), 13 + 2 * p + (j >> 1), SWS, CH[mm], 2048 * (j & 1), '' if opt('hlp', 0) else ' sc1')
def trD(i):
    mm, j, _ = steps[i]
    ad = w2_lds(mm, j >> 1) + 4096 * (j & 1)
    base, ar = (CB, 17) if ad >= CB else ((0, 64) if ad < W1H1 else (W1H1, 68))
    return ['ds_read_b64_tr_b16 %s, v%d offset:%d' % (v(96 + 16 * (i % 3) + 4 * ct + 2 * aa, 2), ar + ct, ad - base + 1024 * aa) for ct in range(4) for aa in range(2)]
started = set()
def mfD(i):
    r = []
    for p in steps[i][2]:
        for ct in range(4):
            d = v(32 + 16 * p + 4 * ct, 4)
            r.append('v_mfma_f32_16x16x32_bf16 %s, %s, %s, %s' % (d, v(96 + 16 * (i % 3) + 4 * ct, 4), ag(4 * (lidx[(i, p)] % NH), 4), d if p in started else '0'))
        started.add(p)
    return r
first_lvl = {j: min(k for k, (i, p) in enumerate(loads) if steps[i][1] == j) for j in range(4)}
issued = 0
PLEAD = opt('plead', 5)
def issue_upto(n, fill):
    global issued
    while issued < min(n, len(loads)):
        for j in range(1, 4):
            if first_lvl[j] == issued: fill.append(hcheck(j))
            if j > 1 and first_lvl[j] - PLEAD == issued: fill.append(p2(j))
        fill.append(h_load(issued)); issued += 1
g3 = gelu(3, 136, PK)
k3 = len(g3) * opt('c0at', 70) // 100
fl0 = []; issue_upto(first_lvl[1], fl0)
if opt('l0early', 0):
    st3 = [y for y in g3 if isinstance(y, tuple)]; g3 = [y for y in g3 if not isinstance(y, tuple)]; k3 = len(g3) * opt('l0early', 0) // 100
    m.run(g3[:k3] + [m.S('gelu3'), hcheck(0), m.S('chk0')] + weave(g3[k3:], fl0) + st3 + [m.S('L0iss'), p2(1)] + hflag(2))
else:
    m.run(g3[:k3] + hflag(2) + g3[k3:] + [m.S('gelu3'), hcheck(0), m.S('chk0'), p2(1)] + fl0 + [m.S('L0iss')] + hflag(3)[:2])
for ct in range(4): e('v_subrev_u32 v%d, %d, v%d' % (64 + ct, CB, 17 + ct)); e('v_subrev_u32 v%d, %d, v%d' % (68 + ct, CB - W1H1, 17 + ct))
m.run([m.signal(SYM2, 3), m.sread(SYM2), m.scheck(SYM2, 3)])
m.run(trD(0) + trD(1))
m.stamp('hiss')
last_p0 = max(i for i, st in enumerate(steps) if 0 in st[2])
LEAD = opt('lead', 10)
for i in range(NS):
    fill = []
    issue_upto(lidx[(i, steps[i][2][-1])] + 1 + LEAD, fill)
    if i == min(last_p0 + opt('pxd', 9), NS - 1): fill += [m.signal(SYM2, 4)]
    if opt('l0early', 0) and i == opt('hf3', 4): fill += hflag(3)[:2]
    if i == last_p0 + 1:
        PXR = [72, 73, 74, 76, 77, 78, 80, 81]
        fill += ['v_mov_b32 v%d, %s' % (r, sT1) for r in (75, 79, 83)]
        fill += ['v_cvt_pk_bf16_f32 v%d, v%d, v%d' % (PXR[k], 32 + 2 * k, 33 + 2 * k) for k in range(8)]
        fill += ['buffer_store_dwordx4 %s, v7, %s, s63 offen offset:%d sc1' % (v(72 + 4 * k, 4), SWS, 1024 * k) for k in range(3)]
    if i == NS - 6:
        fill += ['s_mov_b32 s78, %d' % (128 * 896), 'v_and_b32 v14, 1, v4', 'v_lshlrev_b32 v14, 5, v14', 'v_lshrrev_b32 v15, 1, v4', 'v_lshl_add_u32 v14, v15, 4, v14',
                 'v_mad_u32_u24 v14, v8, s78, v14',
                 's_and_b32 s66, %s, 1' % sW, 's_lshl_b32 s66, s66, 6', 's_add_u32 s66, s66, s64', 's_mul_i32 s66, s66, 896', 's_lshl_b32 s78, %s, 7' % sNT, 's_add_u32 s66, s66, s78',
                 's_mul_i32 s78, %s, 6144' % sW, 's_add_u32 s78, s78, %d' % RED, 'v_add_u32 v15, s78, v7',
                 's_lshl_b32 s78, %s, 6' % sW, 's_add_u32 s78, s78, %d' % GL, 'v_lshl_add_u32 v16, v8, 2, s78']
        assert issued == len(loads)
    rd = trD(i + 2) if i + 2 < NS else []
    m.run(weave(mfD(i), rd, fill))
    if i in (0, 6, 13, 20, last_p0, NS - 8): m.stamp('g2_%d' % i)
m.stamp('G2end')
m.barrier()
e('ds_read_b32 v13, v16')
for ct in range(4): e('ds_read_b128 %s, v15 offset:%d' % (v(64 + 4 * ct, 4), 1024 * ct))
e('v_sub_f32 v13, 1.0, v13')
for k in range(16): e('v_fmac_f32 v%d, v13, v%d' % (64 + k, 48 + k))
for k in range(8): e('v_cvt_pk_bf16_f32 v%d, v%d, v%d' % (80 + k, 64 + 2 * k, 65 + 2 * k))
for p in range(2):
    e('v_permlane16_swap_b32 v%d, v%d' % (80 + 4 * p, 82 + 4 * p)); e('v_permlane16_swap_b32 v%d, v%d' % (81 + 4 * p, 83 + 4 * p))
for p in range(2):
    e('buffer_store_dwordx4 %s, v14, %s, s66 offen offset:%d' % (v(80 + 4 * p, 4), SOUT, 64 * p))
e('s_or_b32 s77, s2, %s' % sW); e('s_cmp_lg_u32 s77, 0'); e('s_cbranch_scc1 L_fin'); m.cond_begin()
e('v_mov_b32 v2, %s' % sEN); e('s_mov_b64 exec, 1'); e('buffer_store_dword v2, off, %s, 0 sc1' % SWS); e('s_mov_b64 exec, -1')
m.endc('L_fin')
m.finish(0)

f = Role(); e = f.e
f.raw('L_fft:')
e('s_setprio %d' % opt('fprio', 2))
f.run([f.signal(SYM, 0)]); e('ds_write_b32 v26, v28 offset:%d' % (SYF - SYM)); e('ds_write_b32 v26, v28 offset:%d' % (SYM2 - SYM)); e('ds_write_b32 v26, v28 offset:%d' % (SYX - SYM))
f.run(['v_lshrrev_b32 v32, 1, v6', 's_lshl_b32 s77, %s, 4' % sNB, 'v_add_u32 v32, s77, v32', 'v_and_b32 v33, 1, v1', 'v_cvt_f32_u32 v34, v33',
     'v_mul_f32 v34, 0x3e800000, v34', 'v_lshl_add_u32 v35, v32, 1, v33', 'v_cmp_eq_u32 vcc, 1, v35', 'v_mov_b32 v35, 224',
     'v_cndmask_b32 v32, v32, v35, vcc', 'v_cndmask_b32 v34, v34, v28, vcc', 'v_cvt_f32_u32 v32, v32', 'v_mul_f32 v32, %s, v32' % fl(1.0 / 448),
     's_mul_i32 s77, %s, 112' % sW, 'v_lshl_add_u32 v35, v5, 3, s77', 'v_cvt_f32_u32 v35, v35', 'v_fmac_f32 v34, v32, v35', 'v_fract_f32 v34, v34',
     's_mul_i32 s77, %s, 7168' % sW, 's_add_u32 s77, s77, %d' % CB, 'v_add_u32 v35, s77, v7'])
def w1pf():
    f.raw('    s_waitcnt lgkmcnt(0)'); f.lg_done = len(f.lg)
    f.srd(28, 56, 1605632)
    e('v_lshrrev_b32 v36, 1, v1'); e('v_min_u32 v36, 27, v36'); e('v_mul_u32_u24 v36, 3584, v36'); e('v_and_b32 v37, 1, v1'); e('v_lshl_add_u32 v36, v37, 7, v36')
    e('s_and_b32 s77, %s, 15' % sSQ); e('s_mul_i32 s77, s77, %d' % (28 * 3584)); e('s_lshl_b32 s78, %s, 8' % sNB); e('s_add_u32 s77, s77, s78')
    f.raw('    buffer_load_ubyte v142, v36, s[28:31], s77 offen')
for tt in range(7):
    if tt == opt('w1pf', 9): w1pf()
    b = 40 + 12 * (tt & 1)
    for j in range(8): e('v_fmamk_f32 v%d, v32, %s, v34' % (b + j, fl(16.0 * tt + j)))
    for j in range(8): e('v_cos_f32 v%d, v%d' % (b + j, b + j))
    for j in range(4): e('v_cvt_pk_bf16_f32 v%d, v%d, v%d' % (b + 8 + j, b + 2 * j, b + 2 * j + 1))
    e('ds_write_b128 v35, %s offset:%d' % (v(b + 8, 4), 1024 * tt))
f.raw('    s_waitcnt lgkmcnt(0)'); f.lg_done = len(f.lg)
f.stamp('genC')
FCH = ['s%d' % (8 + p) for p in range(7)]
f.chtab(FCH, 12)
f.srd(16, 70, WS_SIZE); f.srd(20, 50, 921600); f.srd(24, 52, 921600); f.srd(40, 62, 896)
e('s_lshl_b32 s50, %s, 12' % sW)
e('v_add_u32 v13, %d, v7' % CB)
f.xread_addrs(9)
e('v_and_b32 v21, 1, v1'); e('v_lshlrev_b32 v22, 1, v21'); e('v_lshlrev_b32 v21, 31, v21'); e('v_or_b32 v21, 1.0, v21')
e('v_lshrrev_b32 v14, 1, v6'); e('v_lshl_add_u32 v22, v14, 4, v22'); e('v_lshl_add_u32 v22, v5, 10, v22')
e('s_lshl_b32 s77, %s, 2' % sW); e('s_add_u32 s77, s77, %d' % TT); e('v_add_u32 v22, s77, v22')
e('s_lshl_b32 s77, %s, 11' % sW); e('s_add_u32 s77, s77, %d' % TT); e('v_add_u32 v15, s77, v7')
e('v_lshlrev_b32 v16, 4, v8'); e('v_lshl_add_u32 v16, v4, 12, v16')
e('s_lshl_b32 s55, %s, 17' % sNB); e('s_add_u32 s55, s55, %d' % TB)
e('s_lshl_b32 s58, %s, 15' % sW); e('s_lshl_b32 s78, %s, 8' % sMB); e('s_add_u32 s58, s58, s78'); e('s_add_u32 s58, s58, s55'); e('s_add_u32 s59, s58, 16384')
gf1 = ['v_cvt_f32_u32 v32, v6', 'v_mul_f32 v32, 0x3d000000, v32', 'v_mul_u32_u24 v33, %s, v8' % sSQ,
     'v_bfe_u32 v34, v1, 4, 1', 's_lshr_b32 s79, %s, 5' % sSQ, 's_lshl_b32 s79, s79, 9', 'v_mad_u32_u24 v33, v34, s79, v33',
     'v_cvt_f32_u32 v33, v33', 'v_mul_f32 v33, 0x3a000000, v33', 'v_lshlrev_b32 v34, 3, v5', 'v_cvt_f32_u32 v34, v34', 'v_fmac_f32 v33, v32, v34']
for cc in range(2):
    for hq in range(2):
        for j in range(4): gf1.append('v_fmamk_f32 v%d, v32, %s, v33' % (36 + j, fl(16.0 * hq + 2 * j + cc)))
        for j in range(4): gf1 += ['v_sin_f32 v%d, v%d' % (40 + j, 36 + j), 'v_cos_f32 v%d, v%d' % (36 + j, 36 + j)]
        for j in range(2): gf1 += ['v_cvt_pk_bf16_f32 v%d, v%d, v%d' % (128 + 4 * cc + 2 * hq + j, 36 + 2 * j, 37 + 2 * j), 'v_cvt_pk_bf16_f32 v%d, v%d, v%d' % (136 + 4 * cc + 2 * hq + j, 40 + 2 * j, 41 + 2 * j)]
f.barrier()
cr = []
for p in range(7): cr += ['v_add_u32 v23, %s, v13' % FCH[p]] + ['ds_read_b128 %s, v23 offset:%d' % (ag(16 * p + 4 * tt, 4), 1024 * tt) for tt in range(4)]
f.run(weave(gf1[:-4], cr))
f.raw('    s_waitcnt vmcnt(0)')
f.run(gf1[-4:])
XB = [48, 64, 96, 112]
def f1_mfma(p):
    return ['v_mfma_f32_32x32x16_bf16 %s, %s, %s, %s' % (v(80, 16), v(XB[p & 3] + 4 * tt, 4), ag(16 * p + 4 * tt, 4), '0' if (p == 0 and tt == 0) else v(80, 16)) for tt in range(4)]
def fxr(p): return [('ds_read_b128 %s, v%d offset:%d' % (v(XB[p & 3] + 4 * tt, 4), 9 + tt, (p % 4) * 16384), 'xr%d' % p) for tt in range(4)]
f.run([f.sread1(SYX), f.scheck1(SYX, 1)])
f.stamp('x0')
f.run(fxr(0) + fxr(1) + weave(f1_mfma(0), fxr(2) + fxr(3)) + [f.sread1(SYX)] + ['v_add_u32 v%d, 65536, v%d' % (9 + tt, 9 + tt) for tt in range(4)])
f.run(f1_mfma(1) + [f.scheck1(SYX, 2), f.signal(SYF, 4)])
f.run(weave(f1_mfma(2), fxr(4) + fxr(5)) + weave(f1_mfma(3), fxr(6)) + f1_mfma(4) + f1_mfma(5) + [f.L('xr6'), f.signal(SYF, 7)] + f1_mfma(6))
e('buffer_load_dword v24, off, %s, 0 sc1' % SWS)
f.stamp('F1end')
for j in range(8): e('v_cvt_pk_bf16_f32 v%d, v%d, v%d' % (80 + j, 80 + 2 * j, 81 + 2 * j))
e('v_mfma_f32_32x32x16_bf16 %s, %s, %s, 0' % (v(32, 16), v(128, 4), v(80, 4)))
e('v_mfma_f32_32x32x16_bf16 %s, %s, %s, 0' % (v(48, 16), v(136, 4), v(80, 4)))
e('v_mfma_f32_32x32x16_bf16 %s, %s, %s, %s' % (v(32, 16), v(132, 4), v(84, 4), v(32, 16)))
e('v_mfma_f32_32x32x16_bf16 %s, %s, %s, %s' % (v(48, 16), v(140, 4), v(84, 4), v(48, 16)))
f.ifnb0('L_sp1')
for k in range(16): e('v_cvt_pk_bf16_f32 v%d, v%d, -v%d' % (64 + k, 32 + k, 48 + k))
f.endc('L_sp1')
for k in range(16): e('v_fmac_f32_dpp v%d, v%d, v21 quad_perm:[1,0,3,2] %s' % (32 + k, 48 + k, DP))
for k in range(0, 16, 2): e('v_cvt_pk_bf16_f32 v%d, v%d, v%d' % (48 + k // 2, 32 + k, 33 + k))
for k in range(0, 16, 2):
    off = (8 * (k >> 2) + (k & 3)) * 256
    e('ds_write_b16 v22, v%d offset:%d' % (48 + k // 2, off)); e('ds_write_b16_d16_hi v22, v%d offset:%d' % (48 + k // 2, off + 256))
f.ifnb0('L_sp2')
e('v_and_b32 v23, 1, v1'); e('s_mov_b32 s77, %d' % (TT - YX + 2)); e('v_mul_u32_u24 v23, s77, v23'); e('v_sub_u32 v23, v22, v23')
e('s_mov_b32 exec_lo, 3'); e('s_mov_b32 exec_hi, 3')
for k in range(16): e('ds_write_b32 v23, v%d offset:%d' % (64 + k, (8 * (k >> 2) + (k & 3)) * 256))
e('s_mov_b64 exec, -1')
f.endc('L_sp2')
f.run([f.signal(SYF, 8), f.sread(SYF)])
f.run([f.scheck(SYF, 8)])
e('ds_read_b128 %s, v15' % v(64, 4)); e('ds_read_b128 %s, v15 offset:1024' % v(68, 4))
e('buffer_store_dwordx4 %s, v16, %s, s58 offen sc1' % (v(64, 4), SWS), tag='T')
e('buffer_store_dwordx4 %s, v16, %s, s59 offen sc1' % (v(68, 4), SWS), tag='T')
f.ifnb0('L_sp3')
e('s_lshl_b32 s77, %s, 11' % sW); e('s_add_u32 s77, s77, %d' % YX); e('v_lshlrev_b32 v21, 8, v1'); e('v_add_u32 v22, s77, v21')
e('v_lshlrev_b32 v21, 11, v1'); e('s_lshl_b32 s77, %s, 14' % sW); e('s_lshl_b32 s78, %s, 7' % sMB); e('s_add_u32 s77, s77, s78'); e('s_add_u32 s77, s77, %d' % TVB)
e('s_mov_b64 exec, 0xff'); e('ds_read_b128 %s, v22' % v(72, 4))
e('buffer_store_dwordx4 %s, v21, %s, s77 offen sc1' % (v(72, 4), SWS), tag='T')
e('s_mov_b64 exec, -1')
f.endc('L_sp3')
f.stamp('Tst')
f.tags()
f.run([f.signal(SYF, 9)])
for k in range(16): e('v_mov_b32 v%d, 0' % (96 + k))
e('v_lshlrev_b32 v19, 1, v8'); e('s_mov_b32 s77, %d' % (256 * 450)); e('v_mad_u32_u24 v19, v4, s77, v19')
e('s_lshl_b32 s56, %s, 4' % sW); e('s_add_u32 s56, s56, %s' % sMB); e('s_mul_i32 s77, s56, 450'); e('s_lshl_b32 s78, %s, 5' % sNB); e('s_add_u32 s57, s77, s78')
wl = []
for k in range(8):
    wl += [f.U(['s_add_u32 s79, s57, %d' % ((16 * (k >> 2) + (k & 3)) * 28800), 'buffer_load_short_d16_hi v%d, v19, %s, s79 offen' % (96 + k, SWR)]),
           'buffer_load_short_d16_hi v%d, v19, %s, s79 offen' % (104 + k, SWI)]
psp = ['buffer_load_dwordx4 %s, v20, %s, s65 offen offset:%d sc1' % (v(128 + 4 * mt, 4), SWS, 256 * mt) for mt in range(2)]
def wsp():
    e('v_lshrrev_b32 v20, 2, v1'); e('v_lshlrev_b32 v20, 4, v20')
    f.ifnb0('L_sp4')
    e('s_lshl_b32 s65, %s, 9' % sSQ); e('s_add_u32 s65, s65, %d' % SPB)
    f.run(psp)
    f.endc('L_sp4')
e('s_lshl_b32 s60, %s, 2' % sNB); e('s_add_u32 s60, s60, %s' % sW); e('s_lshl_b32 s60, s60, 2'); e('s_and_b32 s77, %s, 3' % sMB); e('s_add_u32 s60, s60, s77')
e('s_lshl_b32 s60, s60, 3'); e('s_lshr_b32 s78, %s, 2' % sMB); e('s_add_u32 s60, s60, s78'); e('s_lshl_b32 s60, s60, 4'); e('s_add_u32 s60, s60, %d' % FL1)
e('s_lshl_b32 s62, %s, 2' % sNT); e('s_add_u32 s62, s62, s77'); e('s_lshl_b32 s62, s62, 1'); e('s_and_b32 s77, %s, 1' % sW); e('s_add_u32 s62, s62, s77'); e('s_lshl_b32 s62, s62, 3')
e('s_and_b32 s77, s2, 7'); e('s_add_u32 s62, s62, s77'); e('s_lshl_b32 s62, s62, 4')
e('s_lshr_b32 s77, %s, 1' % sW); e('s_lshl_b32 s77, s77, 13'); e('s_add_u32 s62, s62, s77'); e('s_add_u32 s62, s62, %d' % FL3)
e('s_lshr_b32 s77, %s, 3' % sMB); e('s_and_b32 s78, %s, 1' % sW); e('s_lshl_b32 s79, s78, 1'); e('s_add_u32 s77, s77, s79')
e('s_lshl_b32 s79, %s, 2' % sNB); e('s_add_u32 s77, s77, s79'); e('s_lshl_b32 s77, s77, 9'); e('s_add_u32 s63, s77, %d' % FL1)
e('v_and_b32 v9, 3, v1'); e('v_lshlrev_b32 v9, 7, v9'); e('v_bfe_u32 v10, v1, 2, 2'); e('v_lshl_add_u32 v9, v10, 4, v9')
gi = ['s_lshl_b32 s68, %s, 6' % sNT, 'v_add_u32 v80, s68, v8', 'v_cvt_f32_u32 v80, v80', 's_lshl_b32 s68, %s, 6' % sW, 'v_bfe_u32 v81, v1, 4, 1', 'v_lshl_add_u32 v81, v81, 1, v5', 'v_lshl_add_u32 v81, v81, 4, s68',
      'v_cvt_f32_u32 v81, v81', 'v_and_b32 v84, 1, v1', 'v_lshlrev_b32 v84, 31, v84', 'v_or_b32 v84, 0x3e803e80, v84', 'v_cmp_eq_u32 s[70:71], 0, v81']
gihead = list(gi)
for ct in range(4):
    gi += ['v_add_f32 v82, %s, v80' % fl(16.0 * ct), 'v_mul_f32 v82, %s, v82' % fl(1.0 / 448), 'v_mul_f32 v83, v82, v81', 'v_fract_f32 v83, v83']
    for cc in range(4):
        for q in range(4): gi.append('v_fmamk_f32 v%d, v82, %s, v83' % (88 + q, fl(4.0 * q + cc)))
        for q in range(4): gi += ['v_sin_f32 v%d, v%d' % (92 + q, 88 + q), 'v_cos_f32 v%d, v%d' % (88 + q, 88 + q)]
        for q in range(4): gi.append('v_cvt_pk_bf16_f32 v%d, v%d, -v%d' % (88 + q, 88 + q, 92 + q))
        if cc == 0: gi.append('v_cndmask_b32 v88, v88, v84, s[70:71]')
        for q in range(4): gi.append('v_accvgpr_write_b32 a%d, v%d' % (48 + 16 * cc + 4 * ct + q, 88 + q))
r = []
r += ['v_lshl_add_u32 v32, v8, 2, %s' % sW, 'v_cvt_f32_u32 v32, v32', 'v_mul_f32 v32, 0x3c000000, v32', 'v_lshlrev_b32 v34, 2, v4', 'v_cvt_f32_u32 v34, v34']
for mt in range(2):
    if mt: r.append('v_add_f32 v32, 0.5, v32')
    r.append('v_mul_f32 v33, v32, v34')
    for j in range(8): r.append('v_fmamk_f32 v%d, v32, %s, v33' % (40 + j, fl(16.0 * (j >> 2) + (j & 3))))
    for j in range(8): r += ['v_sin_f32 v%d, v%d' % (48 + j, 40 + j), 'v_cos_f32 v%d, v%d' % (40 + j, 40 + j)]
    for j in range(8):
        r += ['v_cvt_pk_bf16_f32 v%d, v%d, v%d' % (56 + (j & 3), 40 + j, 48 + j), 'v_cvt_pk_bf16_f32 v%d, -v%d, v%d' % (60 + (j & 3), 48 + j, 40 + j),
              'v_accvgpr_write_b32 a%d, v%d' % (8 * mt + j, 56 + (j & 3)), 'v_accvgpr_write_b32 a%d, v%d' % (16 + 8 * mt + j, 60 + (j & 3))]
gi = r + gi
if opt('nogen', 0): gi = ['s_sleep 1'] * 40 + [None] * 500
n1, n2, n3, n4 = opt('gi1', 90), opt('gi2', 200), opt('gi3', 240), opt('gi4', 302)
p1 = 'buffer_load_dword v10, v9, %s, s63 offen %s' % (SWS, PSC)
LO, HI = 's_setprio %d' % opt('flo', 0), 's_setprio %d' % opt('fhi2', 2)
HI3 = 's_setprio %d' % opt('fhi3', 2)
f.run([LO if opt('lo1', 1) else None] + gi[:n1] + [f.S('preWT'), f.W('T'), f.S('WT'), f.flag('v24', 's60'), LO, wsp] + weave(gi[n1:n2], (wl, 0, 60)) + [(p1, 'p1')] + gi[n2:n3] + [HI, f.S('prepollT'), f.W('p1'), f.S('p1back'), f.poll([p1], ['v10'], sT1, 1)])
f.stamp('pollT')
e('s_and_b32 s78, %s, 1' % sW); e('s_lshl_b32 s78, s78, 4'); e('s_add_u32 s78, s78, %s' % sMB)
e('s_lshl_b32 s77, s78, 12'); e('s_add_u32 s77, s77, s55')
for q in range(4): e('buffer_load_dwordx4 %s, v7, %s, s77 offen offset:%d sc1' % (v(32 + 4 * q, 4), SWS, 1024 * q))
e('s_lshl_b32 s61, %s, 1' % sMB); e('s_add_u32 s61, s61, %s' % sHALF); e('s_lshl_b32 s61, s61, 9'); e('s_add_u32 s61, s61, %d' % GB); e('v_lshlrev_b32 v11, 3, v1')
pg = 'buffer_load_dwordx2 v[12:13], v11, %s, s61 offen sc1' % SWS
e(pg)
f.ifnb0('L_sp5')
e('v_lshlrev_b32 v22, 26, v8'); e('v_lshl_add_u32 v22, v4, 7, v22'); e('s_lshl_b32 s77, s78, 11'); e('s_add_u32 s77, s77, %d' % TVB)
for q in range(4): e('buffer_load_dwordx4 %s, v22, %s, s77 offen offset:%d sc1' % (v(48 + 4 * q, 4), SWS, 512 * q))
f.run([f.poll(psp, ['v130', 'v134'], sT1, 1)])
e('v_cmp_ne_u32 vcc, 0, v8')
for mt in range(2):
    for c2 in range(2):
        e('v_lshlrev_b32 v%d, 16, v%d' % (136 + 4 * mt + 2 * c2, 128 + 4 * mt + c2)); e('v_and_b32 v%d, 0xffff0000, v%d' % (137 + 4 * mt + 2 * c2, 128 + 4 * mt + c2))
for k in range(8):
    mt, kk = k >> 2, k & 3
    sh0 = 'row_shl:%d' % (4 * kk) if kk else 'quad_perm:[0,1,2,3]'
    for ri in range(2):
        e('v_cndmask_b32_dpp v%d, v%d, v%d, vcc %s %s bound_ctrl:0' % (96 + 8 * ri + k, 136 + 4 * mt + ri, 96 + 8 * ri + k, sh0, DP))
        e('v_mov_b32_dpp v%d, v%d %s %s bound_ctrl:0' % (112 + 8 * ri + k, 138 + 4 * mt + ri, sh0, DP))
f.endc('L_sp5')
f.run(gi[n3:n4])
e(f.sread(SYF))
e('s_lshr_b32 s77, %s, 1' % sW); e('s_mul_i32 s66, s77, 0x80008000')
for kb in range(1, 4):
    e('s_mul_i32 s77, %s, %d' % (sW, kb)); e('s_and_b32 s77, s77, 3'); e('s_and_b32 s78, s77, 1'); e('s_lshl_b32 s%d, s78, 4' % (67 + kb))
    e('s_lshr_b32 s78, s77, 1'); e('s_xor_b32 s79, s77, s78'); e('s_lshl_b32 s79, s79, 31'); e('s_lshl_b32 s78, s78, 15'); e('s_or_b32 s%d, s79, s78' % (51 + kb))
e('v_lshlrev_b32 v22, 4, v8'); e('v_lshl_add_u32 v22, v4, 10, v22'); e('s_lshl_b32 s77, %s, 2' % sW); e('s_add_u32 s77, s77, %d' % YX); e('v_add_u32 v22, s77, v22')
e('v_add_u32 v23, %d, v7' % YX)
e('s_mov_b32 s77, %d' % (4 * 28672)); e('v_lshlrev_b32 v21, 4, v3'); e('v_mad_u32_u24 v21, v2, s77, v21')
e('s_mul_i32 s58, %s, 28672' % sW); e('s_mul_i32 s78, %s, 1792' % sMB); e('s_add_u32 s58, s58, s78')
e('s_lshl_b32 s78, %s, 7' % sNB); e('s_add_u32 s58, s58, s78'); e('s_add_u32 s58, s58, %d' % RB); e('s_add_u32 s59, s58, %d' % (32 * 28672))
e('s_lshl_b32 s77, %s, 11' % sW); e('s_add_u32 s77, s77, %d' % TT)
e('v_xor_b32 v14, v4, v3'); e('v_lshlrev_b32 v14, 4, v14'); e('v_lshl_add_u32 v14, v8, 7, v14'); e('v_add_u32 v14, s77, v14'); e('v_xor_b32 v15, 64, v14')
e('v_xor_b32 v16, v2, v3'); e('v_lshlrev_b32 v16, 4, v16'); e('v_lshl_add_u32 v16, v2, 7, v16'); e('v_add_u32 v16, s77, v16')
e('v_lshlrev_b32 v17, 14, v1')
e('v_mov_b32 v18, %s' % sMB); e('v_cvt_f32_u32 v18, v18'); e('v_mul_f32 v18, 0x3d000000, v18'); e('v_sin_f32 v19, v18'); e('v_cos_f32 v18, v18')
f.run([f.scheck(SYF, 9)])
f.stamp('preF2')
def F2_fwd(D, B):
    for q in range(4):
        if q >= 2:
            for k in range(4): e('v_xor_b32 v%d, s66, v%d' % (B + 4 * q + k, B + 4 * q + k))
        for mt in range(2):
            for part in range(2):
                d = v(D + 8 * mt + 4 * part, 4)
                e('v_mfma_f32_16x16x32_bf16 %s, %s, %s, %s' % (d, ag(16 * part + 8 * mt + 4 * (q & 1), 4), v(B + 4 * q, 4), '0' if q == 0 else d))
F2_fwd(64, 32)
f.ifnb0('L_sp6'); F2_fwd(80, 48); f.endc('L_sp6')
for k in range(8):
    zr = 64 + 8 * (k >> 2) + (k & 3)
    e('v_mul_f32 v%d, v%d, v%d' % (128 + k, zr, 96 + k)); e('v_mul_f32 v%d, v%d, v%d' % (136 + k, zr, 104 + k))
for k in range(8):
    zi = 68 + 8 * (k >> 2) + (k & 3)
    e('v_fma_f32 v%d, -v%d, v%d, v%d' % (128 + k, zi, 104 + k, 128 + k)); e('v_fmac_f32 v%d, v%d, v%d' % (136 + k, zi, 96 + k))
f.ifnb0('L_sp7')
for k in range(8):
    zr = 80 + 8 * (k >> 2) + (k & 3)
    e('v_fma_f32 v%d, -v%d, v%d, v%d' % (128 + k, zr, 120 + k, 128 + k)); e('v_fmac_f32 v%d, v%d, v%d' % (136 + k, zr, 112 + k))
for k in range(8):
    zi = 84 + 8 * (k >> 2) + (k & 3)
    e('v_fma_f32 v%d, -v%d, v%d, v%d' % (128 + k, zi, 112 + k, 128 + k)); e('v_fma_f32 v%d, -v%d, v%d, v%d' % (136 + k, zi, 120 + k, 136 + k))
f.endc('L_sp7')
for k in range(8): e('v_cvt_pk_bf16_f32 v%d, v%d, -v%d' % (128 + k, 128 + k, 136 + k))
for k in range(8): e('ds_write_b32 v22, v%d offset:%d' % (128 + k, (16 * (k >> 2) + (k & 3)) * 256))
f.run([f.S('F2fwd'), f.signal(SYF, 10), f.sread(SYF), f.scheck(SYF, 10), f.S('Ysync')])
for q in range(8): e('ds_read_b128 %s, v23 offset:%d' % (v(32 + 4 * q, 4), 1024 * q))
for q in range(8):
    kb, t = q >> 1, q & 1
    if kb:
        if kb != 2:
            for j in range(4): e('v_alignbit_b32 v%d, v%d, v%d, s%d' % ((32 + 4 * q + j,) * 3 + (67 + kb,)))
        for j in range(4): e('v_xor_b32 v%d, s%d, v%d' % (32 + 4 * q + j, 51 + kb, 32 + 4 * q + j))
    for mt in range(2):
        for part in range(2):
            d = v(64 + 8 * mt + 4 * part, 4)
            e('v_mfma_f32_16x16x32_bf16 %s, %s, %s, %s' % (d, v(32 + 4 * q, 4), ag(16 * part + 8 * mt + 4 * t, 4), '0' if q == 0 else d))
for mt in range(2):
    if mt:
        for k in range(4): e('v_mul_f32 v%d, v19, v%d' % (80 + k, 76 + k)); e('v_mul_f32 v%d, v19, v%d' % (84 + k, 72 + k))
        for k in range(4): e('v_fma_f32 v%d, v18, v%d, v%d' % (72 + k, 72 + k, 80 + k)); e('v_fma_f32 v%d, v18, v%d, -v%d' % (76 + k, 76 + k, 84 + k))
    for k in range(4): e('v_cvt_pk_bf16_f32 v%d, v%d, -v%d' % (128 + 4 * mt + k, 64 + 8 * mt + k, 68 + 8 * mt + k))
    e('ds_write_b128 v%d, %s' % (14 + mt, v(128 + 4 * mt, 4)))
for u in range(2): e('ds_read_b128 %s, v16 offset:%d' % (v(136 + 4 * u, 4), 1024 * u))
e(f.sread(SYM))
for u in range(2): e('buffer_store_dwordx4 %s, v21, %s, %s offen sc1' % (v(136 + 4 * u, 4), SWS, 's58' if u == 0 else 's59'), tag='R')
f.run([f.scheck(SYM, 1), f.poll([pg], ['v13'], sT1, 1), 'v_lshlrev_b32 v11, 2, v1', 'v_add_u32 v11, %d, v11' % GL, 'ds_write_b32 v11, v12'])
f.stamp('Rst')
e('s_lshl_b32 s77, %s, 1' % sHALF); e('s_lshl_b32 s64, %s, 2' % sMB); e('s_add_u32 s64, s64, s77')
gs = ['v_lshlrev_b32 v33, 2, v4', 'v_cvt_f32_u32 v33, v33', 's_lshr_b32 s77, %s, 1' % sW, 's_add_u32 s53, s64, s77', 's_xor_b32 s52, s53, 1',
      's_lshl_b32 s77, %s, 6' % sW, 's_add_u32 s77, s77, %d' % GL, 'v_lshl_add_u32 v34, v8, 2, s77', 'ds_read_b32 v25, v34']
for lam in range(2):
    gs += ['v_lshl_add_u32 v34, v8, 7, s%d' % (52 + lam), 'v_cvt_f32_u32 v34, v34', 'v_mul_f32 v34, 0x3a000000, v34', 'v_mul_f32 v35, v34, v33']
    for q in range(4): gs.append('v_fmamk_f32 v%d, v34, %s, v35' % (40 + q, fl(1.0 * q)))
    for q in range(4): gs += ['v_sin_f32 v%d, v%d' % (44 + q, 40 + q), 'v_cos_f32 v%d, v%d' % (40 + q, 40 + q)]
    for q in range(4): gs += ['v_cvt_pk_bf16_f32 v%d, v%d, -v%d' % (96 + 8 * lam + q, 40 + q, 44 + q), 'v_cvt_pk_bf16_f32 v%d, v%d, v%d' % (100 + 8 * lam + q, 44 + q, 40 + q)]
gs += ['v_sub_f32 v11, 1.0, v25', 'v_mul_f32 v25, %s, v25' % fl(1.0 / (224 * 2048))]
gs2 = ['s_and_b32 s77, s2, 7', 's_lshl_b32 s77, s77, 13', 's_add_u32 s63, s77, %d' % FL3, 's_lshl_b32 s77, %s, 2' % sW,
       'v_add_u32 v9, s77, v4', 'v_min_u32 v9, 13, v9', 'v_cmp_lt_u32 vcc, 6, v9', 'v_subrev_u32 v12, 7, v9', 'v_cndmask_b32 v9, v9, v12, vcc', 'v_lshlrev_b32 v9, 10, v9',
       'v_cndmask_b32 v12, 0, 16, vcc', 'v_add_u32 v9, v9, v12', 'v_and_b32 v12, 3, v1', 'v_lshl_add_u32 v9, v12, 8, v9', 'v_bfe_u32 v12, v1, 2, 2', 'v_lshl_add_u32 v9, v12, 5, v9',
       's_and_b32 s77, %s, 1' % sW, 's_lshl_b32 s77, s77, 6', 'v_lshlrev_b32 v10, 4, v8', 'v_xor_b32 v10, s77, v10', 's_movk_i32 s77, 7168', 'v_mad_u32_u24 v10, v4, s77, v10',
       's_lshl_b32 s66, %s, 9' % sW, 's_add_u32 s66, s66, %d' % RB, 's_cmp_eq_u32 %s, 3' % sW, 's_cselect_b32 s67, 0x40000000, 256']
gs2[-1] = 's_movk_i32 s67, 256'; gs2.append('s_cselect_b32 s67, 0x40000000, s67')
for lam in (1, 0):
    gs2 += ['s_mul_i32 s77, s%d, 28672' % (52 + lam), 's_add_u32 s%d, s77, s66' % (52 + 2 * lam), 's_add_u32 s%d, s%d, s67' % (53 + 2 * lam, 52 + 2 * lam)]
for q in range(4): gs2.append('s_add_u32 s%d, s%d, 3584' % (68 + q, 52 + q))
p3 = ['buffer_load_dword v12, v9, %s, s63 offen %s' % (SWS, PSC), 'buffer_load_dword v13, v9, %s, s63 offen offset:128 %s' % (SWS, PSC)]
flag3 = None if (opt('nopoll', 0) >= 2 or opt('onlyfl2', 0)) else f.U(['s_mov_b64 exec, 15', ('%s v24, v17, %s, s62 offen %s' % (FST, SWS, FSC), 'flag'), 's_mov_b64 exec, -1'])
gs = gs + gihead + gi[n4:]
k1 = opt('gs1', 70)
assert (n4 - 127) % 85 == 0 or True
gi2 = []
f.run([LO if opt('lo2', 1) else None] + gs[:k1] + [f.S('preWR'), f.W('R'), f.S('WR'), flag3, LO] + gs[k1:] + gi2 + gs2 + ['s_sleep %d' % opt('rsleep', 0) if opt('rsleep', 0) else None, HI3, p3[0], (p3[1], 'p3'), f.S('prepollR'), f.W('p3'), f.S('p3back')] + [f.poll(p3, ['v12', 'v13'], sT1, 1)])
f.stamp('pollR')
def raw(q, j): return ag(16 * q + 4 * j, 4) if q < 3 else v(112 + 4 * j, 4)
def R_load(q): return ['buffer_load_dwordx4 %s, v10, %s, s%d offen offset:%d sc1' % (raw(q, j), SWS, (52 if j < 2 else 68) + q, 1792 * (j & 1)) for j in range(4)]
f.run(R_load(0) + R_load(1) + R_load(2) + R_load(3))
e('s_xor_b32 s77, %s, 1' % sHALF); e('s_mul_i32 s77, s77, 7'); e('s_add_u32 s77, s77, %s' % sNT)
e('s_lshl_b32 s78, %s, 4' % sMB); e('s_add_u32 s77, s77, s78'); e('s_lshl_b32 s77, s77, 2'); e('s_add_u32 s77, s77, %s' % sW)
e('s_lshl_b32 s61, s77, 12'); e('s_add_u32 s61, s61, %d' % PXB)
e(f.sread(SYM2))
f.run([f.scheck(SYM2, 2)])
D4 = ((12, 16), (20, 28))
def FR(P, h): return 128 + 8 * (P & 1) + 4 * h
def RD(P, h):
    q, cc = 2 * (P >> 2) + h, P & 3
    return [('v_accvgpr_read_b32 v%d, a%d' % (FR(P, h) + j, 16 * q + 4 * j + cc)) if q < 3 else ('v_mov_b32 v%d, v%d' % (FR(P, h) + j, 112 + 4 * j + cc)) for j in range(4)]
def S4(P): return ['v_mfma_f32_16x16x32_bf16 %s, %s, %s, 0' % (v(D4[h][part], 4), v(FR(P, h), 4), v(96 + 8 * (P >> 2) + 4 * part, 4)) for h in range(2) for part in range(2)]
def CV(P): return ['v_cvt_pk_bf16_f32 v%d, v%d, v%d' % (FR(P, h) + j, D4[h][0] + j, D4[h][1] + j) for h in range(2) for j in range(4)] + \
                  ['v_permlane16_swap_b32 v%d, v%d' % (FR(P, 0) + j, FR(P, 1) + j) for j in range(4)]
def FD(P, h):
    A = 32 + 16 * (2 * (1 - (P >> 2)) + h); cc = P & 3
    return ['v_mfma_f32_16x16x32_bf16 %s, %s, %s, %s' % (v(A + 4 * ct, 4), ag(48 + 16 * cc + 4 * ct, 4), v(FR(P, h), 4), '0' if cc == 0 else v(A + 4 * ct, 4)) for ct in range(4)]
def ship(rho):
    P = 32 + 16 * rho
    return ['s_xor_b32 s77, %s, %d' % (sW, rho), 's_mul_i32 s77, s77, 6144', 's_add_u32 s77, s77, %d' % (RED + 2048 * (rho - 1)), 'v_add_u32 v9, s77, v7'] + \
           ['v_cvt_pk_bf16_f32 v%d, v%d, v%d' % (P + k, P + 2 * k, P + 2 * k + 1) for k in range(8)] + ['ds_write_b128 v9, %s' % v(P, 4), 'ds_write_b128 v9, %s offset:1024' % v(P + 4, 4)]
pxl = ['buffer_load_dwordx4 %s, v7, %s, s61 offen offset:%d sc1' % (v(64 + 4 * k, 4), SWS, 1024 * k) for k in range(3)]
f.run(RD(0, 0) + RD(0, 1) + S4(0) + RD(1, 0) + RD(1, 1) + CV(0))
for P in range(8):
    extra = []
    if P == 5: extra = ship(2)
    if P == 6: extra = ship(3)
    if P == 7: extra = ['v_lshlrev_b32 v10, 3, v4', 's_lshl_b32 s77, %s, 7' % sNT] + ['buffer_load_dwordx2 %s, v10, %s, s77 offen offset:%d' % (v(88 + 2 * ct, 2), SB2, 32 * ct) for ct in range(4)]
    nx = P + 1 < 8; n2x = P + 2 < 8
    main = (S4(P + 1) if nx else []) + FD(P, 1) + FD(P, 0)
    o = 4 if nx else 0
    f.run(weave(main, (extra, 0, o + 2), (CV(P + 1) if nx else [], o + 2, o + 8), (RD(P + 2, 1) if n2x else [], o + 4, o + 8)) + (RD(P + 2, 0) if n2x else []))
f.run(ship(1))
f.stamp('F3')
f.run([f.signal(SYF, 11)])
f.run([f.sread(SYF), f.scheck(SYF, 11)])
e('s_mul_i32 s77, %s, 6144' % sW); e('s_add_u32 s77, s77, %d' % RED); e('v_add_u32 v9, s77, v7')
for k in range(6): e('ds_read_b128 %s, v9 offset:%d' % (v(96 + 4 * k, 4), 1024 * k))
for s in range(3):
    for k in range(8):
        e('v_lshlrev_b32 v%d, 16, v%d' % (128 + 2 * k, 96 + 8 * s + k)); e('v_and_b32 v%d, 0xffff0000, v%d' % (129 + 2 * k, 96 + 8 * s + k))
    for k in range(16): e('v_add_f32 v%d, v%d, v%d' % (32 + k, 32 + k, 128 + k))
for k in range(16): e('v_mul_f32 v%d, v25, v%d' % (32 + k, 32 + k))
for k in range(8):
    e('v_lshlrev_b32 v%d, 16, v%d' % (128 + 2 * k, 88 + k)); e('v_and_b32 v%d, 0xffff0000, v%d' % (129 + 2 * k, 88 + k))
for k in range(16): e('v_fmac_f32 v%d, v11, v%d' % (32 + k, 128 + k))
f.stamp('red')
f.run([f.sread1(SYM2), f.scheck1(SYM2, 4)] + pxl)
f.run([f.poll(pxl, ['v67', 'v71', 'v75'], sT1, 1)])
f.stamp('px')
for k, r in enumerate([64, 65, 66, 68, 69, 70, 72, 73]):
    e('v_lshlrev_b32 v%d, 16, v%d' % (128 + 2 * k, r)); e('v_and_b32 v%d, 0xffff0000, v%d' % (129 + 2 * k, r))
for k in range(16): e('v_fmac_f32 v%d, v11, v%d' % (32 + k, 128 + k))
for ct in range(4): e('ds_write_b128 v9, %s offset:%d' % (v(32 + 4 * ct, 4), 1024 * ct))
f.wait_lg()
f.barrier()
f.finish(1)

x = Role(); e = x.e
x.raw('L_aux:')
e('s_and_b32 s44, s2, 1')
e('s_bfe_u32 s45, s2, 0x20001')
e('s_bfe_u32 s46, s2, 0x20003'); e('s_lshl_b32 s46, s46, 3'); e('s_add_u32 s46, s46, s79')
e('v_lshrrev_b32 v2, 4, v1'); e('v_and_b32 v3, 15, v1'); e('v_min_u32 v3, 13, v3'); e('v_lshlrev_b32 v3, 7, v3')
e('s_movk_i32 s77, 3584'); e('v_mad_u32_u24 v2, v2, s77, v3')
e('v_lshlrev_b32 v4, 7, v1')
e('v_lshrrev_b32 v5, 4, v1'); e('v_bfe_u32 v6, v1, 2, 2'); e('v_lshl_add_u32 v5, v5, 4, v6'); e('v_mul_u32_u24 v5, 450, v5')
e('v_and_b32 v6, 3, v1'); e('v_lshlrev_b32 v6, 7, v6'); e('v_min_u32 v6, 224, v6'); e('v_add_u32 v5, v5, v6')
e('s_mul_i32 s47, s44, 1792'); e('s_mul_i32 s77, s46, %d' % (4 * 3584)); e('s_add_u32 s47, s47, s77')
e('s_mul_i32 s72, s44, 802816'); e('s_lshl_b32 s77, s46, 13'); e('s_add_u32 s72, s72, s77')
e('s_lshl_b32 s73, s46, 6'); e('s_lshl_b32 s77, s45, 2'); e('s_add_u32 s73, s73, s77'); e('s_mul_i32 s73, s73, 450'); e('s_mul_i32 s77, s44, 224'); e('s_add_u32 s73, s73, s77')
x.raw('    s_waitcnt lgkmcnt(0)')
x.srd(8, 56, 1605632); x.srd(12, 60, 1605632); x.srd(20, 50, 921600); x.srd(24, 52, 921600)
e('v_mov_b32 v8, v2'); e('v_mov_b32 v9, v4'); e('s_mov_b32 s40, s47'); e('s_mov_b32 s41, s72'); e('s_mov_b32 s42, s73')
if opt('upf', 0):
    e('s_and_b32 s77, s2, 7'); e('s_lshl_b32 s78, s46, 3'); e('s_add_u32 s77, s77, s78'); e('s_lshl_b32 s77, s77, 13')
    e('buffer_load_ubyte v10, v9, %s, s77 offen' % SW1); e('buffer_load_ubyte v11, v9, %s, s77 offen' % SW2)
    e('s_xor_b32 s78, s77, 0x100000')
    e('buffer_load_ubyte v12, v9, %s, s77 offen' % SWR); e('buffer_load_ubyte v13, v9, %s, s78 offen' % SWI)
x.srd(4, 48, 1835008); x.srd(32, 64, 896); x.srd(16, 70, WS_SIZE)
e('buffer_load_dword v24, off, %s, 0 sc1' % SWS)
e('s_lshr_b32 s47, s46, 3'); e('s_lshl_b32 s77, s45, 2'); e('s_add_u32 s47, s47, s77'); e('s_lshl_b32 s47, s47, 1'); e('s_add_u32 s47, s47, s44')
e('s_and_b32 s77, s79, 1'); e('s_lshl_b32 s77, s77, 10'); e('s_bfe_u32 s78, s79, 0x10001'); e('s_lshl_b32 s78, s78, 6'); e('s_add_u32 s77, s77, s78')
e('s_lshr_b32 s78, s79, 2'); e('s_add_u32 s77, s77, s78'); e('s_lshl_b32 s78, s47, 1'); e('s_add_u32 s77, s77, s78'); e('s_mul_i32 s72, s77, 896')
e('v_lshrrev_b32 v2, 3, v1'); e('v_and_b32 v3, 7, v1'); e('v_lshlrev_b32 v3, 4, v3'); e('s_mov_b32 s77, %d' % (128 * 896)); e('v_mad_u32_u24 v4, v2, s77, v3')
for k in range(7):
    e('buffer_load_dwordx4 %s, v4, %s, s72 offen offset:%d' % (v(32 + 4 * k, 4), SX, 128 * k)); e('buffer_load_dwordx4 %s, v3, %s, 0 offen offset:%d' % (v(64 + 4 * k, 4), SGW, 128 * k))
e('s_and_b32 s77, s2, 3'); e('s_lshl_b32 s36, s77, 5'); e('s_add_u32 s36, s36, s46')
e('s_lshr_b32 s77, s36, 3'); e('s_bfe_u32 s78, s36, 0x20001'); e('s_lshl_b32 s78, s78, 4'); e('s_add_u32 s77, s77, s78'); e('s_and_b32 s78, s36, 1'); e('s_lshl_b32 s78, s78, 10'); e('s_add_u32 s77, s77, s78')
e('v_lshrrev_b32 v26, 2, v1'); e('v_lshl_add_u32 v27, v26, 6, s77'); e('v_sub_u32 v28, 2048, v27'); e('v_and_b32 v28, 2047, v28'); e('v_and_b32 v29, 1, v1'); e('v_cmp_eq_u32 vcc, 1, v29')
e('v_bfe_u32 v29, v1, 1, 1'); e('v_mul_u32_u24 v29, 448, v29'); e('v_cndmask_b32 v27, v27, v28, vcc'); e('s_movk_i32 s77, 450'); e('v_mad_u32_u24 v27, v27, s77, v29')
e('s_bitcmp1_b32 s2, 2'); e('s_cselect_b32 s37, 0x40000000, 0')
e('buffer_load_ushort v22, v27, %s, s37 offen' % SWR); e('buffer_load_ushort v23, v27, %s, s37 offen' % SWI)
pfl = []
for k in range(4 if opt('pfw1', 1) else 0): pfl.append(['buffer_load_ubyte v%d, v8, %s, s40 offen' % (10 + k, SW1), 's_add_u32 s40, s40, %d' % (128 * 3584)])
for k in range(3): pfl.append(['buffer_load_ubyte v%d, v9, %s, s41 offen' % (14 + k, SW2), 's_add_u32 s41, s41, %d' % (32 * 8192)])
pfl.append(['buffer_load_ubyte v18, v5, %s, s42 offen' % SWR, 'buffer_load_ubyte v19, v5, %s, s42 offen' % SWI])
pfl.append(['s_cmp_ge_u32 s46, 2', 's_cselect_b32 s41, 0x40000000, s41', 'buffer_load_ubyte v17, v9, %s, s41 offen' % SW2])
if opt('pft', 2):
    e('s_and_b32 s77, s2, 7'); e('s_lshl_b32 s78, s46, 3'); e('s_add_u32 s77, s77, s78'); e('s_lshl_b32 s77, s77, 13')
    e('s_add_u32 s78, s77, %d' % (FL2 - 0x20000)); e('s_cmp_ge_u32 s77, 0x20000'); e('s_cselect_b32 s77, s78, s77')
    e('s_cmp_ge_u32 s77, %d' % (TB if opt('pft', 2) > 1 else 0x20000)); e('s_cselect_b32 s77, 0x40000000, s77')
    e('buffer_load_ubyte v25, v9, %s, s77 offen' % SWS)
PFE = opt('pfe', 0)
for y in pfl[:PFE]: x.run(y)
e('v_mov_b32 v20, 0'); e('v_mov_b32 v21, 0')
x.stamp('iss')
x.tags()
x.stamp('E')
e('v_lshlrev_b32 v22, 16, v22'); e('v_lshlrev_b32 v23, 16, v23')
e('v_add_f32_dpp v28, v22, v22 quad_perm:[1,0,3,2] %s' % DP); e('v_subrev_f32_dpp v29, v23, v23 quad_perm:[1,0,3,2] %s' % DP)
e('v_cvt_pk_bf16_f32 v28, v28, v29'); e('v_mov_b32 v30, v24'); e('v_mov_b32 v31, v24'); e('v_mov_b32_dpp v29, v28 quad_perm:[2,2,2,2] %s' % DP)
e('v_lshlrev_b32 v26, 4, v26'); e('s_lshl_b32 s77, s36, 8'); e('s_add_u32 s77, s77, %d' % SPB); e('s_add_u32 s77, s77, s37')
e('s_mov_b32 exec_lo, 0x11111111'); e('s_mov_b32 exec_hi, 0x11111111')
e('buffer_store_dwordx4 v[28:31], v26, %s, s77 offen sc1' % SWS)
e('s_mov_b64 exec, -1')
x.stamp('sp')
for k in range(28): e('v_dot2c_f32_bf16 v%d, v%d, v%d' % (20 + (k & 1), 32 + k, 64 + k))
e('v_add_f32 v20, v20, v21')
e('v_add_f32_dpp v20, v20, v20 quad_perm:[1,0,3,2] %s' % DP); e('v_add_f32_dpp v20, v20, v20 quad_perm:[2,3,0,1] %s' % DP); e('v_add_f32_dpp v20, v20, v20 row_half_mirror %s' % DP)
e('v_mul_f32 v20, %s, v20' % fl(-1.4426950408889634)); e('v_exp_f32 v20, v20'); e('v_add_f32 v20, 1.0, v20'); e('v_rcp_f32 v20, v20'); e('v_mov_b32 v21, v24')
e('s_lshl_b32 s77, s47, 9'); e('s_lshl_b32 s78, s79, 6'); e('s_add_u32 s77, s77, s78'); e('s_add_u32 s77, s77, %d' % GB); e('v_lshlrev_b32 v2, 3, v2')
e('s_mov_b32 exec_lo, 0x01010101'); e('s_mov_b32 exec_hi, 0x01010101')
e('buffer_store_dwordx2 v[20:21], v2, %s, s77 offen sc1' % SWS)
e('s_mov_b64 exec, -1')
x.stamp('g')
if DIAG: x.wait_vm_all(); x.stamp('ack')
x.barrier()
if opt('pf', 0):
    for y in pfl[PFE:]: x.run(y)
if DIAG: e('s_mov_b32 %s, s79' % sW); x.finish(0)

hdr = open('cdna_kernels/%s.s.ref' % NAME).read().split('; Override')[0]
txt = hdr + '; @launch grid=(%d,1,1) block=(512,1,1) lds=%d\n' % (NWG, LDS_SIZE)
txt += '.amdgcn_target "amdgcn-amd-amdhsa--gfx950"\n.text\n.globl %s_kernel\n.p2align 8\n.type %s_kernel,@function\n' % (NAME, NAME)
txt += c.text() + m.text() + f.text() + x.text() + 'L_end:\n    s_endpgm\n'
txt += '''.section .rodata,"a"
.p2align 6
.amdhsa_kernel %s_kernel
  .amdhsa_next_free_vgpr 256
  .amdhsa_next_free_sgpr 102
  .amdhsa_accum_offset 144
  .amdhsa_group_segment_fixed_size 0
  .amdhsa_kernarg_size 96
  .amdhsa_user_sgpr_count 2
  .amdhsa_user_sgpr_kernarg_segment_ptr 1
  .amdhsa_system_sgpr_workgroup_id_x 1
.end_amdhsa_kernel
''' % NAME
out = [x for x in sys.argv[1:] if not x.startswith('--')]
open(out[0] if out else 'cdna_kernels/%s.s' % NAME, 'w').write(txt)
if DIAG: open('names.txt', 'w').write(repr([m.names, f.names, x.names]))
print('instrs mlp', sum(m.count.values()), 'fft', sum(f.count.values()), 'nops', m.nnop, f.nnop, file=sys.stderr)
```

```python
import sys
from asmlib import *

NAME = 'gated_mix__spectral_gfnet__dense_activation_gelu__prompt'
DIAG = '--diag' in sys.argv
def opt(name, default):
    for x in sys.argv:
        if x.startswith('--%s=' % name): return int(x.split('=')[1])
    return default
FL1, FL3, FL2 = 0x1000, 0x10000, 0x80000
GB = 0x8000
SPB = 0x40000
TVB = 0x50000

TB = 0x100000
RB = TB + 1835008
HB = RB + 1835008
PXB = HB + 7340032
DIAGB = PXB + 16 * 16 * 16384
WS_SIZE = DIAGB + (256 * 2048 if DIAG else 0)
W1H1 = 57344
CB = 122880
RED = 90112
YX = 114688
TT = 151552
TV = 159744
GW = 160256
B1L = 161280
GL = 161792
SYM = 162304; SYF = 162320; SYM2 = 162336; SYX = 162352
LDS_SIZE = 163840
SX, SW1, SW2, SWS, SWR, SWI, SOUT, SGW, SB1, SB2 = ['s[%d:%d]' % (i, i + 3) for i in range(4, 44, 4)]
sMB, sNB, sHALF, sNT, sW, sT1, sT2, sEN, sSQ = 's44', 's45', 's46', 's47', 's72', 's73', 's74', 's75', 's76'
sROT = 's3'
SPIN = 20000
FST = 'buffer_atomic_swap' if opt('atf', 0) else 'buffer_store_dword'
FSC = ['sc1', 'sc0 sc1', 'sc1 nt'][opt('fsc', 0)]
PSC = ['sc1', 'sc0 sc1', 'sc1 nt', 'nt', 'sc0 sc1 nt'][opt('psc', 0)]
NWG = 256 if opt('aux', 1) else 224
DP = 'row_mask:0xf bank_mask:0xf'
def v(i, n=1): return 'v%d' % i if n == 1 else 'v[%d:%d]' % (i, i + n - 1)
def ag(i, n=1): return 'a%d' % i if n == 1 else 'a[%d:%d]' % (i, i + n - 1)
lab = [0]

class Role(Asm):
    def __init__(self):
        super().__init__(); self.ns = 1; self.names = ['start']
    def stamp(self, name=''):
        if not DIAG: return
        assert self.ns < 60
        self.raw('    s_memtime s[98:99]\n    s_waitcnt lgkmcnt(0)\n    v_writelane_b32 v0, s98, %d' % self.ns); self.pos += 3
        self.names.append(name); self.ns += 1
    def S(self, name=''): return lambda: self.stamp(name)
    def W(self, tag): return lambda: self.wait_vm(tag)
    def L(self, tag=None): return lambda: self.wait_lg(tag)
    def U(self, items): return lambda: self.run(items)
    def flag(self, vtag, soff):
        if opt('nopoll', 0) >= 2: return None
        if opt('onlyfl2', 0) and soff != 's61': return None
        if opt('fullfl', 0) and soff == 's61':
            return self.U(['s_mov_b64 exec, 0x%x' % ((1 << opt('fullfl', 0)) - 1), ('buffer_store_dword %s, v5, %s, %s offen sc1' % (vtag, SWS, soff), 'flag'), 's_mov_b64 exec, -1'])
        return self.U(['s_mov_b64 exec, 1', ('%s %s, off, %s, %s %s' % (FST, vtag, SWS, soff, FSC), 'flag'), 's_mov_b64 exec, -1'])
    def spin(self, loads, waitc, tests, sleep):
        n = lab[0]; lab[0] += 1
        def f():
            for t in tests: self.e(t)
            self.nop(1)
            self.e('s_cmp_eq_u64 vcc, 0'); self.e('s_cbranch_scc1 L_pd%d' % n)
            t = ['    s_mov_b32 s96, %d' % SPIN, 'L_pl%d:' % n] + (['    s_sleep %d' % sleep] if sleep else [])
            t += ['    ' + l for l in loads] + ['    s_waitcnt ' + waitc] + ['    ' + x for x in tests]
            t += ['    s_sub_u32 s96, s96, 1', '    s_cmp_eq_u32 s96, 0', '    s_cbranch_scc1 L_pd%d' % n,
                  '    s_cmp_eq_u64 vcc, 0', '    s_cbranch_scc0 L_pl%d' % n, 'L_pd%d:' % n]
            self.raw('\n'.join(t))
        return f
    def poll(self, loads, regs, stag, lim):
        if opt('nopoll', 0): return None
        tests = ['v_subrev_u32 %s, %s, %s' % (r, stag, r) for r in regs] + ['v_max_u32 %s, %s, %s' % (regs[0], regs[0], r) for r in regs[1:]]
        tests += ['v_cmp_le_u32 vcc, %d, %s' % (lim, regs[0])]
        return self.spin(loads, 'vmcnt(0)', tests, opt('gsleep', 10))
    def signal(self, base, k):
        return self.U(['v_mov_b32 v28, %d' % k, 'ds_write_b32 v26, v28 offset:%d' % (base - SYM)])
    def sread(self, base): return 'ds_read_b128 v[28:31], v27 offset:%d' % (base - SYM)
    def scheck(self, base, k):
        tests = ['v_min_u32 v28, v28, v29', 'v_min3_u32 v28, v28, v30, v31', 'v_cmp_gt_u32 vcc, %d, v28' % k]
        return self.spin([self.sread(base)], 'lgkmcnt(0)', tests, opt('lsleep', 1))
    def sread1(self, base): return 'ds_read_b32 v28, v26 offset:%d' % (base - SYM)
    def scheck1(self, base, k):
        return self.spin([self.sread1(base)], 'lgkmcnt(0)', ['v_cmp_gt_u32 vcc, %d, v28' % k], opt('lsleep', 1))
    def chtab(self, regs, shift):
        e = self.e
        e('s_mov_b32 s77, %s' % sROT)
        for p in range(7):
            e('s_lshl_b32 %s, s77, %d' % (regs[p], shift))
            if p < 6: e('s_add_u32 s77, s77, 1'); e('s_cmp_eq_u32 s77, 7'); e('s_cselect_b32 s77, 0, s77')
    def srd(self, d, lo, n):
        e = self.e
        e('s_mov_b32 s%d, s%d' % (d, lo)); e('s_mov_b32 s%d, s%d' % (d + 1, lo + 1))
        e('s_mov_b32 s%d, %d' % (d + 2, n)); e('s_mov_b32 s%d, 0x20000' % (d + 3))
    def tags(self):
        e = self.e
        e('v_readfirstlane_b32 s77, v24')
        e('s_add_u32 %s, s77, 1' % sEN); e('s_mul_i32 s77, s77, 0x9E3779B1')
        e('s_add_u32 %s, s77, 0x7F4A7C15' % sT1); e('s_add_u32 %s, %s, 1' % (sT2, sT1))
        e('v_mov_b32 v24, %s' % sT1)
    def xread_addrs(self, b):
        e = self.e
        e('v_bfe_u32 v%d, v1, 1, 3' % b); e('v_xor_b32 v%d, v%d, v5' % (b, b)); e('v_lshlrev_b32 v%d, 4, v%d' % (b, b))
        e('v_lshl_add_u32 v%d, v6, 7, v%d' % (b, b)); e('v_add_u32 v%d, s50, v%d' % (b, b))
        for tt in range(1, 4): e('v_xor_b32 v%d, %d, v%d' % (b + tt, 32 * tt, b))
    def ifnb0(self, label):
        self.e('s_cmp_lg_u32 %s, 0' % sNB); self.e('s_cbranch_scc1 %s' % label); self.cond_begin()
    def endc(self, label):
        self.cond_end(); self.raw(label + ':')
    def finish(self, role):
        if DIAG:
            e = self.e
            self.raw('    s_waitcnt vmcnt(0)')
            self.stamp('end')
            self.raw('    s_memrealtime s[98:99]\n    s_waitcnt lgkmcnt(0)\n    v_writelane_b32 v0, s98, 63\n    v_writelane_b32 v0, s94, 62\n    v_writelane_b32 v0, s80, 0')
            e('s_lshl_b32 s77, s2, 3'); e('s_add_u32 s77, s77, %s' % sW); e('s_lshl_b32 s77, s77, 8'); e('s_add_u32 s77, s77, %d' % (DIAGB + 1024 * role))
            e('v_lshlrev_b32 v2, 2, v1')
            e('buffer_store_dword v0, v2, %s, s77 offen' % SWS)
        self.raw('    s_endpgm')

c = Role(); e = c.e
c.raw('%s_kernel:' % NAME)
e('s_cmp_ge_u32 s2, %d' % NWG)
e('s_cbranch_scc1 L_end')
if DIAG: c.raw('    s_memrealtime s[98:99]\n    s_waitcnt lgkmcnt(0)\n    s_mov_b32 s94, s98\n    s_memtime s[98:99]\n    s_waitcnt lgkmcnt(0)\n    s_mov_b32 s80, s98')
c.raw('    s_load_dwordx16 s[48:63], s[0:1], 0\n    s_load_dwordx8 s[64:71], s[0:1], 64')
e('v_lshrrev_b32 v2, 6, v0')
e('v_and_b32 v1, 63, v0')
e('v_readfirstlane_b32 s79, v2')
e('s_cmp_ge_u32 s2, 224')
e('s_cbranch_scc1 L_aux')
e('s_getpc_b64 s[96:97]')
c.raw('L_pc:')
e('v_lshlrev_b32 v2, 7, v0')
e('v_min_u32 v2, L_end-L_pc, v2')
e('v_mov_b32 v3, s97')
e('v_add_co_u32 v2, vcc, s96, v2')
e('v_addc_co_u32 v3, vcc, 0, v3, vcc')
c.raw('    global_load_dword v143, v[2:3], off')
e('s_and_b32 s77, s2, 7'); e('s_lshr_b32 s78, s2, 3')
e('s_and_b32 %s, s77, 1' % sHALF); e('s_lshr_b32 s77, s77, 1'); e('s_lshl_b32 s77, s77, 2')
e('s_and_b32 %s, s78, 3' % sMB); e('s_add_u32 %s, %s, s77' % (sMB, sMB))
e('s_lshr_b32 %s, s78, 2' % sNT); e('s_mul_i32 %s, %s, 7' % (sNB, sHALF)); e('s_add_u32 %s, %s, %s' % (sNB, sNB, sNT))
e('s_and_b32 %s, s79, 3' % sW)
e('s_and_b32 s77, s78, 3'); e('s_lshl_b32 s77, s77, 1'); e('s_add_u32 s77, s77, %s' % sNT); e('s_sub_u32 s78, s77, 7'); e('s_cmp_ge_u32 s77, 7'); e('s_cselect_b32 %s, s78, s77' % sROT)
if not opt('rot', 1): e('s_mov_b32 %s, 0' % sROT)
e('s_lshl_b32 %s, %s, 2' % (sSQ, sMB)); e('s_add_u32 %s, %s, %s' % (sSQ, sSQ, sW))
e('v_lshrrev_b32 v2, 3, v1'); e('v_and_b32 v3, 7, v1'); e('v_lshrrev_b32 v4, 4, v1'); e('v_lshrrev_b32 v5, 5, v1')
e('v_and_b32 v6, 31, v1'); e('v_lshlrev_b32 v7, 4, v1'); e('v_and_b32 v8, 15, v1')
e('v_mov_b32 v27, %d' % SYM); e('s_lshl_b32 s78, %s, 2' % sW); e('v_add_u32 v26, s78, v27')
e('s_cmp_lt_u32 s79, 4') if opt('fftfirst', 1) else e('s_cmp_ge_u32 s79, 4')
e('s_cbranch_scc1 L_fft')

F1ADDR = ['s_lshl_b32 s77, %s, 12' % sW, 's_cmp_ge_u32 %s, 2' % sW, 's_mov_b32 s78, %d' % TT, 's_cselect_b32 s78, %d, s78' % (YX - 8192), 's_add_u32 s77, s77, s78', 'v_add_u32 v35, s77, v7']
m = Role(); e = m.e
e('s_setprio %d' % opt('mprio', 1))
e('v_xor_b32 v17, v3, v4'); e('v_lshlrev_b32 v17, 4, v17'); e('s_mov_b32 s77, %d' % (128 * 896)); e('v_mad_u32_u24 v9, v2, s77, v17')
e('v_xor_b32 v10, 64, v9'); e('v_add_u32 v10, %d, v10' % (1024 * 896 - 1024))
e('v_add_u32 v11, %d, v9' % (64 * 896 - 2048)); e('v_add_u32 v12, %d, v10' % (64 * 896 - 2048))
XCH = ['s%d' % (20 + p) for p in range(7)]
e('s_mul_i32 s100, %s, 896' % sSQ)
for u in range(4): e('v_add_u32 v%d, s100, v%d' % (9 + u, 9 + u))
m.chtab(XCH, 7)
e('s_lshl_b32 s101, %s, 12' % sW)
m.raw('    s_waitcnt lgkmcnt(0)')
m.srd(32, 48, 1835008)
def dma_x(p):
    return ['s_add_u32 m0, s101, %d' % (p * 16384)] + [('buffer_load_dwordx4 v%d, s[32:35], %s offen offset:%d lds' % (9 + u, XCH[p], 1024 * u), 'x%d' % p) for u in range(4)]
m.srd(8, 56, 1605632)
e('s_lshl_b32 s43, s2, 2'); e('s_add_u32 s43, s43, %s' % sW); e('s_mul_i32 s49, s43, 1152'); e('s_mul_i32 s43, s43, 1792'); e('v_lshlrev_b32 v23, 7, v1')
def upf(srd, soff, n, dst): return m.U(['s_mov_b64 exec, 0x%x' % ((1 << n) - 1), 'buffer_load_ubyte v%d, v23, %s, %s offen' % (dst, srd, soff), 's_mov_b64 exec, -1'])
W1AT = opt('w1at', 0)
for p in range(4):
    m.run(dma_x(p))
    if p == W1AT: m.run([upf(SW1, 's43', 14, 140)])
m.barrier()
for p in range(4, 7):
    m.run(dma_x(p))
    if p == W1AT: m.run([upf(SW1, 's43', 14, 140)])
m.stamp('xiss')
m.run([m.W('x3'), m.signal(SYX, 1)])
m.srd(16, 70, WS_SIZE); m.srd(36, 58, 3584)
m.srd(12, 60, 1605632); m.srd(28, 66, 1835008); m.srd(4, 50, 921600); m.srd(32, 52, 921600)
pf2 = [upf(SW2, 's43', 14, 141), upf('s[4:7]', 's49', 9, 142), upf('s[32:35]', 's49', 9, 139)]
if opt('pf2at', 0) == 0: m.run(pf2)
e('s_lshl_b32 s50, %s, 12' % sW); e('s_lshl_b32 s51, %s, 11' % sW)
e('v_and_b32 v17, 1, v4'); e('v_lshlrev_b32 v17, 2, v17'); e('v_xor_b32 v17, v3, v17'); e('v_lshlrev_b32 v17, 4, v17')
e('s_movk_i32 s77, 3584'); e('v_mad_u32_u24 v13, v2, s77, v17'); e('s_lshl_b32 s78, %s, 8' % sNB); e('v_add_u32 v13, s78, v13')
for u in range(1, 4): e('v_add_u32 v%d, %d, v13' % (13 + u, u * 27648))
m.xread_addrs(17)
def dma_w1(p):
    r = ['s_add_u32 s77, %s, %d' % (sW, 4 * p), 's_sub_u32 s78, s77, 14', 's_cmp_ge_u32 s77, 14', 's_cselect_b32 s77, s78, s77', 's_cselect_b32 s79, 128, 0',
         's_lshl_b32 s78, %s, 1' % sROT, 's_add_u32 s77, s77, s78', 's_sub_u32 s78, s77, 14', 's_cmp_ge_u32 s77, 14', 's_cselect_b32 s77, s78, s77',
         's_mul_i32 s77, s77, %d' % (32 * 3584), 's_add_u32 s60, s77, s79', 's_add_u32 m0, s50, %d' % (p * 16384)]
    return r, [('buffer_load_dwordx4 v%d, %s, s60 offen offset:%d lds' % (13 + u, SW1, 1024 * u), 'w1_%d' % p) for u in range(4)]
CH = ['s4', 's5', 's6', 's7', 's40', 's41', 's42']
CW = XCH
setup0 = ['s_lshl_b32 %s, %s, 6' % (CH[k], XCH[k]) for k in range(7)] + ['s_mul_i32 %s, %s, 896' % (CW[k], XCH[k]) for k in range(7)]
setup = []
setup += ['v_bfe_u32 v21, v1, 2, 2', 'v_lshl_add_u32 v21, v5, 3, v21', 'v_lshlrev_b32 v21, 7, v21', 'v_bfe_u32 v22, v1, 3, 1', 'v_lshl_add_u32 v21, v22, 6, v21',
          'v_bfe_u32 v22, v1, 4, 1', 'v_lshl_add_u32 v21, v22, 5, v21', 'v_and_b32 v22, 3, v1', 'v_lshl_add_u32 v21, v22, 3, v21', 'v_xor_b32 v22, 64, v21',
          'v_lshlrev_b32 v128, 16, v25', 'v_and_b32 v129, 0xffff0000, v25', 'v_lshlrev_b32 v130, 3, v1', 'v_add_u32 v130, %d, v130' % B1L, 'ds_write_b64 v130, v[128:129]',
          'v_lshlrev_b32 v130, 4, v5', 'v_add_u32 v130, %d, v130' % B1L]
for j in range(4):
    for q in range(4): setup.append('ds_read_b128 %s, v130 offset:%d' % (v(32 + 16 * j + 4 * q, 4), (32 * j + 8 * q) * 4))
setup.append(m.tags)
setup2 = setup0 + ['s_mul_i32 s53, %s, 896' % sHALF, 's_lshl_b32 s78, %s, 4' % sW, 's_add_u32 s53, s53, s78', 's_mul_i32 s53, s53, 896', 's_lshl_b32 s78, %s, 7' % sNT, 's_add_u32 s53, s53, s78',
          'v_lshlrev_b32 v9, 1, v4', 'v_xor_b32 v9, v3, v9', 'v_lshl_add_u32 v9, v9, 4, s53', 's_movk_i32 s78, 896', 'v_mad_u32_u24 v9, v2, s78, v9', 'v_add_u32 v10, 6144, v9',
          'v_add_u32 v11, %d, v9' % (64 * 896), 'v_add_u32 v12, %d, v10' % (64 * 896),
          'v_mov_b32 v23, %s' % fl(-0.1029432397),
          's_mul_i32 s58, %s, 56' % sSQ, 's_lshl_b32 s78, %s, 2' % sNB, 's_add_u32 s58, s58, s78', 's_lshl_b32 s58, s58, 11', 's_add_u32 s58, s58, %d' % HB, 's_add_u32 s59, s58, 4096',
          's_lshl_b32 s61, %s, 4' % sSQ, 's_add_u32 s61, s61, %s' % sNB, 's_lshl_b32 s61, s61, 7', 's_add_u32 s61, s61, %d' % FL2,
          's_lshl_b32 s62, %s, 4' % sMB, 's_add_u32 s62, s62, %s' % sNB, 's_lshl_b32 s62, s62, 2', 's_add_u32 s62, s62, %s' % sW,
          's_lshl_b32 s63, s62, 12', 's_add_u32 s63, s63, %d' % PXB,
          's_lshr_b32 s78, %s, 1' % sW, 's_lshl_b32 s79, %s, 2' % sMB, 's_add_u32 s78, s78, s79', 's_lshl_b32 s79, %s, 1' % sHALF, 's_add_u32 s55, s78, s79', 's_xor_b32 s54, s55, 2',
          's_lshl_b32 s65, s78, 4', 's_mul_i32 s79, %s, 7' % sHALF, 's_add_u32 s65, s65, s79', 's_lshl_b32 s65, s65, 7', 's_add_u32 s65, s65, %d' % FL2,
          's_mov_b32 s64, s55', 's_mul_i32 s79, %s, 28' % sHALF, 's_and_b32 s78, %s, 1' % sW, 's_lshl_b32 s78, s78, 8', 's_add_u32 s78, s78, %d' % HB]
for r in (54, 55): setup2 += ['s_mul_i32 s%d, s%d, 56' % (r, r), 's_add_u32 s%d, s%d, s79' % (r, r), 's_lshl_b32 s%d, s%d, 11' % (r, r), 's_add_u32 s%d, s%d, s78' % (r, r)]
setup3 = ['v_lshlrev_b32 v13, 4, v8', 'v_lshl_add_u32 v13, v4, 9, v13', 'v_add_u32 v15, s55, v13', 'v_add_u32 v13, s54, v13', 'v_add_u32 v14, 4096, v13', 'v_add_u32 v16, 4096, v15',
          'v_bfe_u32 v17, v1, 2, 2', 'v_lshl_add_u32 v17, v5, 4, v17', 'v_bfe_u32 v18, v1, 4, 1', 'v_lshl_add_u32 v17, v18, 2, v17', 'v_lshlrev_b32 v17, 7, v17',
          'v_bfe_u32 v18, v1, 3, 2', 'v_lshl_add_u32 v17, v18, 5, v17', 'v_and_b32 v18, 3, v1', 'v_lshl_add_u32 v17, v18, 3, v17', 'v_add_u32 v17, %d, v17' % CB]
setup3 += ['v_xor_b32 v%d, %d, v17' % (17 + ct, 32 * ct) for ct in range(1, 4)]
setup3 += ['v_lshlrev_b32 v5, 2, v1', 'v_min_u32 v25, 6, v3', 'v_and_b32 v6, 1, v2', 'v_lshl_add_u32 v25, v6, 5, v25', 'v_lshlrev_b32 v25, 7, v25']
for k in range(1, 4): setup3.append('s_add_u32 s%d, s65, %d' % (67 + k, 0x20000 * k))
e('v_lshlrev_b32 v12, 2, v1'); e('s_lshl_b32 s78, %s, 8' % sNB)
e('buffer_load_dword v24, off, %s, 0 sc1' % SWS); e('buffer_load_dword v25, v12, %s, s78 offen' % SB1)
def xrd(p): return [('ds_read_b128 %s, v%d offset:%d' % (ag(16 * p + 4 * tt, 4), 17 + tt, (p % 4) * 16384), 'xr%d' % p) for tt in range(4)]
m.run(xrd(0) + xrd(1) + xrd(2) + xrd(3) + [m.W('x6'), m.signal(SYX, 2), m.sread1(SYF)])
for tt in range(4): e('v_add_u32 v%d, 65536, v%d' % (17 + tt, 17 + tt))
m.stamp('X6')
NR0 = opt('nr0', 2)
w1rest = []
for rr in range(7):
    pre, L = dma_w1(rr)
    if rr < NR0:
        m.run(pre)
        if rr == 0: m.run([m.scheck1(SYF, 4)] + xrd(4) + xrd(5) + xrd(6))
        m.run([m.L('xr%d' % rr)] + L)
    else:
        if rr == 4: pre = [m.sread1(SYF)] + pre + [m.scheck1(SYF, 7)]
        w1rest.append([m.U(pre + [L[0]])] + L[1:])
if opt('pf2at', 0) == 1: m.run(pf2)
m.run(setup)
m.stamp('Xend')
K0 = fl(-2.302208198)
PK = opt('pk', 0)
def gelu(j, tb, pk=0):
    r = []; A = 32 + 16 * j
    for h in range(2):
        for q in range(2):
            X = [A + 8 * h + 4 * q + i for i in range(4)]; T = [tb + 4 * q + i for i in range(4)]
            if pk:
                P = [(v(T[0], 2), v(X[0], 2)), (v(T[2], 2), v(X[2], 2))]
                r += ['v_pk_mul_f32 %s, %s, %s' % (t, x, x) for t, x in P]
                r += ['v_pk_fma_f32 %s, %s, s[66:67], s[66:67] op_sel:[0,0,1] op_sel_hi:[1,0,1]' % (t, t) for t, x in P]
                r += ['v_pk_mul_f32 %s, %s, %s' % (t, t, x) for t, x in P]
                r += ['v_exp_f32 v%d, v%d' % (t, t) for t in T]
                r += ['v_pk_add_f32 %s, %s, 1.0 op_sel_hi:[1,0]' % (t, t) for t, x in P]
                r += ['v_rcp_f32 v%d, v%d' % (t, t) for t in T]
                r += ['v_pk_mul_f32 %s, %s, %s' % (x, t, x) for t, x in P]
            else:
                r += ['v_mul_f32 v%d, v%d, v%d' % (t, x, x) for t, x in zip(T, X)]
                r += ['v_fmaak_f32 v%d, v%d, v23, %s' % (t, t, K0) for t in T]
                r += ['v_mul_f32 v%d, v%d, v%d' % (t, t, x) for t, x in zip(T, X)]
                r += ['v_exp_f32 v%d, v%d' % (t, t) for t in T]
                r += ['v_add_f32 v%d, 1.0, v%d' % (t, t) for t in T]
                r += ['v_rcp_f32 v%d, v%d' % (t, t) for t in T]
                r += ['v_mul_f32 v%d, v%d, v%d' % (x, t, x) for t, x in zip(T, X)]
            r += ['v_cvt_pk_bf16_f32 v%d, v%d, v%d' % (A + 8 * h + 2 * q + i, X[2 * i], X[2 * i + 1]) for i in range(2)]
        r.append(('buffer_store_dwordx4 %s, v7, %s, %s offen offset:%d%s' % (v(A + 8 * h, 4), SWS, 's58' if j < 2 else 's59', (j & 1) * 2048 + h * 1024, '' if opt('hsp', 0) else ' sc1'), 'h%d' % j))
        if opt('hdbl', 0): r.append((r[-1][0].replace(' sc1', ''), 'h%d' % j))
    return r
setup3 += ['s_mov_b32 s66, %s' % fl(-0.1029432397), 's_mov_b32 s67, %s' % K0]
def w2_lds(mm, late):
    k = mm + 7 * late
    if k < 3: return CB + 8192 * k
    return 8192 * (k - 3)
def dma_w2(mm, late):
    tag = 'w2a' if mm + 7 * late < 10 else 'w2b'
    L = [('buffer_load_dwordx4 v%d, %s, %s offen offset:%d lds' % (9 + 2 * late + u, SW2, CW[mm], 1024 * u), tag) for u in range(2)]
    return [m.U(['s_add_u32 m0, s51, %d' % w2_lds(mm, late), L[0]]), L[1]]
def trG(i):
    r = []
    if i == 28: r += ['v_add_u32 v21, %d, v21' % W1H1, 'v_add_u32 v22, %d, v22' % W1H1]
    return r + ['ds_read_b64_tr_b16 %s, v%d offset:%d' % (v(96 + 8 * (i % 4) + 4 * j + 2 * aa, 2), 21 + j, 2048 * (i % 28) + 512 * aa) for j in range(2) for aa in range(2)]
def g1(i, j):
    d = v(32 + 16 * (2 * (i // 28) + j), 16)
    return 'v_mfma_f32_32x32x16_bf16 %s, %s, %s, %s' % (d, v(96 + 8 * (i % 4) + 4 * j, 4), ag(4 * (i % 28), 4), d)
def hflag(j): return [m.W('h%d' % j), m.flag('v24', 's61'), 's_add_u32 s61, s61, 0x20000']
m.run([m.W('w1_0'), m.signal(SYM, 1), m.sread(SYM), m.scheck(SYM, 1)])
m.run(trG(0) + trG(1))
SYNC = {8: 1, 16: 3, 32: 6}
def g1_items(lo, hi):
    main = []
    for i in range(lo, hi):
        rd = trG(i + 2) if i + 2 < 56 else [None] * 4
        pre = []
        if i + 5 in SYNC: pre = [m.W('w1_%d' % SYNC[i + 5]), m.signal(SYM, SYNC[i + 5] + 1)]
        if i + 4 in SYNC: pre = [m.sread(SYM)]
        if i + 2 in SYNC: pre = [m.scheck(SYM, SYNC[i + 2] + 1)]
        if i == 17: pre = [m.sread(SYF)]
        if i == 19: pre = [m.scheck(SYF, 7)]
        if i == 31: pre = [m.signal(SYM2, 1)]
        if i == 32: pre = [m.sread(SYM2)]
        if i == 33: pre = [m.scheck(SYM2, 1)]
        if i == opt('hf0', 50): pre = hflag(0)
        if i in (1, 8, 14, 18, 24, 34, 40, 46): pre = pre + [m.S('g1_%d' % i)]
        main.append(m.U(pre + [g1(i, 0)] + rd[:-2])); main.append(m.U([g1(i, 1)] + rd[-2:]))
    return main
w2c = dma_w2(0, 0) + dma_w2(1, 0) + dma_w2(2, 0)
m.run(weave(g1_items(0, 28), (sum(w1rest[:-3], []), 0, 12), (sum(w1rest[-3:], []), opt('r4lo', 14), opt('r4hi', 34)), ((pf2 if opt('pf2at', 0) == 2 else []) + setup2, 34, 46), (w2c, 46, 56)))
m.run(setup3)
m.stamp('G1a')
w2a = []
for k in range(3, 10): w2a += dma_w2(k % 7, k // 7)
GE = opt('ge', 48)
m.run(weave(g1_items(28, 56), (gelu(0, 128, PK > 1) + gelu(1, 136, PK > 1), 0, GE), (w2a, 12, 56)))
m.stamp('G1b')
m.run([m.signal(SYM2, 2), m.sread(SYM2)])
def p2(j): return 'buffer_load_dword v6, v25, %s, %s offen %s' % (SWS, ['s65', 's68', 's69', 's70'][j], PSC)
def hcheck(j): return m.poll([p2(j)], ['v6'], sT1, 1)
g2 = gelu(2, 128, PK); n2 = len(g2)
w2b = []
for mm in range(3, 7): w2b += dma_w2(mm, 1)
m.run(g2[:n2 // 5] + [m.scheck(SYM2, 2)] + weave(g2[n2 // 5:n2 * 3 // 4], w2b) + [m.W('h1'), p2(0)] + hflag(1)[1:] + g2[n2 * 3 // 4:])
m.stamp('gelu2')
MERGE = opt('merge', 2)
steps = [(mm, j, (0, 1)) for j in range(MERGE) for mm in range(7)] + [(mm, j, (0,)) for j in range(MERGE, 4) for mm in range(7)] + \
        [(mm, j, (1,)) for j in range(MERGE, 4) for mm in range(7)]
loads = [(i, p) for i, st in enumerate(steps) for p in st[2]]
lidx = {x: k for k, x in enumerate(loads)}
NH = 28; NS = len(steps)
def h_load(k):
    i, p = loads[k]; mm, j, _ = steps[i]
    return 'buffer_load_dwordx4 %s, v%d, %s, %s offen offset:%d%s' % (ag(4 * (k % NH), 4), 13 + 2 * p + (j >> 1), SWS, CH[mm], 2048 * (j & 1), '' if opt('hlp', 0) else ' sc1')
def trD(i):
    mm, j, _ = steps[i]
    ad = w2_lds(mm, j >> 1) + 4096 * (j & 1)
    base, ar = (CB, 17) if ad >= CB else ((0, 64) if ad < W1H1 else (W1H1, 68))
    return ['ds_read_b64_tr_b16 %s, v%d offset:%d' % (v(96 + 16 * (i % 3) + 4 * ct + 2 * aa, 2), ar + ct, ad - base + 1024 * aa) for ct in range(4) for aa in range(2)]
started = set()
def mfD(i):
    r = []
    for p in steps[i][2]:
        for ct in range(4):
            d = v(32 + 16 * p + 4 * ct, 4)
            r.append('v_mfma_f32_16x16x32_bf16 %s, %s, %s, %s' % (d, v(96 + 16 * (i % 3) + 4 * ct, 4), ag(4 * (lidx[(i, p)] % NH), 4), d if p in started else '0'))
        started.add(p)
    return r
first_lvl = {j: min(k for k, (i, p) in enumerate(loads) if steps[i][1] == j) for j in range(4)}
issued = 0
PLEAD = opt('plead', 5)
def issue_upto(n, fill):
    global issued
    while issued < min(n, len(loads)):
        for j in range(1, 4):
            if first_lvl[j] == issued: fill.append(hcheck(j))
            if j > 1 and first_lvl[j] - PLEAD == issued: fill.append(p2(j))
        fill.append(h_load(issued)); issued += 1
g3 = gelu(3, 136, PK)
k3 = len(g3) * opt('c0at', 70) // 100
fl0 = []; issue_upto(first_lvl[1], fl0)
if opt('l0early', 0):
    st3 = [y for y in g3 if isinstance(y, tuple)]; g3 = [y for y in g3 if not isinstance(y, tuple)]; k3 = len(g3) * opt('l0early', 0) // 100
    m.run(g3[:k3] + [m.S('gelu3'), hcheck(0), m.S('chk0')] + weave(g3[k3:], fl0) + st3 + [m.S('L0iss'), p2(1)] + hflag(2))
else:
    m.run(g3[:k3] + hflag(2) + g3[k3:] + [m.S('gelu3'), hcheck(0), m.S('chk0'), p2(1)] + fl0 + [m.S('L0iss')] + hflag(3)[:2])
for ct in range(4): e('v_subrev_u32 v%d, %d, v%d' % (64 + ct, CB, 17 + ct)); e('v_subrev_u32 v%d, %d, v%d' % (68 + ct, CB - W1H1, 17 + ct))
m.run([m.signal(SYM2, 3), m.sread(SYM2), m.scheck(SYM2, 3)])
m.run(trD(0) + trD(1))
m.stamp('hiss')
last_p0 = max(i for i, st in enumerate(steps) if 0 in st[2])
LEAD = opt('lead', 10)
mpx = ['buffer_load_dwordx4 %s, v7, %s, s79 offen offset:%d sc1' % (v(84 + 4 * k, 4), SWS, 1024 * k) for k in range(3)]
for i in range(NS):
    fill = []
    issue_upto(lidx[(i, steps[i][2][-1])] + 1 + LEAD, fill)
    if i == NS - 1 - opt('pxl', 3): fill += ['s_cmp_eq_u32 %s, 0' % sHALF, 's_mov_b32 s79, %d' % (7 * 16384), 's_cselect_b32 s79, s79, %d' % ((1 << 32) - 7 * 16384), 's_add_u32 s79, s79, s63'] + mpx
    if opt('l0early', 0) and i == opt('hf3', 4): fill += hflag(3)[:2]
    if i == last_p0 + 1:
        PXR = [72, 73, 74, 76, 77, 78, 80, 81]
        fill += ['v_mov_b32 v%d, %s' % (r, sT1) for r in (75, 79, 83)]
        fill += ['v_cvt_pk_bf16_f32 v%d, v%d, v%d' % (PXR[k], 32 + 2 * k, 33 + 2 * k) for k in range(8)]
        fill += ['buffer_store_dwordx4 %s, v7, %s, s63 offen offset:%d sc1' % (v(72 + 4 * k, 4), SWS, 1024 * k) for k in range(3)]
    if i == NS - 6:
        fill += ['s_mov_b32 s78, %d' % (128 * 896), 'v_and_b32 v14, 1, v4', 'v_lshlrev_b32 v14, 5, v14', 'v_lshrrev_b32 v15, 1, v4', 'v_lshl_add_u32 v14, v15, 4, v14',
                 'v_mad_u32_u24 v14, v8, s78, v14',
                 's_and_b32 s66, %s, 1' % sW, 's_lshl_b32 s66, s66, 6', 's_add_u32 s66, s66, s64', 's_mul_i32 s66, s66, 896', 's_lshl_b32 s78, %s, 7' % sNT, 's_add_u32 s66, s66, s78',
                 's_mul_i32 s78, %s, 6144' % sW, 's_add_u32 s78, s78, %d' % RED, 'v_add_u32 v15, s78, v7',
                 's_lshl_b32 s78, %s, 6' % sW, 's_add_u32 s78, s78, %d' % GL, 'v_lshl_add_u32 v16, v8, 2, s78']
        assert issued == len(loads)
    rd = trD(i + 2) if i + 2 < NS else []
    m.run(weave(mfD(i), rd, fill))
    if i in (0, 6, 13, 20, last_p0, NS - 8): m.stamp('g2_%d' % i)
m.stamp('G2end')
m.barrier()
e('ds_read_b32 v13, v16')
for ct in range(4): e('ds_read_b128 %s, v15 offset:%d' % (v(64 + 4 * ct, 4), 1024 * ct))
m.run([m.poll(mpx, ['v87', 'v91', 'v95'], sT1, 1)])
m.stamp('px')
for k, r in enumerate([84, 85, 86, 88, 89, 90, 92, 93]):
    e('v_lshlrev_b32 v%d, 16, v%d' % (32 + 2 * k, r)); e('v_and_b32 v%d, 0xffff0000, v%d' % (33 + 2 * k, r))
for k in range(16): e('v_add_f32 v%d, v%d, v%d' % (48 + k, 48 + k, 32 + k))
e('v_sub_f32 v13, 1.0, v13')
for k in range(16): e('v_fmac_f32 v%d, v13, v%d' % (64 + k, 48 + k))
for k in range(8): e('v_cvt_pk_bf16_f32 v%d, v%d, v%d' % (80 + k, 64 + 2 * k, 65 + 2 * k))
for p in range(2):
    e('v_permlane16_swap_b32 v%d, v%d' % (80 + 4 * p, 82 + 4 * p)); e('v_permlane16_swap_b32 v%d, v%d' % (81 + 4 * p, 83 + 4 * p))
for p in range(2):
    e('buffer_store_dwordx4 %s, v14, %s, s66 offen offset:%d%s' % (v(80 + 4 * p, 4), SOUT, 64 * p, ['', ' sc1', ' nt', ' sc0 sc1'][opt('osc', 0)]))
e('s_or_b32 s77, s2, %s' % sW); e('s_cmp_lg_u32 s77, 0'); e('s_cbranch_scc1 L_fin'); m.cond_begin()
e('v_mov_b32 v2, %s' % sEN); e('s_mov_b64 exec, 1'); e('buffer_store_dword v2, off, %s, 0 sc1' % SWS); e('s_mov_b64 exec, -1')
m.endc('L_fin')
m.finish(0)

f = Role(); e = f.e
f.raw('L_fft:')
e('s_setprio %d' % opt('fprio', 2))
f.run([f.signal(SYM, 0)]); e('ds_write_b32 v26, v28 offset:%d' % (SYF - SYM)); e('ds_write_b32 v26, v28 offset:%d' % (SYM2 - SYM)); e('ds_write_b32 v26, v28 offset:%d' % (SYX - SYM))
f.run(['v_lshrrev_b32 v32, 1, v6', 's_lshl_b32 s77, %s, 4' % sNB, 'v_add_u32 v32, s77, v32', 'v_and_b32 v33, 1, v1', 'v_cvt_f32_u32 v34, v33',
     'v_mul_f32 v34, 0x3e800000, v34', 'v_lshl_add_u32 v35, v32, 1, v33', 'v_cmp_eq_u32 vcc, 1, v35', 'v_mov_b32 v35, 224',
     'v_cndmask_b32 v32, v32, v35, vcc', 'v_cndmask_b32 v34, v34, v28, vcc', 'v_cvt_f32_u32 v32, v32', 'v_mul_f32 v32, %s, v32' % fl(1.0 / 448),
     's_mul_i32 s77, %s, 112' % sW, 'v_lshl_add_u32 v35, v5, 3, s77', 'v_cvt_f32_u32 v35, v35', 'v_fmac_f32 v34, v32, v35', 'v_fract_f32 v34, v34',
     's_mul_i32 s77, %s, 7168' % sW, 's_add_u32 s77, s77, %d' % CB, 'v_add_u32 v35, s77, v7'])
def w1pf():
    f.raw('    s_waitcnt lgkmcnt(0)'); f.lg_done = len(f.lg)
    f.srd(28, 56, 1605632)
    e('v_lshrrev_b32 v36, 1, v1'); e('v_min_u32 v36, 27, v36'); e('v_mul_u32_u24 v36, 3584, v36'); e('v_and_b32 v37, 1, v1'); e('v_lshl_add_u32 v36, v37, 7, v36')
    e('s_and_b32 s77, %s, 15' % sSQ); e('s_mul_i32 s77, s77, %d' % (28 * 3584)); e('s_lshl_b32 s78, %s, 8' % sNB); e('s_add_u32 s77, s77, s78')
    f.raw('    buffer_load_ubyte v142, v36, s[28:31], s77 offen')
for tt in range(7):
    if tt == opt('w1pf', 9): w1pf()
    b = 40 + 12 * (tt & 1)
    for j in range(8): e('v_fmamk_f32 v%d, v32, %s, v34' % (b + j, fl(16.0 * tt + j)))
    for j in range(8): e('v_cos_f32 v%d, v%d' % (b + j, b + j))
    for j in range(4): e('v_cvt_pk_bf16_f32 v%d, v%d, v%d' % (b + 8 + j, b + 2 * j, b + 2 * j + 1))
    e('ds_write_b128 v35, %s offset:%d' % (v(b + 8, 4), 1024 * tt))
f.raw('    s_waitcnt lgkmcnt(0)'); f.lg_done = len(f.lg)
f.stamp('genC')
FCH = ['s%d' % (8 + p) for p in range(7)]
f.chtab(FCH, 12)
f.srd(16, 70, WS_SIZE); f.srd(20, 50, 921600); f.srd(24, 52, 921600); f.srd(40, 62, 896)
e('s_lshl_b32 s50, %s, 12' % sW)
e('v_add_u32 v13, %d, v7' % CB)
f.xread_addrs(9)
e('v_and_b32 v21, 1, v1'); e('v_lshlrev_b32 v22, 1, v21'); e('v_lshlrev_b32 v21, 31, v21'); e('v_or_b32 v21, 1.0, v21')
e('v_lshrrev_b32 v14, 1, v6'); e('v_lshl_add_u32 v22, v14, 4, v22'); e('v_lshl_add_u32 v22, v5, 10, v22')
e('s_lshl_b32 s77, %s, 2' % sW); e('s_add_u32 s77, s77, %d' % TT); e('v_add_u32 v22, s77, v22')
e('s_lshl_b32 s77, %s, 11' % sW); e('s_add_u32 s77, s77, %d' % TT); e('v_add_u32 v15, s77, v7')
e('v_lshlrev_b32 v16, 4, v8'); e('v_lshl_add_u32 v16, v4, 12, v16')
e('s_lshl_b32 s55, %s, 17' % sNB); e('s_add_u32 s55, s55, %d' % TB)
e('s_lshl_b32 s58, %s, 15' % sW); e('s_lshl_b32 s78, %s, 8' % sMB); e('s_add_u32 s58, s58, s78'); e('s_add_u32 s58, s58, s55'); e('s_add_u32 s59, s58, 16384')
gf1 = ['v_cvt_f32_u32 v32, v6', 'v_mul_f32 v32, 0x3d000000, v32', 'v_mul_u32_u24 v33, %s, v8' % sSQ,
     'v_bfe_u32 v34, v1, 4, 1', 's_lshr_b32 s79, %s, 5' % sSQ, 's_lshl_b32 s79, s79, 9', 'v_mad_u32_u24 v33, v34, s79, v33',
     'v_cvt_f32_u32 v33, v33', 'v_mul_f32 v33, 0x3a000000, v33', 'v_lshlrev_b32 v34, 3, v5', 'v_cvt_f32_u32 v34, v34', 'v_fmac_f32 v33, v32, v34']
for cc in range(2):
    for hq in range(2):
        for j in range(4): gf1.append('v_fmamk_f32 v%d, v32, %s, v33' % (36 + j, fl(16.0 * hq + 2 * j + cc)))
        for j in range(4): gf1 += ['v_sin_f32 v%d, v%d' % (40 + j, 36 + j), 'v_cos_f32 v%d, v%d' % (36 + j, 36 + j)]
        for j in range(2): gf1 += ['v_cvt_pk_bf16_f32 v%d, v%d, v%d' % (128 + 4 * cc + 2 * hq + j, 36 + 2 * j, 37 + 2 * j), 'v_cvt_pk_bf16_f32 v%d, v%d, v%d' % (136 + 4 * cc + 2 * hq + j, 40 + 2 * j, 41 + 2 * j)]
f.barrier()
cr = []
for p in range(7): cr += ['v_add_u32 v23, %s, v13' % FCH[p]] + ['ds_read_b128 %s, v23 offset:%d' % (ag(16 * p + 4 * tt, 4), 1024 * tt) for tt in range(4)]
f.run(weave(gf1[:-4], cr))
f.raw('    s_waitcnt vmcnt(0)')
f.run(gf1[-4:])
XB = [48, 64, 96, 112]
def f1_mfma(p):
    return ['v_mfma_f32_32x32x16_bf16 %s, %s, %s, %s' % (v(80, 16), v(XB[p & 3] + 4 * tt, 4), ag(16 * p + 4 * tt, 4), '0' if (p == 0 and tt == 0) else v(80, 16)) for tt in range(4)]
def fxr(p): return [('ds_read_b128 %s, v%d offset:%d' % (v(XB[p & 3] + 4 * tt, 4), 9 + tt, (p % 4) * 16384), 'xr%d' % p) for tt in range(4)]
f.run([f.sread1(SYX), f.scheck1(SYX, 1)])
f.stamp('x0')
f.run(fxr(0) + fxr(1) + weave(f1_mfma(0), fxr(2) + fxr(3)) + [f.sread1(SYX)] + ['v_add_u32 v%d, 65536, v%d' % (9 + tt, 9 + tt) for tt in range(4)])
f.run(f1_mfma(1) + [f.scheck1(SYX, 2), f.signal(SYF, 4)])
f.run(weave(f1_mfma(2), fxr(4) + fxr(5)) + weave(f1_mfma(3), fxr(6)) + f1_mfma(4) + f1_mfma(5) + [f.L('xr6'), f.signal(SYF, 7)] + f1_mfma(6))
e('buffer_load_dword v24, off, %s, 0 sc1' % SWS)
f.stamp('F1end')
for j in range(8): e('v_cvt_pk_bf16_f32 v%d, v%d, v%d' % (80 + j, 80 + 2 * j, 81 + 2 * j))
e('v_mfma_f32_32x32x16_bf16 %s, %s, %s, 0' % (v(32, 16), v(128, 4), v(80, 4)))
e('v_mfma_f32_32x32x16_bf16 %s, %s, %s, 0' % (v(48, 16), v(136, 4), v(80, 4)))
e('v_mfma_f32_32x32x16_bf16 %s, %s, %s, %s' % (v(32, 16), v(132, 4), v(84, 4), v(32, 16)))
e('v_mfma_f32_32x32x16_bf16 %s, %s, %s, %s' % (v(48, 16), v(140, 4), v(84, 4), v(48, 16)))
f.ifnb0('L_sp1')
for k in range(16): e('v_cvt_pk_bf16_f32 v%d, v%d, -v%d' % (64 + k, 32 + k, 48 + k))
f.endc('L_sp1')
for k in range(16): e('v_fmac_f32_dpp v%d, v%d, v21 quad_perm:[1,0,3,2] %s' % (32 + k, 48 + k, DP))
for k in range(0, 16, 2): e('v_cvt_pk_bf16_f32 v%d, v%d, v%d' % (48 + k // 2, 32 + k, 33 + k))
for k in range(0, 16, 2):
    off = (8 * (k >> 2) + (k & 3)) * 256
    e('ds_write_b16 v22, v%d offset:%d' % (48 + k // 2, off)); e('ds_write_b16_d16_hi v22, v%d offset:%d' % (48 + k // 2, off + 256))
f.ifnb0('L_sp2')
e('v_and_b32 v23, 1, v1'); e('s_mov_b32 s77, %d' % (TT - YX + 2)); e('v_mul_u32_u24 v23, s77, v23'); e('v_sub_u32 v23, v22, v23')
e('s_mov_b32 exec_lo, 3'); e('s_mov_b32 exec_hi, 3')
for k in range(16): e('ds_write_b32 v23, v%d offset:%d' % (64 + k, (8 * (k >> 2) + (k & 3)) * 256))
e('s_mov_b64 exec, -1')
f.endc('L_sp2')
f.run([f.signal(SYF, 8), f.sread(SYF)])
f.run([f.scheck(SYF, 8)])
e('ds_read_b128 %s, v15' % v(64, 4)); e('ds_read_b128 %s, v15 offset:1024' % v(68, 4))
e('buffer_store_dwordx4 %s, v16, %s, s58 offen sc1' % (v(64, 4), SWS), tag='T')
e('buffer_store_dwordx4 %s, v16, %s, s59 offen sc1' % (v(68, 4), SWS), tag='T')
f.ifnb0('L_sp3')
e('s_lshl_b32 s77, %s, 11' % sW); e('s_add_u32 s77, s77, %d' % YX); e('v_lshlrev_b32 v21, 8, v1'); e('v_add_u32 v22, s77, v21')
e('v_lshlrev_b32 v21, 11, v1'); e('s_lshl_b32 s77, %s, 14' % sW); e('s_lshl_b32 s78, %s, 7' % sMB); e('s_add_u32 s77, s77, s78'); e('s_add_u32 s77, s77, %d' % TVB)
e('s_mov_b64 exec, 0xff'); e('ds_read_b128 %s, v22' % v(72, 4))
e('buffer_store_dwordx4 %s, v21, %s, s77 offen sc1' % (v(72, 4), SWS), tag='T')
e('s_mov_b64 exec, -1')
f.endc('L_sp3')
f.stamp('Tst')
f.tags()
f.run([f.signal(SYF, 9)])
for k in range(16): e('v_mov_b32 v%d, 0' % (96 + k))
e('v_lshlrev_b32 v19, 1, v8'); e('s_mov_b32 s77, %d' % (256 * 450)); e('v_mad_u32_u24 v19, v4, s77, v19')
e('s_lshl_b32 s56, %s, 4' % sW); e('s_add_u32 s56, s56, %s' % sMB); e('s_mul_i32 s77, s56, 450'); e('s_lshl_b32 s78, %s, 5' % sNB); e('s_add_u32 s57, s77, s78')
wl = []
for k in range(8):
    wl += [f.U(['s_add_u32 s79, s57, %d' % ((16 * (k >> 2) + (k & 3)) * 28800), 'buffer_load_short_d16_hi v%d, v19, %s, s79 offen' % (96 + k, SWR)]),
           'buffer_load_short_d16_hi v%d, v19, %s, s79 offen' % (104 + k, SWI)]
psp = ['buffer_load_dwordx4 %s, v20, %s, s65 offen offset:%d sc1' % (v(128 + 4 * mt, 4), SWS, 256 * mt) for mt in range(2)]
def wsp():
    e('v_lshrrev_b32 v20, 2, v1'); e('v_lshlrev_b32 v20, 4, v20')
    f.ifnb0('L_sp4')
    e('s_lshl_b32 s65, %s, 9' % sSQ); e('s_add_u32 s65, s65, %d' % SPB)
    f.run(psp)
    f.endc('L_sp4')
e('s_lshl_b32 s60, %s, 2' % sNB); e('s_add_u32 s60, s60, %s' % sW); e('s_lshl_b32 s60, s60, 2'); e('s_and_b32 s77, %s, 3' % sMB); e('s_add_u32 s60, s60, s77')
e('s_lshl_b32 s60, s60, 3'); e('s_lshr_b32 s78, %s, 2' % sMB); e('s_add_u32 s60, s60, s78'); e('s_lshl_b32 s60, s60, 4'); e('s_add_u32 s60, s60, %d' % FL1)
e('s_lshl_b32 s62, %s, 2' % sNT); e('s_add_u32 s62, s62, s77'); e('s_lshl_b32 s62, s62, 1'); e('s_and_b32 s77, %s, 1' % sW); e('s_add_u32 s62, s62, s77'); e('s_lshl_b32 s62, s62, 3')
e('s_and_b32 s77, s2, 7'); e('s_add_u32 s62, s62, s77'); e('s_lshl_b32 s62, s62, 4')
e('s_lshr_b32 s77, %s, 1' % sW); e('s_lshl_b32 s77, s77, 13'); e('s_add_u32 s62, s62, s77'); e('s_add_u32 s62, s62, %d' % FL3)
e('s_lshr_b32 s77, %s, 3' % sMB); e('s_and_b32 s78, %s, 1' % sW); e('s_lshl_b32 s79, s78, 1'); e('s_add_u32 s77, s77, s79')
e('s_lshl_b32 s79, %s, 2' % sNB); e('s_add_u32 s77, s77, s79'); e('s_lshl_b32 s77, s77, 9'); e('s_add_u32 s63, s77, %d' % FL1)
e('v_and_b32 v9, 3, v1'); e('v_lshlrev_b32 v9, 7, v9'); e('v_bfe_u32 v10, v1, 2, 2'); e('v_lshl_add_u32 v9, v10, 4, v9')
gi = ['s_lshl_b32 s68, %s, 6' % sNT, 'v_add_u32 v80, s68, v8', 'v_cvt_f32_u32 v80, v80', 's_lshl_b32 s68, %s, 6' % sW, 'v_bfe_u32 v81, v1, 4, 1', 'v_lshl_add_u32 v81, v81, 1, v5', 'v_lshl_add_u32 v81, v81, 4, s68',
      'v_cvt_f32_u32 v81, v81', 'v_and_b32 v84, 1, v1', 'v_lshlrev_b32 v84, 31, v84', 'v_or_b32 v84, 0x3e803e80, v84', 'v_cmp_eq_u32 s[70:71], 0, v81']
gihead = list(gi)
for ct in range(4):
    gi += ['v_add_f32 v82, %s, v80' % fl(16.0 * ct), 'v_mul_f32 v82, %s, v82' % fl(1.0 / 448), 'v_mul_f32 v83, v82, v81', 'v_fract_f32 v83, v83']
    for cc in range(4):
        for q in range(4): gi.append('v_fmamk_f32 v%d, v82, %s, v83' % (88 + q, fl(4.0 * q + cc)))
        for q in range(4): gi += ['v_sin_f32 v%d, v%d' % (92 + q, 88 + q), 'v_cos_f32 v%d, v%d' % (88 + q, 88 + q)]
        for q in range(4): gi.append('v_cvt_pk_bf16_f32 v%d, v%d, -v%d' % (88 + q, 88 + q, 92 + q))
        if cc == 0: gi.append('v_cndmask_b32 v88, v88, v84, s[70:71]')
        for q in range(4): gi.append('v_accvgpr_write_b32 a%d, v%d' % (48 + 16 * cc + 4 * ct + q, 88 + q))
r = []
r += ['v_lshl_add_u32 v32, v8, 2, %s' % sW, 'v_cvt_f32_u32 v32, v32', 'v_mul_f32 v32, 0x3c000000, v32', 'v_lshlrev_b32 v34, 2, v4', 'v_cvt_f32_u32 v34, v34']
for mt in range(2):
    if mt: r.append('v_add_f32 v32, 0.5, v32')
    r.append('v_mul_f32 v33, v32, v34')
    for j in range(8): r.append('v_fmamk_f32 v%d, v32, %s, v33' % (40 + j, fl(16.0 * (j >> 2) + (j & 3))))
    for j in range(8): r += ['v_sin_f32 v%d, v%d' % (48 + j, 40 + j), 'v_cos_f32 v%d, v%d' % (40 + j, 40 + j)]
    for j in range(8):
        r += ['v_cvt_pk_bf16_f32 v%d, v%d, v%d' % (56 + (j & 3), 40 + j, 48 + j), 'v_cvt_pk_bf16_f32 v%d, -v%d, v%d' % (60 + (j & 3), 48 + j, 40 + j),
              'v_accvgpr_write_b32 a%d, v%d' % (8 * mt + j, 56 + (j & 3)), 'v_accvgpr_write_b32 a%d, v%d' % (16 + 8 * mt + j, 60 + (j & 3))]
gi = r + gi
if opt('nogen', 0): gi = ['s_sleep 1'] * 40 + [None] * 500
n1, n2, n3, n4 = opt('gi1', 90), opt('gi2', 200), opt('gi3', 217), opt('gi4', 217)
def f2const():
    e('s_lshr_b32 s77, %s, 1' % sW); e('s_mul_i32 s66, s77, 0x80008000')
    for kb in range(1, 4):
        e('s_mul_i32 s77, %s, %d' % (sW, kb)); e('s_and_b32 s77, s77, 3'); e('s_and_b32 s78, s77, 1'); e('s_lshl_b32 s%d, s78, 4' % (67 + kb))
        e('s_lshr_b32 s78, s77, 1'); e('s_xor_b32 s79, s77, s78'); e('s_lshl_b32 s79, s79, 31'); e('s_lshl_b32 s78, s78, 15'); e('s_or_b32 s%d, s79, s78' % (51 + kb))
    e('v_lshlrev_b32 v22, 4, v8'); e('v_lshl_add_u32 v22, v4, 10, v22'); e('s_lshl_b32 s77, %s, 2' % sW); e('s_add_u32 s77, s77, %d' % YX); e('v_add_u32 v22, s77, v22')
    e('v_add_u32 v23, %d, v7' % YX)
    e('s_mov_b32 s77, %d' % (4 * 28672)); e('v_lshlrev_b32 v21, 4, v3'); e('v_mad_u32_u24 v21, v2, s77, v21')
    e('s_mul_i32 s58, %s, 28672' % sW); e('s_mul_i32 s78, %s, 1792' % sMB); e('s_add_u32 s58, s58, s78')
    e('s_lshl_b32 s78, %s, 7' % sNB); e('s_add_u32 s58, s58, s78'); e('s_add_u32 s58, s58, %d' % RB); e('s_add_u32 s59, s58, %d' % (32 * 28672))
    e('s_lshl_b32 s77, %s, 11' % sW); e('s_add_u32 s77, s77, %d' % TT)
    e('v_xor_b32 v14, v4, v3'); e('v_lshlrev_b32 v14, 4, v14'); e('v_lshl_add_u32 v14, v8, 7, v14'); e('v_add_u32 v14, s77, v14'); e('v_xor_b32 v15, 64, v14')
    e('v_xor_b32 v16, v2, v3'); e('v_lshlrev_b32 v16, 4, v16'); e('v_lshl_add_u32 v16, v2, 7, v16'); e('v_add_u32 v16, s77, v16')
    e('v_lshlrev_b32 v17, 14, v1')
    e('v_mov_b32 v18, %s' % sMB); e('v_cvt_f32_u32 v18, v18'); e('v_mul_f32 v18, 0x3d000000, v18'); e('v_sin_f32 v19, v18'); e('v_cos_f32 v18, v18')
p1 = 'buffer_load_dword v10, v9, %s, s63 offen %s' % (SWS, PSC)
LO, HI = 's_setprio %d' % opt('flo', 0), 's_setprio %d' % opt('fhi2', 2)
HI3 = 's_setprio %d' % opt('fhi3', 2)
f.run([LO if opt('lo1', 1) else None] + gi[:n1] + [f.S('preWT'), f.W('T'), f.S('WT'), f.flag('v24', 's60'), LO, wsp] + weave(gi[n1:n2], (wl, 0, 60)) + [(p1, 'p1')] + gi[n2:n3] + [f2const if opt('f2c', 1) else None, HI, f.S('prepollT'), f.W('p1'), f.S('p1back'), f.poll([p1], ['v10'], sT1, 1)])
f.stamp('pollT')
e('s_and_b32 s78, %s, 1' % sW); e('s_lshl_b32 s78, s78, 4'); e('s_add_u32 s78, s78, %s' % sMB)
e('s_lshl_b32 s77, s78, 12'); e('s_add_u32 s77, s77, s55')
for q in range(4): e('buffer_load_dwordx4 %s, v7, %s, s77 offen offset:%d sc1' % (v(32 + 4 * q, 4), SWS, 1024 * q))
e('s_lshl_b32 s61, %s, 1' % sMB); e('s_add_u32 s61, s61, %s' % sHALF); e('s_lshl_b32 s61, s61, 9'); e('s_add_u32 s61, s61, %d' % GB); e('v_lshlrev_b32 v11, 3, v1')
pg = 'buffer_load_dwordx2 v[12:13], v11, %s, s61 offen sc1' % SWS
e(pg)
f.ifnb0('L_sp5')
e('v_lshlrev_b32 v64, 26, v8'); e('v_lshl_add_u32 v64, v4, 7, v64'); e('s_lshl_b32 s77, s78, 11'); e('s_add_u32 s77, s77, %d' % TVB)
for q in range(4): e('buffer_load_dwordx4 %s, v64, %s, s77 offen offset:%d sc1' % (v(48 + 4 * q, 4), SWS, 512 * q))
f.run([f.poll(psp, ['v130', 'v134'], sT1, 1)])
e('v_cmp_ne_u32 vcc, 0, v8')
for mt in range(2):
    for c2 in range(2):
        e('v_lshlrev_b32 v%d, 16, v%d' % (136 + 4 * mt + 2 * c2, 128 + 4 * mt + c2)); e('v_and_b32 v%d, 0xffff0000, v%d' % (137 + 4 * mt + 2 * c2, 128 + 4 * mt + c2))
for k in range(8):
    mt, kk = k >> 2, k & 3
    sh0 = 'row_shl:%d' % (4 * kk) if kk else 'quad_perm:[0,1,2,3]'
    for ri in range(2):
        e('v_cndmask_b32_dpp v%d, v%d, v%d, vcc %s %s bound_ctrl:0' % (96 + 8 * ri + k, 136 + 4 * mt + ri, 96 + 8 * ri + k, sh0, DP))
        e('v_mov_b32_dpp v%d, v%d %s %s bound_ctrl:0' % (112 + 8 * ri + k, 138 + 4 * mt + ri, sh0, DP))
f.endc('L_sp5')
f.run(gi[n3:n4])
if not opt('f2c', 1): f2const()
e(f.sread(SYF))
f.run([f.scheck(SYF, 9)])
f.stamp('preF2')
def F2_fwd(D, B):
    for q in range(4):
        if q >= 2:
            for k in range(4): e('v_xor_b32 v%d, s66, v%d' % (B + 4 * q + k, B + 4 * q + k))
        for mt in range(2):
            for part in range(2):
                d = v(D + 8 * mt + 4 * part, 4)
                e('v_mfma_f32_16x16x32_bf16 %s, %s, %s, %s' % (d, ag(16 * part + 8 * mt + 4 * (q & 1), 4), v(B + 4 * q, 4), '0' if q == 0 else d))
F2_fwd(64, 32)
f.ifnb0('L_sp6'); F2_fwd(80, 48); f.endc('L_sp6')
for k in range(8):
    zr = 64 + 8 * (k >> 2) + (k & 3)
    e('v_mul_f32 v%d, v%d, v%d' % (128 + k, zr, 96 + k)); e('v_mul_f32 v%d, v%d, v%d' % (136 + k, zr, 104 + k))
for k in range(8):
    zi = 68 + 8 * (k >> 2) + (k & 3)
    e('v_fma_f32 v%d, -v%d, v%d, v%d' % (128 + k, zi, 104 + k, 128 + k)); e('v_fmac_f32 v%d, v%d, v%d' % (136 + k, zi, 96 + k))
f.ifnb0('L_sp7')
for k in range(8):
    zr = 80 + 8 * (k >> 2) + (k & 3)
    e('v_fma_f32 v%d, -v%d, v%d, v%d' % (128 + k, zr, 120 + k, 128 + k)); e('v_fmac_f32 v%d, v%d, v%d' % (136 + k, zr, 112 + k))
for k in range(8):
    zi = 84 + 8 * (k >> 2) + (k & 3)
    e('v_fma_f32 v%d, -v%d, v%d, v%d' % (128 + k, zi, 112 + k, 128 + k)); e('v_fma_f32 v%d, -v%d, v%d, v%d' % (136 + k, zi, 120 + k, 136 + k))
f.endc('L_sp7')
for k in range(8): e('v_cvt_pk_bf16_f32 v%d, v%d, -v%d' % (128 + k, 128 + k, 136 + k))
for k in range(8): e('ds_write_b32 v22, v%d offset:%d' % (128 + k, (16 * (k >> 2) + (k & 3)) * 256))
f.run([f.S('F2fwd'), f.signal(SYF, 10), f.sread(SYF), f.scheck(SYF, 10), f.S('Ysync')])
for q in range(8): e('ds_read_b128 %s, v23 offset:%d' % (v(32 + 4 * q, 4), 1024 * q))
for q in range(8):
    kb, t = q >> 1, q & 1
    if kb:
        if kb != 2:
            for j in range(4): e('v_alignbit_b32 v%d, v%d, v%d, s%d' % ((32 + 4 * q + j,) * 3 + (67 + kb,)))
        for j in range(4): e('v_xor_b32 v%d, s%d, v%d' % (32 + 4 * q + j, 51 + kb, 32 + 4 * q + j))
    for mt in range(2):
        for part in range(2):
            d = v(64 + 8 * mt + 4 * part, 4)
            e('v_mfma_f32_16x16x32_bf16 %s, %s, %s, %s' % (d, v(32 + 4 * q, 4), ag(16 * part + 8 * mt + 4 * t, 4), '0' if q == 0 else d))
for mt in range(2):
    if mt:
        for k in range(4): e('v_mul_f32 v%d, v19, v%d' % (80 + k, 76 + k)); e('v_mul_f32 v%d, v19, v%d' % (84 + k, 72 + k))
        for k in range(4): e('v_fma_f32 v%d, v18, v%d, v%d' % (72 + k, 72 + k, 80 + k)); e('v_fma_f32 v%d, v18, v%d, -v%d' % (76 + k, 76 + k, 84 + k))
    for k in range(4): e('v_cvt_pk_bf16_f32 v%d, v%d, -v%d' % (128 + 4 * mt + k, 64 + 8 * mt + k, 68 + 8 * mt + k))
    e('ds_write_b128 v%d, %s' % (14 + mt, v(128 + 4 * mt, 4)))
for u in range(2): e('ds_read_b128 %s, v16 offset:%d' % (v(136 + 4 * u, 4), 1024 * u))
e(f.sread(SYM))
for u in range(2): e('buffer_store_dwordx4 %s, v21, %s, %s offen sc1' % (v(136 + 4 * u, 4), SWS, 's58' if u == 0 else 's59'), tag='R')
f.run([f.scheck(SYM, 1), f.poll([pg], ['v13'], sT1, 1), 'v_lshlrev_b32 v11, 2, v1', 'v_add_u32 v11, %d, v11' % GL, 'ds_write_b32 v11, v12'])
f.stamp('Rst')
e('s_lshl_b32 s77, %s, 1' % sHALF); e('s_lshl_b32 s64, %s, 2' % sMB); e('s_add_u32 s64, s64, s77')
gs = ['v_lshlrev_b32 v33, 2, v4', 'v_cvt_f32_u32 v33, v33', 's_lshr_b32 s77, %s, 1' % sW, 's_add_u32 s53, s64, s77', 's_xor_b32 s52, s53, 1',
      's_lshl_b32 s77, %s, 6' % sW, 's_add_u32 s77, s77, %d' % GL, 'v_lshl_add_u32 v34, v8, 2, s77', 'ds_read_b32 v25, v34']
for lam in range(2):
    gs += ['v_lshl_add_u32 v34, v8, 7, s%d' % (52 + lam), 'v_cvt_f32_u32 v34, v34', 'v_mul_f32 v34, 0x3a000000, v34', 'v_mul_f32 v35, v34, v33']
    for q in range(4): gs.append('v_fmamk_f32 v%d, v34, %s, v35' % (40 + q, fl(1.0 * q)))
    for q in range(4): gs += ['v_sin_f32 v%d, v%d' % (44 + q, 40 + q), 'v_cos_f32 v%d, v%d' % (40 + q, 40 + q)]
    for q in range(4): gs += ['v_cvt_pk_bf16_f32 v%d, v%d, -v%d' % (96 + 8 * lam + q, 40 + q, 44 + q), 'v_cvt_pk_bf16_f32 v%d, v%d, v%d' % (100 + 8 * lam + q, 44 + q, 40 + q)]
gs += ['v_sub_f32 v11, 1.0, v25', 'v_mul_f32 v25, %s, v25' % fl(1.0 / (224 * 2048))]
gs2 = ['s_and_b32 s77, s2, 7', 's_lshl_b32 s77, s77, 13', 's_add_u32 s63, s77, %d' % FL3, 's_lshl_b32 s77, %s, 2' % sW,
       'v_add_u32 v9, s77, v4', 'v_min_u32 v9, 13, v9', 'v_cmp_lt_u32 vcc, 6, v9', 'v_subrev_u32 v12, 7, v9', 'v_cndmask_b32 v9, v9, v12, vcc', 'v_lshlrev_b32 v9, 10, v9',
       'v_cndmask_b32 v12, 0, 16, vcc', 'v_add_u32 v9, v9, v12', 'v_and_b32 v12, 3, v1', 'v_lshl_add_u32 v9, v12, 8, v9', 'v_bfe_u32 v12, v1, 2, 2', 'v_lshl_add_u32 v9, v12, 5, v9',
       's_and_b32 s77, %s, 1' % sW, 's_lshl_b32 s77, s77, 6', 'v_lshlrev_b32 v10, 4, v8', 'v_xor_b32 v10, s77, v10', 's_movk_i32 s77, 7168', 'v_mad_u32_u24 v10, v4, s77, v10',
       's_lshl_b32 s66, %s, 9' % sW, 's_add_u32 s66, s66, %d' % RB, 's_cmp_eq_u32 %s, 3' % sW, 's_cselect_b32 s67, 0x40000000, 256']
gs2[-1] = 's_movk_i32 s67, 256'; gs2.append('s_cselect_b32 s67, 0x40000000, s67')
for lam in (1, 0):
    gs2 += ['s_mul_i32 s77, s%d, 28672' % (52 + lam), 's_add_u32 s%d, s77, s66' % (52 + 2 * lam), 's_add_u32 s%d, s%d, s67' % (53 + 2 * lam, 52 + 2 * lam)]
for q in range(4): gs2.append('s_add_u32 s%d, s%d, 3584' % (68 + q, 52 + q))
p3 = ['buffer_load_dword v12, v9, %s, s63 offen %s' % (SWS, PSC), 'buffer_load_dword v13, v9, %s, s63 offen offset:128 %s' % (SWS, PSC)]
flag3 = None if (opt('nopoll', 0) >= 2 or opt('onlyfl2', 0)) else f.U(['s_mov_b64 exec, 15', ('%s v24, v17, %s, s62 offen %s' % (FST, SWS, FSC), 'flag'), 's_mov_b64 exec, -1'])
gs = gs + gihead + gi[n4:]
k1 = opt('gs1', 70)
assert (n4 - 127) % 85 == 0 or True
gi2 = []
f.run([LO if opt('lo2', 1) else None] + gs[:k1] + [f.S('preWR'), f.W('R'), f.S('WR'), flag3, LO] + gs[k1:] + gi2 + gs2 + ['s_sleep %d' % opt('rsleep', 0) if opt('rsleep', 0) else None, HI3, p3[0], (p3[1], 'p3'), f.S('prepollR'), f.W('p3'), f.S('p3back')] + [f.poll(p3, ['v12', 'v13'], sT1, 1)])
f.stamp('pollR')
def raw(q, j): return ag(16 * q + 4 * j, 4) if q < 3 else v(112 + 4 * j, 4)
def R_load(q): return ['buffer_load_dwordx4 %s, v10, %s, s%d offen offset:%d sc1' % (raw(q, j), SWS, (52 if j < 2 else 68) + q, 1792 * (j & 1)) for j in range(4)]
f.run(R_load(0) + R_load(1) + R_load(2) + R_load(3))
e('s_xor_b32 s77, %s, 1' % sHALF); e('s_mul_i32 s77, s77, 7'); e('s_add_u32 s77, s77, %s' % sNT)
e('s_lshl_b32 s78, %s, 4' % sMB); e('s_add_u32 s77, s77, s78'); e('s_lshl_b32 s77, s77, 2'); e('s_add_u32 s77, s77, %s' % sW)
e('s_lshl_b32 s61, s77, 12'); e('s_add_u32 s61, s61, %d' % PXB)
e(f.sread(SYM2))
f.run([f.scheck(SYM2, 2)])
D4 = ((12, 16), (20, 28))
def FR(P, h): return 128 + 8 * (P & 1) + 4 * h
def RD(P, h):
    q, cc = 2 * (P >> 2) + h, P & 3
    return [('v_accvgpr_read_b32 v%d, a%d' % (FR(P, h) + j, 16 * q + 4 * j + cc)) if q < 3 else ('v_mov_b32 v%d, v%d' % (FR(P, h) + j, 112 + 4 * j + cc)) for j in range(4)]
def S4(P): return ['v_mfma_f32_16x16x32_bf16 %s, %s, %s, 0' % (v(D4[h][part], 4), v(FR(P, h), 4), v(96 + 8 * (P >> 2) + 4 * part, 4)) for h in range(2) for part in range(2)]
def CV(P): return ['v_cvt_pk_bf16_f32 v%d, v%d, v%d' % (FR(P, h) + j, D4[h][0] + j, D4[h][1] + j) for h in range(2) for j in range(4)] + \
                  ['v_permlane16_swap_b32 v%d, v%d' % (FR(P, 0) + j, FR(P, 1) + j) for j in range(4)]
def FD(P, h):
    A = 32 + 16 * (2 * (1 - (P >> 2)) + h); cc = P & 3
    return ['v_mfma_f32_16x16x32_bf16 %s, %s, %s, %s' % (v(A + 4 * ct, 4), ag(48 + 16 * cc + 4 * ct, 4), v(FR(P, h), 4), '0' if cc == 0 else v(A + 4 * ct, 4)) for ct in range(4)]
def ship(rho):
    P = 32 + 16 * rho
    return ['s_xor_b32 s77, %s, %d' % (sW, rho), 's_mul_i32 s77, s77, 6144', 's_add_u32 s77, s77, %d' % (RED + 2048 * (rho - 1)), 'v_add_u32 v9, s77, v7'] + \
           ['v_cvt_pk_bf16_f32 v%d, v%d, v%d' % (P + k, P + 2 * k, P + 2 * k + 1) for k in range(8)] + ['ds_write_b128 v9, %s' % v(P, 4), 'ds_write_b128 v9, %s offset:1024' % v(P + 4, 4)]
pxl = ['buffer_load_dwordx4 %s, v7, %s, s61 offen offset:%d sc1' % (v(64 + 4 * k, 4), SWS, 1024 * k) for k in range(3)]
f.run(RD(0, 0) + RD(0, 1) + S4(0) + RD(1, 0) + RD(1, 1) + CV(0))
for P in range(8):
    extra = []
    if P == 5: extra = ship(2)
    if P == 6: extra = ship(3)
    if P == 7: extra = ['v_lshlrev_b32 v10, 3, v4', 's_lshl_b32 s77, %s, 7' % sNT] + ['buffer_load_dwordx2 %s, v10, %s, s77 offen offset:%d' % (v(88 + 2 * ct, 2), SB2, 32 * ct) for ct in range(4)]
    nx = P + 1 < 8; n2x = P + 2 < 8
    main = (S4(P + 1) if nx else []) + FD(P, 1) + FD(P, 0)
    o = 4 if nx else 0
    f.run(weave(main, (extra, 0, o + 2), (CV(P + 1) if nx else [], o + 2, o + 8), (RD(P + 2, 1) if n2x else [], o + 4, o + 8)) + (RD(P + 2, 0) if n2x else []))
f.run(ship(1))
f.stamp('F3')
f.run([f.signal(SYF, 11)])
f.run([f.sread(SYF), f.scheck(SYF, 11)])
e('s_mul_i32 s77, %s, 6144' % sW); e('s_add_u32 s77, s77, %d' % RED); e('v_add_u32 v9, s77, v7')
for k in range(6): e('ds_read_b128 %s, v9 offset:%d' % (v(96 + 4 * k, 4), 1024 * k))
for s in range(3):
    for k in range(8):
        e('v_lshlrev_b32 v%d, 16, v%d' % (128 + 2 * k, 96 + 8 * s + k)); e('v_and_b32 v%d, 0xffff0000, v%d' % (129 + 2 * k, 96 + 8 * s + k))
    for k in range(16): e('v_add_f32 v%d, v%d, v%d' % (32 + k, 32 + k, 128 + k))
for k in range(16): e('v_mul_f32 v%d, v25, v%d' % (32 + k, 32 + k))
for k in range(8):
    e('v_lshlrev_b32 v%d, 16, v%d' % (128 + 2 * k, 88 + k)); e('v_and_b32 v%d, 0xffff0000, v%d' % (129 + 2 * k, 88 + k))
for k in range(16): e('v_fmac_f32 v%d, v11, v%d' % (32 + k, 128 + k))
f.stamp('red')
for ct in range(4): e('ds_write_b128 v9, %s offset:%d' % (v(32 + 4 * ct, 4), 1024 * ct))
f.wait_lg()
f.barrier()
f.finish(1)

x = Role(); e = x.e
x.raw('L_aux:')
e('s_and_b32 s44, s2, 1')
e('s_bfe_u32 s45, s2, 0x20001')
e('s_bfe_u32 s46, s2, 0x20003'); e('s_lshl_b32 s46, s46, 3'); e('s_add_u32 s46, s46, s79')
e('v_lshrrev_b32 v2, 4, v1'); e('v_and_b32 v3, 15, v1'); e('v_min_u32 v3, 13, v3'); e('v_lshlrev_b32 v3, 7, v3')
e('s_movk_i32 s77, 3584'); e('v_mad_u32_u24 v2, v2, s77, v3')
e('v_lshlrev_b32 v4, 7, v1')
e('v_lshrrev_b32 v5, 4, v1'); e('v_bfe_u32 v6, v1, 2, 2'); e('v_lshl_add_u32 v5, v5, 4, v6'); e('v_mul_u32_u24 v5, 450, v5')
e('v_and_b32 v6, 3, v1'); e('v_lshlrev_b32 v6, 7, v6'); e('v_min_u32 v6, 224, v6'); e('v_add_u32 v5, v5, v6')
e('s_mul_i32 s47, s44, 1792'); e('s_mul_i32 s77, s46, %d' % (4 * 3584)); e('s_add_u32 s47, s47, s77')
e('s_mul_i32 s72, s44, 802816'); e('s_lshl_b32 s77, s46, 13'); e('s_add_u32 s72, s72, s77')
e('s_lshl_b32 s73, s46, 6'); e('s_lshl_b32 s77, s45, 2'); e('s_add_u32 s73, s73, s77'); e('s_mul_i32 s73, s73, 450'); e('s_mul_i32 s77, s44, 224'); e('s_add_u32 s73, s73, s77')
x.raw('    s_waitcnt lgkmcnt(0)')
x.srd(8, 56, 1605632); x.srd(12, 60, 1605632); x.srd(20, 50, 921600); x.srd(24, 52, 921600)
e('v_mov_b32 v8, v2'); e('v_mov_b32 v9, v4'); e('s_mov_b32 s40, s47'); e('s_mov_b32 s41, s72'); e('s_mov_b32 s42, s73')
if opt('upf', 0):
    e('s_and_b32 s77, s2, 7'); e('s_lshl_b32 s78, s46, 3'); e('s_add_u32 s77, s77, s78'); e('s_lshl_b32 s77, s77, 13')
    e('buffer_load_ubyte v10, v9, %s, s77 offen' % SW1); e('buffer_load_ubyte v11, v9, %s, s77 offen' % SW2)
    e('s_xor_b32 s78, s77, 0x100000')
    e('buffer_load_ubyte v12, v9, %s, s77 offen' % SWR); e('buffer_load_ubyte v13, v9, %s, s78 offen' % SWI)
x.srd(4, 48, 1835008); x.srd(32, 64, 896); x.srd(16, 70, WS_SIZE)
e('buffer_load_dword v24, off, %s, 0 sc1' % SWS)
e('s_lshr_b32 s47, s46, 3'); e('s_lshl_b32 s77, s45, 2'); e('s_add_u32 s47, s47, s77'); e('s_lshl_b32 s47, s47, 1'); e('s_add_u32 s47, s47, s44')
e('s_and_b32 s77, s79, 1'); e('s_lshl_b32 s77, s77, 10'); e('s_bfe_u32 s78, s79, 0x10001'); e('s_lshl_b32 s78, s78, 6'); e('s_add_u32 s77, s77, s78')
e('s_lshr_b32 s78, s79, 2'); e('s_add_u32 s77, s77, s78'); e('s_lshl_b32 s78, s47, 1'); e('s_add_u32 s77, s77, s78'); e('s_mul_i32 s72, s77, 896')
e('v_lshrrev_b32 v2, 3, v1'); e('v_and_b32 v3, 7, v1'); e('v_lshlrev_b32 v3, 4, v3'); e('s_mov_b32 s77, %d' % (128 * 896)); e('v_mad_u32_u24 v4, v2, s77, v3')
for k in range(7):
    e('buffer_load_dwordx4 %s, v4, %s, s72 offen offset:%d' % (v(32 + 4 * k, 4), SX, 128 * k)); e('buffer_load_dwordx4 %s, v3, %s, 0 offen offset:%d' % (v(64 + 4 * k, 4), SGW, 128 * k))
e('s_and_b32 s77, s2, 3'); e('s_lshl_b32 s36, s77, 5'); e('s_add_u32 s36, s36, s46')
e('s_lshr_b32 s77, s36, 3'); e('s_bfe_u32 s78, s36, 0x20001'); e('s_lshl_b32 s78, s78, 4'); e('s_add_u32 s77, s77, s78'); e('s_and_b32 s78, s36, 1'); e('s_lshl_b32 s78, s78, 10'); e('s_add_u32 s77, s77, s78')
e('v_lshrrev_b32 v26, 2, v1'); e('v_lshl_add_u32 v27, v26, 6, s77'); e('v_sub_u32 v28, 2048, v27'); e('v_and_b32 v28, 2047, v28'); e('v_and_b32 v29, 1, v1'); e('v_cmp_eq_u32 vcc, 1, v29')
e('v_bfe_u32 v29, v1, 1, 1'); e('v_mul_u32_u24 v29, 448, v29'); e('v_cndmask_b32 v27, v27, v28, vcc'); e('s_movk_i32 s77, 450'); e('v_mad_u32_u24 v27, v27, s77, v29')
e('s_bitcmp1_b32 s2, 2'); e('s_cselect_b32 s37, 0x40000000, 0')
e('buffer_load_ushort v22, v27, %s, s37 offen' % SWR); e('buffer_load_ushort v23, v27, %s, s37 offen' % SWI)
pfl = []
for k in range(4 if opt('pfw1', 1) else 0): pfl.append(['buffer_load_ubyte v%d, v8, %s, s40 offen' % (10 + k, SW1), 's_add_u32 s40, s40, %d' % (128 * 3584)])
for k in range(3): pfl.append(['buffer_load_ubyte v%d, v9, %s, s41 offen' % (14 + k, SW2), 's_add_u32 s41, s41, %d' % (32 * 8192)])
pfl.append(['buffer_load_ubyte v18, v5, %s, s42 offen' % SWR, 'buffer_load_ubyte v19, v5, %s, s42 offen' % SWI])
pfl.append(['s_cmp_ge_u32 s46, 2', 's_cselect_b32 s41, 0x40000000, s41', 'buffer_load_ubyte v17, v9, %s, s41 offen' % SW2])
if opt('pft', 0):
    e('s_and_b32 s77, s2, 7'); e('s_lshl_b32 s78, s46, 3'); e('s_add_u32 s77, s77, s78'); e('s_lshl_b32 s77, s77, 13')
    e('s_add_u32 s78, s77, %d' % (FL2 - 0x20000)); e('s_cmp_ge_u32 s77, 0x20000'); e('s_cselect_b32 s77, s78, s77')
    e('s_cmp_ge_u32 s77, %d' % (TB if opt('pft', 2) > 1 else 0x20000)); e('s_cselect_b32 s77, 0x40000000, s77')
    e('buffer_load_ubyte v25, v9, %s, s77 offen' % SWS)
PFE = opt('pfe', 0)
for y in pfl[:PFE]: x.run(y)
e('v_mov_b32 v20, 0'); e('v_mov_b32 v21, 0')
x.stamp('iss')
x.tags()
x.stamp('E')
e('v_lshlrev_b32 v22, 16, v22'); e('v_lshlrev_b32 v23, 16, v23')
e('v_add_f32_dpp v28, v22, v22 quad_perm:[1,0,3,2] %s' % DP); e('v_subrev_f32_dpp v29, v23, v23 quad_perm:[1,0,3,2] %s' % DP)
e('v_cvt_pk_bf16_f32 v28, v28, v29'); e('v_mov_b32 v30, v24'); e('v_mov_b32 v31, v24'); e('v_mov_b32_dpp v29, v28 quad_perm:[2,2,2,2] %s' % DP)
e('v_lshlrev_b32 v26, 4, v26'); e('s_lshl_b32 s77, s36, 8'); e('s_add_u32 s77, s77, %d' % SPB); e('s_add_u32 s77, s77, s37')
e('s_mov_b32 exec_lo, 0x11111111'); e('s_mov_b32 exec_hi, 0x11111111')
e('buffer_store_dwordx4 v[28:31], v26, %s, s77 offen sc1' % SWS)
e('s_mov_b64 exec, -1')
x.stamp('sp')
for k in range(28): e('v_dot2c_f32_bf16 v%d, v%d, v%d' % (20 + (k & 1), 32 + k, 64 + k))
e('v_add_f32 v20, v20, v21')
e('v_add_f32_dpp v20, v20, v20 quad_perm:[1,0,3,2] %s' % DP); e('v_add_f32_dpp v20, v20, v20 quad_perm:[2,3,0,1] %s' % DP); e('v_add_f32_dpp v20, v20, v20 row_half_mirror %s' % DP)
e('v_mul_f32 v20, %s, v20' % fl(-1.4426950408889634)); e('v_exp_f32 v20, v20'); e('v_add_f32 v20, 1.0, v20'); e('v_rcp_f32 v20, v20'); e('v_mov_b32 v21, v24')
e('s_lshl_b32 s77, s47, 9'); e('s_lshl_b32 s78, s79, 6'); e('s_add_u32 s77, s77, s78'); e('s_add_u32 s77, s77, %d' % GB); e('v_lshlrev_b32 v2, 3, v2')
e('s_mov_b32 exec_lo, 0x01010101'); e('s_mov_b32 exec_hi, 0x01010101')
e('buffer_store_dwordx2 v[20:21], v2, %s, s77 offen sc1' % SWS)
e('s_mov_b64 exec, -1')
x.stamp('g')
if DIAG: x.wait_vm_all(); x.stamp('ack')
x.barrier()
if opt('pf', 0):
    for y in pfl[PFE:]: x.run(y)
if DIAG: e('s_mov_b32 %s, s79' % sW); x.finish(0)

hdr = open('cdna_kernels/%s.s.ref' % NAME).read().split('; Override')[0]
txt = hdr + '; @launch grid=(%d,1,1) block=(512,1,1) lds=%d\n' % (NWG, LDS_SIZE)
txt += '.amdgcn_target "amdgcn-amd-amdhsa--gfx950"\n.text\n.globl %s_kernel\n.p2align 8\n.type %s_kernel,@function\n' % (NAME, NAME)
txt += c.text() + m.text() + f.text() + x.text() + 'L_end:\n    s_endpgm\n'
txt += '''.section .rodata,"a"
.p2align 6
.amdhsa_kernel %s_kernel
  .amdhsa_next_free_vgpr 256
  .amdhsa_next_free_sgpr 102
  .amdhsa_accum_offset 144
  .amdhsa_group_segment_fixed_size 0
  .amdhsa_kernarg_size 96
  .amdhsa_user_sgpr_count 2
  .amdhsa_user_sgpr_kernarg_segment_ptr 1
  .amdhsa_system_sgpr_workgroup_id_x 1
.end_amdhsa_kernel
''' % NAME
out = [x for x in sys.argv[1:] if not x.startswith('--')]
open(out[0] if out else 'cdna_kernels/%s.s' % NAME, 'w').write(txt)
if DIAG: open('names.txt', 'w').write(repr([m.names, f.names, x.names]))
print('instrs mlp', sum(m.count.values()), 'fft', sum(f.count.values()), 'nops', m.nnop, f.nnop, file=sys.stderr)
```

```python
import sys
from asmlib import *

NAME = 'gated_mix__spectral_gfnet__dense_activation_gelu__prompt'
DIAG = '--diag' in sys.argv
def opt(name, default):
    for x in sys.argv:
        if x.startswith('--%s=' % name): return int(x.split('=')[1])
    return default
FL1, FL3, FL2 = 0x1000, 0x10000, 0x80000
GB = 0x8000
SPB = 0x40000
TVB = 0x50000

TB = 0x100000
RB = TB + 1835008
HB = RB + 1835008
PXB = HB + 7340032
DIAGB = PXB + 16 * 16 * 16384
WS_SIZE = DIAGB + (256 * 2048 if DIAG else 0)
W1H1 = 57344
CB = 122880
RED = 90112
YX = 114688
TT = 151552
TV = 159744
GW = 160256
B1L = 161280
GL = 161792
SYM = 162304; SYF = 162320; SYM2 = 162336; SYX = 162352
LDS_SIZE = 163840
SX, SW1, SW2, SWS, SWR, SWI, SOUT, SGW, SB1, SB2 = ['s[%d:%d]' % (i, i + 3) for i in range(4, 44, 4)]
sMB, sNB, sHALF, sNT, sW, sT1, sT2, sEN, sSQ = 's44', 's45', 's46', 's47', 's72', 's73', 's74', 's75', 's76'
sROT = 's3'
SPIN = 20000
FST = 'buffer_atomic_swap' if opt('atf', 0) else 'buffer_store_dword'
FSC = ['sc1', 'sc0 sc1', 'sc1 nt'][opt('fsc', 0)]
PSC = ['sc1', 'sc0 sc1', 'sc1 nt', 'nt', 'sc0 sc1 nt'][opt('psc', 0)]
NWG = 256 if opt('aux', 1) else 224
DP = 'row_mask:0xf bank_mask:0xf'
def v(i, n=1): return 'v%d' % i if n == 1 else 'v[%d:%d]' % (i, i + n - 1)
def ag(i, n=1): return 'a%d' % i if n == 1 else 'a[%d:%d]' % (i, i + n - 1)
lab = [0]

class Role(Asm):
    def __init__(self):
        super().__init__(); self.ns = 1; self.names = ['start']
    def stamp(self, name=''):
        if not DIAG: return
        if opt('dbg', 0) and name not in ('xiss', 'Xend', 'G1a', 'G1b', 'gelu3', 'hiss', 'G2end', 'end', 'F1end', 'pollT', 'Rst', 'pollR', 'red'): return
        assert self.ns < 60
        self.raw('    s_memtime s[98:99]\n    s_waitcnt lgkmcnt(0)\n    v_writelane_b32 v0, s98, %d' % self.ns); self.pos += 3
        self.names.append(name); self.ns += 1
    def S(self, name=''): return lambda: self.stamp(name)
    def W(self, tag): return lambda: self.wait_vm(tag)
    def L(self, tag=None): return lambda: self.wait_lg(tag)
    def U(self, items): return lambda: self.run(items)
    def flag(self, vtag, soff):
        if opt('nopoll', 0) >= 2: return None
        if opt('onlyfl2', 0) and soff != 's61': return None
        if opt('fullfl', 0) and soff == 's61':
            return self.U(['s_mov_b64 exec, 0x%x' % ((1 << opt('fullfl', 0)) - 1), ('buffer_store_dword %s, v5, %s, %s offen sc1' % (vtag, SWS, soff), 'flag'), 's_mov_b64 exec, -1'])
        return self.U(['s_mov_b64 exec, 1', ('%s %s, off, %s, %s %s' % (FST, vtag, SWS, soff, FSC), 'flag'), 's_mov_b64 exec, -1'])
    def spin(self, loads, waitc, tests, sleep):
        n = lab[0]; lab[0] += 1
        def f():
            for t in tests: self.e(t)
            self.nop(1)
            self.e('s_cmp_eq_u64 vcc, 0'); self.e('s_cbranch_scc1 L_pd%d' % n)
            t = ['    s_mov_b32 s96, %d' % SPIN, 'L_pl%d:' % n] + (['    s_sleep %d' % sleep] if sleep else [])
            t += ['    ' + l for l in loads] + ['    s_waitcnt ' + waitc] + ['    ' + x for x in tests]
            t += ['    s_sub_u32 s96, s96, 1', '    s_cmp_eq_u32 s96, 0', '    s_cbranch_scc1 L_pd%d' % n,
                  '    s_cmp_eq_u64 vcc, 0', '    s_cbranch_scc0 L_pl%d' % n, 'L_pd%d:' % n]
            self.raw('\n'.join(t))
        return f
    def poll(self, loads, regs, stag, lim):
        if opt('nopoll', 0): return None
        tests = ['v_subrev_u32 %s, %s, %s' % (r, stag, r) for r in regs] + ['v_max_u32 %s, %s, %s' % (regs[0], regs[0], r) for r in regs[1:]]
        tests += ['v_cmp_le_u32 vcc, %d, %s' % (lim, regs[0])]
        return self.spin(loads, 'vmcnt(0)', tests, opt('gsleep', 10))
    def signal(self, base, k):
        return self.U(['v_mov_b32 v28, %d' % k, 'ds_write_b32 v26, v28 offset:%d' % (base - SYM)])
    def sread(self, base): return 'ds_read_b128 v[28:31], v27 offset:%d' % (base - SYM)
    def scheck(self, base, k):
        tests = ['v_min_u32 v28, v28, v29', 'v_min3_u32 v28, v28, v30, v31', 'v_cmp_gt_u32 vcc, %d, v28' % k]
        return self.spin([self.sread(base)], 'lgkmcnt(0)', tests, opt('lsleep', 1))
    def sread1(self, base): return 'ds_read_b32 v28, v26 offset:%d' % (base - SYM)
    def scheck1(self, base, k):
        return self.spin([self.sread1(base)], 'lgkmcnt(0)', ['v_cmp_gt_u32 vcc, %d, v28' % k], opt('lsleep', 1))
    def chtab(self, regs, shift):
        e = self.e
        e('s_mov_b32 s77, %s' % sROT)
        for p in range(7):
            e('s_lshl_b32 %s, s77, %d' % (regs[p], shift))
            if p < 6: e('s_add_u32 s77, s77, 1'); e('s_cmp_eq_u32 s77, 7'); e('s_cselect_b32 s77, 0, s77')
    def srd(self, d, lo, n):
        e = self.e
        e('s_mov_b32 s%d, s%d' % (d, lo)); e('s_mov_b32 s%d, s%d' % (d + 1, lo + 1))
        e('s_mov_b32 s%d, %d' % (d + 2, n)); e('s_mov_b32 s%d, 0x20000' % (d + 3))
    def tags(self):
        e = self.e
        e('v_readfirstlane_b32 s77, v24')
        e('s_add_u32 %s, s77, 1' % sEN); e('s_mul_i32 s77, s77, 0x9E3779B1')
        e('s_add_u32 %s, s77, 0x7F4A7C15' % sT1); e('s_add_u32 %s, %s, 1' % (sT2, sT1))
        e('v_mov_b32 v24, %s' % sT1)
    def xread_addrs(self, b):
        e = self.e
        e('v_bfe_u32 v%d, v1, 1, 3' % b); e('v_xor_b32 v%d, v%d, v5' % (b, b)); e('v_lshlrev_b32 v%d, 4, v%d' % (b, b))
        e('v_lshl_add_u32 v%d, v6, 7, v%d' % (b, b)); e('v_add_u32 v%d, s50, v%d' % (b, b))
        for tt in range(1, 4): e('v_xor_b32 v%d, %d, v%d' % (b + tt, 32 * tt, b))
    def ifnb0(self, label):
        self.e('s_cmp_lg_u32 %s, 0' % sNB); self.e('s_cbranch_scc1 %s' % label); self.cond_begin()
    def endc(self, label):
        self.cond_end(); self.raw(label + ':')
    def finish(self, role):
        if DIAG:
            e = self.e
            self.raw('    s_waitcnt vmcnt(0)')
            self.stamp('end')
            self.raw('    s_memrealtime s[98:99]\n    s_waitcnt lgkmcnt(0)\n    v_writelane_b32 v0, s98, 63\n    v_writelane_b32 v0, s94, 62\n    v_writelane_b32 v0, s80, 0')
            e('s_lshl_b32 s77, s2, 3'); e('s_add_u32 s77, s77, %s' % sW); e('s_lshl_b32 s77, s77, 8'); e('s_add_u32 s77, s77, %d' % (DIAGB + 1024 * role))
            e('v_lshlrev_b32 v2, 2, v1')
            e('buffer_store_dword v0, v2, %s, s77 offen' % SWS)
            if opt('dbg', 0) and self is not globals().get('x'):
                self.raw('    s_load_dwordx2 s[4:5], s[0:1], 80\n    s_waitcnt lgkmcnt(0)\n    s_mov_b32 s6, 256\n    s_mov_b32 s7, 0x20000')
                e('v_subrev_u32 v3, s80, v0'); e('v_mov_b32 v4, s98'); e('s_not_b32 s94, s94'); e('v_mov_b32 v5, s94')
                e('s_mov_b64 exec, 0x%x' % (0x1fe if role == 0 else 0x3e))
                e('buffer_atomic_umax v3, v2, s[4:7], 0 offen offset:%d sc1' % (0 if role == 0 else 32))
                e('s_mov_b64 exec, 1')
                e('buffer_atomic_umax v4, off, s[4:7], 0 offset:56 sc1'); e('buffer_atomic_umax v5, off, s[4:7], 0 offset:60 sc1')
        self.raw('    s_endpgm')

c = Role(); e = c.e
c.raw('%s_kernel:' % NAME)
e('s_cmp_ge_u32 s2, %d' % NWG)
e('s_cbranch_scc1 L_end')
if DIAG: c.raw('    s_memrealtime s[98:99]\n    s_waitcnt lgkmcnt(0)\n    s_mov_b32 s94, s98\n    s_memtime s[98:99]\n    s_waitcnt lgkmcnt(0)\n    s_mov_b32 s80, s98')
c.raw('    s_load_dwordx16 s[48:63], s[0:1], 0\n    s_load_dwordx8 s[64:71], s[0:1], 64')
e('v_lshrrev_b32 v2, 6, v0')
e('v_and_b32 v1, 63, v0')
e('v_readfirstlane_b32 s79, v2')
e('s_cmp_ge_u32 s2, 224')
e('s_cbranch_scc1 L_aux')
e('s_getpc_b64 s[96:97]')
c.raw('L_pc:')
e('v_lshlrev_b32 v2, 7, v0')
e('v_min_u32 v2, L_end-L_pc, v2')
e('v_mov_b32 v3, s97')
e('v_add_co_u32 v2, vcc, s96, v2')
e('v_addc_co_u32 v3, vcc, 0, v3, vcc')
c.raw('    global_load_dword v143, v[2:3], off')
e('s_and_b32 s77, s2, 7'); e('s_lshr_b32 s78, s2, 3')
e('s_and_b32 %s, s77, 1' % sHALF); e('s_lshr_b32 s77, s77, 1'); e('s_lshl_b32 s77, s77, 2')
e('s_and_b32 %s, s78, 3' % sMB); e('s_add_u32 %s, %s, s77' % (sMB, sMB))
e('s_lshr_b32 %s, s78, 2' % sNT); e('s_mul_i32 %s, %s, 7' % (sNB, sHALF)); e('s_add_u32 %s, %s, %s' % (sNB, sNB, sNT))
e('s_and_b32 %s, s79, 3' % sW)
e('s_and_b32 s77, s78, 3'); e('s_lshl_b32 s77, s77, 1'); e('s_add_u32 s77, s77, %s' % sNT); e('s_sub_u32 s78, s77, 7'); e('s_cmp_ge_u32 s77, 7'); e('s_cselect_b32 %s, s78, s77' % sROT)
if not opt('rot', 1): e('s_mov_b32 %s, 0' % sROT)
e('s_lshl_b32 %s, %s, 2' % (sSQ, sMB)); e('s_add_u32 %s, %s, %s' % (sSQ, sSQ, sW))
e('v_lshrrev_b32 v2, 3, v1'); e('v_and_b32 v3, 7, v1'); e('v_lshrrev_b32 v4, 4, v1'); e('v_lshrrev_b32 v5, 5, v1')
e('v_and_b32 v6, 31, v1'); e('v_lshlrev_b32 v7, 4, v1'); e('v_and_b32 v8, 15, v1')
e('v_mov_b32 v27, %d' % SYM); e('s_lshl_b32 s78, %s, 2' % sW); e('v_add_u32 v26, s78, v27')
e('s_cmp_lt_u32 s79, 4') if opt('fftfirst', 1) else e('s_cmp_ge_u32 s79, 4')
e('s_cbranch_scc1 L_fft')

F1ADDR = ['s_lshl_b32 s77, %s, 12' % sW, 's_cmp_ge_u32 %s, 2' % sW, 's_mov_b32 s78, %d' % TT, 's_cselect_b32 s78, %d, s78' % (YX - 8192), 's_add_u32 s77, s77, s78', 'v_add_u32 v35, s77, v7']
m = Role(); e = m.e
e('s_setprio %d' % opt('mprio', 1))
e('v_xor_b32 v17, v3, v4'); e('v_lshlrev_b32 v17, 4, v17'); e('s_mov_b32 s77, %d' % (128 * 896)); e('v_mad_u32_u24 v9, v2, s77, v17')
e('v_xor_b32 v10, 64, v9'); e('v_add_u32 v10, %d, v10' % (1024 * 896 - 1024))
e('v_add_u32 v11, %d, v9' % (64 * 896 - 2048)); e('v_add_u32 v12, %d, v10' % (64 * 896 - 2048))
XCH = ['s%d' % (20 + p) for p in range(7)]
e('s_mul_i32 s100, %s, 896' % sSQ)
for u in range(4): e('v_add_u32 v%d, s100, v%d' % (9 + u, 9 + u))
m.chtab(XCH, 7)
e('s_lshl_b32 s101, %s, 12' % sW)
m.raw('    s_waitcnt lgkmcnt(0)')
m.srd(32, 48, 1835008)
def dma_x(p):
    return ['s_add_u32 m0, s101, %d' % (p * 16384)] + [('buffer_load_dwordx4 v%d, s[32:35], %s offen offset:%d lds' % (9 + u, XCH[p], 1024 * u), 'x%d' % p) for u in range(4)]
m.srd(8, 56, 1605632)
e('s_lshl_b32 s43, s2, 2'); e('s_add_u32 s43, s43, %s' % sW); e('s_mul_i32 s49, s43, 1152'); e('s_mul_i32 s43, s43, 1792'); e('v_lshlrev_b32 v23, 7, v1')
def upf(srd, soff, n, dst): return m.U(['s_mov_b64 exec, 0x%x' % ((1 << n) - 1), 'buffer_load_ubyte v%d, v23, %s, %s offen' % (dst, srd, soff), 's_mov_b64 exec, -1'])
W1AT = opt('w1at', 0)
for p in range(4):
    m.run(dma_x(p))
    if p == W1AT: m.run([upf(SW1, 's43', 14, 140)])
m.barrier()
for p in range(4, 7):
    m.run(dma_x(p))
    if p == W1AT: m.run([upf(SW1, 's43', 14, 140)])
m.stamp('xiss')
m.run([m.W('x3'), m.signal(SYX, 1)])
m.srd(16, 70, WS_SIZE); m.srd(36, 58, 3584)
m.srd(12, 60, 1605632); m.srd(28, 66, 1835008); m.srd(4, 50, 921600); m.srd(32, 52, 921600)
pf2 = [upf(SW2, 's43', 14, 141), upf('s[4:7]', 's49', 9, 142), upf('s[32:35]', 's49', 9, 139)]
if opt('pf2at', 0) == 0: m.run(pf2)
e('s_lshl_b32 s50, %s, 12' % sW); e('s_lshl_b32 s51, %s, 11' % sW)
e('v_and_b32 v17, 1, v4'); e('v_lshlrev_b32 v17, 2, v17'); e('v_xor_b32 v17, v3, v17'); e('v_lshlrev_b32 v17, 4, v17')
e('s_movk_i32 s77, 3584'); e('v_mad_u32_u24 v13, v2, s77, v17'); e('s_lshl_b32 s78, %s, 8' % sNB); e('v_add_u32 v13, s78, v13')
for u in range(1, 4): e('v_add_u32 v%d, %d, v13' % (13 + u, u * 27648))
m.xread_addrs(17)
def dma_w1(p):
    r = ['s_add_u32 s77, %s, %d' % (sW, 4 * p), 's_sub_u32 s78, s77, 14', 's_cmp_ge_u32 s77, 14', 's_cselect_b32 s77, s78, s77', 's_cselect_b32 s79, 128, 0',
         's_lshl_b32 s78, %s, 1' % sROT, 's_add_u32 s77, s77, s78', 's_sub_u32 s78, s77, 14', 's_cmp_ge_u32 s77, 14', 's_cselect_b32 s77, s78, s77',
         's_mul_i32 s77, s77, %d' % (32 * 3584), 's_add_u32 s60, s77, s79', 's_add_u32 m0, s50, %d' % (p * 16384)]
    return r, [('buffer_load_dwordx4 v%d, %s, s60 offen offset:%d lds' % (13 + u, SW1, 1024 * u), 'w1_%d' % p) for u in range(4)]
CH = ['s4', 's5', 's6', 's7', 's40', 's41', 's42']
CW = XCH
setup0 = ['s_lshl_b32 %s, %s, 6' % (CH[k], XCH[k]) for k in range(7)] + ['s_mul_i32 %s, %s, 896' % (CW[k], XCH[k]) for k in range(7)]
setup = []
setup += ['v_bfe_u32 v21, v1, 2, 2', 'v_lshl_add_u32 v21, v5, 3, v21', 'v_lshlrev_b32 v21, 7, v21', 'v_bfe_u32 v22, v1, 3, 1', 'v_lshl_add_u32 v21, v22, 6, v21',
          'v_bfe_u32 v22, v1, 4, 1', 'v_lshl_add_u32 v21, v22, 5, v21', 'v_and_b32 v22, 3, v1', 'v_lshl_add_u32 v21, v22, 3, v21', 'v_xor_b32 v22, 64, v21',
          'v_lshlrev_b32 v128, 16, v25', 'v_and_b32 v129, 0xffff0000, v25', 'v_lshlrev_b32 v130, 3, v1', 'v_add_u32 v130, %d, v130' % B1L, 'ds_write_b64 v130, v[128:129]',
          'v_lshlrev_b32 v130, 4, v5', 'v_add_u32 v130, %d, v130' % B1L]
for j in range(4):
    for q in range(4): setup.append('ds_read_b128 %s, v130 offset:%d' % (v(32 + 16 * j + 4 * q, 4), (32 * j + 8 * q) * 4))
setup.append(m.tags)
setup2 = setup0 + ['s_mul_i32 s53, %s, 896' % sHALF, 's_lshl_b32 s78, %s, 4' % sW, 's_add_u32 s53, s53, s78', 's_mul_i32 s53, s53, 896', 's_lshl_b32 s78, %s, 7' % sNT, 's_add_u32 s53, s53, s78',
          'v_lshlrev_b32 v9, 1, v4', 'v_xor_b32 v9, v3, v9', 'v_lshl_add_u32 v9, v9, 4, s53', 's_movk_i32 s78, 896', 'v_mad_u32_u24 v9, v2, s78, v9', 'v_add_u32 v10, 6144, v9',
          'v_add_u32 v11, %d, v9' % (64 * 896), 'v_add_u32 v12, %d, v10' % (64 * 896),
          'v_mov_b32 v23, %s' % fl(-0.1029432397),
          's_mul_i32 s58, %s, 56' % sSQ, 's_lshl_b32 s78, %s, 2' % sNB, 's_add_u32 s58, s58, s78', 's_lshl_b32 s58, s58, 11', 's_add_u32 s58, s58, %d' % HB, 's_add_u32 s59, s58, 4096',
          's_lshl_b32 s61, %s, 4' % sSQ, 's_add_u32 s61, s61, %s' % sNB, 's_lshl_b32 s61, s61, 7', 's_add_u32 s61, s61, %d' % FL2,
          's_lshl_b32 s62, %s, 4' % sMB, 's_add_u32 s62, s62, %s' % sNB, 's_lshl_b32 s62, s62, 2', 's_add_u32 s62, s62, %s' % sW,
          's_lshl_b32 s63, s62, 12', 's_add_u32 s63, s63, %d' % PXB,
          's_lshr_b32 s78, %s, 1' % sW, 's_lshl_b32 s79, %s, 2' % sMB, 's_add_u32 s78, s78, s79', 's_lshl_b32 s79, %s, 1' % sHALF, 's_add_u32 s55, s78, s79', 's_xor_b32 s54, s55, 2',
          's_lshl_b32 s65, s78, 4', 's_mul_i32 s79, %s, 7' % sHALF, 's_add_u32 s65, s65, s79', 's_lshl_b32 s65, s65, 7', 's_add_u32 s65, s65, %d' % FL2,
          's_mov_b32 s64, s55', 's_mul_i32 s79, %s, 28' % sHALF, 's_and_b32 s78, %s, 1' % sW, 's_lshl_b32 s78, s78, 8', 's_add_u32 s78, s78, %d' % HB]
for r in (54, 55): setup2 += ['s_mul_i32 s%d, s%d, 56' % (r, r), 's_add_u32 s%d, s%d, s79' % (r, r), 's_lshl_b32 s%d, s%d, 11' % (r, r), 's_add_u32 s%d, s%d, s78' % (r, r)]
setup3 = ['v_lshlrev_b32 v13, 4, v8', 'v_lshl_add_u32 v13, v4, 9, v13', 'v_add_u32 v15, s55, v13', 'v_add_u32 v13, s54, v13', 'v_add_u32 v14, 4096, v13', 'v_add_u32 v16, 4096, v15',
          'v_bfe_u32 v17, v1, 2, 2', 'v_lshl_add_u32 v17, v5, 4, v17', 'v_bfe_u32 v18, v1, 4, 1', 'v_lshl_add_u32 v17, v18, 2, v17', 'v_lshlrev_b32 v17, 7, v17',
          'v_bfe_u32 v18, v1, 3, 2', 'v_lshl_add_u32 v17, v18, 5, v17', 'v_and_b32 v18, 3, v1', 'v_lshl_add_u32 v17, v18, 3, v17', 'v_add_u32 v17, %d, v17' % CB]
setup3 += ['v_xor_b32 v%d, %d, v17' % (17 + ct, 32 * ct) for ct in range(1, 4)]
setup3 += ['v_lshlrev_b32 v5, 2, v1', 'v_min_u32 v25, 6, v3', 'v_and_b32 v6, 1, v2', 'v_lshl_add_u32 v25, v6, 5, v25', 'v_lshlrev_b32 v25, 7, v25']
for k in range(1, 4): setup3.append('s_add_u32 s%d, s65, %d' % (67 + k, 0x20000 * k))
e('v_lshlrev_b32 v12, 2, v1'); e('s_lshl_b32 s78, %s, 8' % sNB)
e('buffer_load_dword v24, off, %s, 0 sc1' % SWS); e('buffer_load_dword v25, v12, %s, s78 offen' % SB1)
def xrd(p): return [('ds_read_b128 %s, v%d offset:%d' % (ag(16 * p + 4 * tt, 4), 17 + tt, (p % 4) * 16384), 'xr%d' % p) for tt in range(4)]
m.run(xrd(0) + xrd(1) + xrd(2) + xrd(3) + [m.W('x6'), m.signal(SYX, 2), m.sread1(SYF)])
for tt in range(4): e('v_add_u32 v%d, 65536, v%d' % (17 + tt, 17 + tt))
m.stamp('X6')
NR0 = opt('nr0', 2)
w1rest = []
for rr in range(7):
    pre, L = dma_w1(rr)
    if rr < NR0:
        m.run(pre)
        if rr == 0: m.run([m.scheck1(SYF, 4)] + xrd(4) + xrd(5) + xrd(6))
        m.run([m.L('xr%d' % rr)] + L)
    else:
        if rr == 4: pre = [m.sread1(SYF)] + pre + [m.scheck1(SYF, 7)]
        w1rest.append([m.U(pre + [L[0]])] + L[1:])
if opt('pf2at', 0) == 1: m.run(pf2)
m.run(setup)
m.stamp('Xend')
K0 = fl(-2.302208198)
PK = opt('pk', 0)
def gelu(j, tb, pk=0):
    r = []; A = 32 + 16 * j
    for h in range(2):
        for q in range(2):
            X = [A + 8 * h + 4 * q + i for i in range(4)]; T = [tb + 4 * q + i for i in range(4)]
            if pk:
                P = [(v(T[0], 2), v(X[0], 2)), (v(T[2], 2), v(X[2], 2))]
                r += ['v_pk_mul_f32 %s, %s, %s' % (t, x, x) for t, x in P]
                r += ['v_pk_fma_f32 %s, %s, s[66:67], s[66:67] op_sel:[0,0,1] op_sel_hi:[1,0,1]' % (t, t) for t, x in P]
                r += ['v_pk_mul_f32 %s, %s, %s' % (t, t, x) for t, x in P]
                r += ['v_exp_f32 v%d, v%d' % (t, t) for t in T]
                r += ['v_pk_add_f32 %s, %s, 1.0 op_sel_hi:[1,0]' % (t, t) for t, x in P]
                r += ['v_rcp_f32 v%d, v%d' % (t, t) for t in T]
                r += ['v_pk_mul_f32 %s, %s, %s' % (x, t, x) for t, x in P]
            else:
                r += ['v_mul_f32 v%d, v%d, v%d' % (t, x, x) for t, x in zip(T, X)]
                r += ['v_fmaak_f32 v%d, v%d, v23, %s' % (t, t, K0) for t in T]
                r += ['v_mul_f32 v%d, v%d, v%d' % (t, t, x) for t, x in zip(T, X)]
                r += ['v_exp_f32 v%d, v%d' % (t, t) for t in T]
                r += ['v_add_f32 v%d, 1.0, v%d' % (t, t) for t in T]
                r += ['v_rcp_f32 v%d, v%d' % (t, t) for t in T]
                r += ['v_mul_f32 v%d, v%d, v%d' % (x, t, x) for t, x in zip(T, X)]
            r += ['v_cvt_pk_bf16_f32 v%d, v%d, v%d' % (A + 8 * h + 2 * q + i, X[2 * i], X[2 * i + 1]) for i in range(2)]
        r.append(('buffer_store_dwordx4 %s, v7, %s, %s offen offset:%d%s' % (v(A + 8 * h, 4), SWS, 's58' if j < 2 else 's59', (j & 1) * 2048 + h * 1024, '' if opt('hsp', 0) else ' sc1'), 'h%d' % j))
        if opt('hdbl', 0): r.append((r[-1][0].replace(' sc1', ''), 'h%d' % j))
    return r
setup3 += ['s_mov_b32 s66, %s' % fl(-0.1029432397), 's_mov_b32 s67, %s' % K0]
def w2_lds(mm, late):
    k = mm + 7 * late
    if k < 3: return CB + 8192 * k
    return 8192 * (k - 3)
def dma_w2(mm, late):
    tag = 'w2a' if mm + 7 * late < 10 else 'w2b'
    L = [('buffer_load_dwordx4 v%d, %s, %s offen offset:%d lds' % (9 + 2 * late + u, SW2, CW[mm], 1024 * u), tag) for u in range(2)]
    return [m.U(['s_add_u32 m0, s51, %d' % w2_lds(mm, late), L[0]]), L[1]]
def trG(i):
    r = []
    if i == 28: r += ['v_add_u32 v21, %d, v21' % W1H1, 'v_add_u32 v22, %d, v22' % W1H1]
    return r + ['ds_read_b64_tr_b16 %s, v%d offset:%d' % (v(96 + 8 * (i % 4) + 4 * j + 2 * aa, 2), 21 + j, 2048 * (i % 28) + 512 * aa) for j in range(2) for aa in range(2)]
def g1(i, j):
    d = v(32 + 16 * (2 * (i // 28) + j), 16)
    return 'v_mfma_f32_32x32x16_bf16 %s, %s, %s, %s' % (d, v(96 + 8 * (i % 4) + 4 * j, 4), ag(4 * (i % 28), 4), d)
def hflag(j): return [m.W('h%d' % j), m.flag('v24', 's61'), 's_add_u32 s61, s61, 0x20000']
m.run([m.W('w1_0'), m.signal(SYM, 1), m.sread(SYM), m.scheck(SYM, 1)])
m.run(trG(0) + trG(1))
SYNC = {8: 1, 16: 3, 32: 6}
def g1_items(lo, hi):
    main = []
    for i in range(lo, hi):
        rd = trG(i + 2) if i + 2 < 56 else [None] * 4
        pre = []
        if i + 5 in SYNC: pre = [m.W('w1_%d' % SYNC[i + 5]), m.signal(SYM, SYNC[i + 5] + 1)]
        if i + 4 in SYNC: pre = [m.sread(SYM)]
        if i + 2 in SYNC: pre = [m.scheck(SYM, SYNC[i + 2] + 1)]
        if i == 17: pre = [m.sread(SYF)]
        if i == 19: pre = [m.scheck(SYF, 7)]
        if i == 31: pre = [m.signal(SYM2, 1)]
        if i == 32: pre = [m.sread(SYM2)]
        if i == 33: pre = [m.scheck(SYM2, 1)]
        if i == opt('hf0', 50): pre = hflag(0)
        if i in (1, 8, 14, 18, 24, 34, 40, 46): pre = pre + [m.S('g1_%d' % i)]
        main.append(m.U(pre + [g1(i, 0)] + rd[:-2])); main.append(m.U([g1(i, 1)] + rd[-2:]))
    return main
w2c = dma_w2(0, 0) + dma_w2(1, 0) + dma_w2(2, 0)
m.run(weave(g1_items(0, 28), (sum(w1rest[:-3], []), 0, 12), (sum(w1rest[-3:], []), opt('r4lo', 14), opt('r4hi', 34)), ((pf2 if opt('pf2at', 0) == 2 else []) + setup2, 34, 46), (w2c, 46, 56)))
m.run(setup3)
m.stamp('G1a')
w2a = []
for k in range(3, 10): w2a += dma_w2(k % 7, k // 7)
GE = opt('ge', 48)
m.run(weave(g1_items(28, 56), (gelu(0, 128, PK > 1) + gelu(1, 136, PK > 1), 0, GE), (w2a, 12, 56)))
m.stamp('G1b')
m.run([m.signal(SYM2, 2), m.sread(SYM2)])
def p2(j): return 'buffer_load_dword v6, v25, %s, %s offen %s' % (SWS, ['s65', 's68', 's69', 's70'][j], PSC)
def hcheck(j): return m.poll([p2(j)], ['v6'], sT1, 1)
g2 = gelu(2, 128, PK); n2 = len(g2)
w2b = []
for mm in range(3, 7): w2b += dma_w2(mm, 1)
m.run(g2[:n2 // 5] + [m.scheck(SYM2, 2)] + weave(g2[n2 // 5:n2 * 3 // 4], w2b) + [m.W('h1'), p2(0)] + hflag(1)[1:] + g2[n2 * 3 // 4:])
m.stamp('gelu2')
MERGE = opt('merge', 2)
steps = [(mm, j, (0, 1)) for j in range(MERGE) for mm in range(7)] + [(mm, j, (0,)) for j in range(MERGE, 4) for mm in range(7)] + \
        [(mm, j, (1,)) for j in range(MERGE, 4) for mm in range(7)]
loads = [(i, p) for i, st in enumerate(steps) for p in st[2]]
lidx = {x: k for k, x in enumerate(loads)}
NH = 28; NS = len(steps)
def h_load(k):
    i, p = loads[k]; mm, j, _ = steps[i]
    return 'buffer_load_dwordx4 %s, v%d, %s, %s offen offset:%d%s' % (ag(4 * (k % NH), 4), 13 + 2 * p + (j >> 1), SWS, CH[mm], 2048 * (j & 1), '' if opt('hlp', 0) else ' sc1')
def trD(i):
    mm, j, _ = steps[i]
    ad = w2_lds(mm, j >> 1) + 4096 * (j & 1)
    base, ar = (CB, 17) if ad >= CB else ((0, 64) if ad < W1H1 else (W1H1, 68))
    return ['ds_read_b64_tr_b16 %s, v%d offset:%d' % (v(96 + 16 * (i % 3) + 4 * ct + 2 * aa, 2), ar + ct, ad - base + 1024 * aa) for ct in range(4) for aa in range(2)]
started = set()
def mfD(i):
    r = []
    for p in steps[i][2]:
        for ct in range(4):
            d = v(32 + 16 * p + 4 * ct, 4)
            r.append('v_mfma_f32_16x16x32_bf16 %s, %s, %s, %s' % (d, v(96 + 16 * (i % 3) + 4 * ct, 4), ag(4 * (lidx[(i, p)] % NH), 4), d if p in started else '0'))
        started.add(p)
    return r
first_lvl = {j: min(k for k, (i, p) in enumerate(loads) if steps[i][1] == j) for j in range(4)}
issued = 0
PLEAD = opt('plead', 5)
def issue_upto(n, fill):
    global issued
    while issued < min(n, len(loads)):
        for j in range(1, 4):
            if first_lvl[j] == issued: fill.append(hcheck(j))
            if j > 1 and first_lvl[j] - PLEAD == issued: fill.append(p2(j))
        fill.append(h_load(issued)); issued += 1
g3 = gelu(3, 136, PK)
k3 = len(g3) * opt('c0at', 70) // 100
fl0 = []; issue_upto(first_lvl[1], fl0)
if opt('l0early', 0):
    st3 = [y for y in g3 if isinstance(y, tuple)]; g3 = [y for y in g3 if not isinstance(y, tuple)]; k3 = len(g3) * opt('l0early', 0) // 100
    m.run(g3[:k3] + [m.S('gelu3'), hcheck(0), m.S('chk0')] + weave(g3[k3:], fl0) + st3 + [m.S('L0iss'), p2(1)] + hflag(2))
else:
    m.run(g3[:k3] + hflag(2) + g3[k3:] + [m.S('gelu3'), hcheck(0), m.S('chk0'), p2(1)] + fl0 + [m.S('L0iss')] + hflag(3)[:2])
for ct in range(4): e('v_subrev_u32 v%d, %d, v%d' % (64 + ct, CB, 17 + ct)); e('v_subrev_u32 v%d, %d, v%d' % (68 + ct, CB - W1H1, 17 + ct))
m.run([m.signal(SYM2, 3), m.sread(SYM2), m.scheck(SYM2, 3)])
m.run(trD(0) + trD(1))
m.stamp('hiss')
last_p0 = max(i for i, st in enumerate(steps) if 0 in st[2])
LEAD = opt('lead', 10)
mpx = ['buffer_load_dwordx4 %s, v7, %s, s79 offen offset:%d sc1' % (v(84 + 4 * k, 4), SWS, 1024 * k) for k in range(3)]
for i in range(NS):
    fill = []
    issue_upto(lidx[(i, steps[i][2][-1])] + 1 + LEAD, fill)
    if i == NS - 1 - opt('pxl', 3): fill += ['s_cmp_eq_u32 %s, 0' % sHALF, 's_mov_b32 s79, %d' % (7 * 16384), 's_cselect_b32 s79, s79, %d' % ((1 << 32) - 7 * 16384), 's_add_u32 s79, s79, s63'] + mpx
    if opt('l0early', 0) and i == opt('hf3', 4): fill += hflag(3)[:2]
    if i == last_p0 + 1:
        PXR = [72, 73, 74, 76, 77, 78, 80, 81]
        fill += ['v_mov_b32 v%d, %s' % (r, sT1) for r in (75, 79, 83)]
        fill += ['v_cvt_pk_bf16_f32 v%d, v%d, v%d' % (PXR[k], 32 + 2 * k, 33 + 2 * k) for k in range(8)]
        fill += ['buffer_store_dwordx4 %s, v7, %s, s63 offen offset:%d sc1' % (v(72 + 4 * k, 4), SWS, 1024 * k) for k in range(3)]
    if i == NS - 6:
        fill += ['s_mov_b32 s78, %d' % (128 * 896), 'v_and_b32 v14, 1, v4', 'v_lshlrev_b32 v14, 5, v14', 'v_lshrrev_b32 v15, 1, v4', 'v_lshl_add_u32 v14, v15, 4, v14',
                 'v_mad_u32_u24 v14, v8, s78, v14',
                 's_and_b32 s66, %s, 1' % sW, 's_lshl_b32 s66, s66, 6', 's_add_u32 s66, s66, s64', 's_mul_i32 s66, s66, 896', 's_lshl_b32 s78, %s, 7' % sNT, 's_add_u32 s66, s66, s78',
                 's_mul_i32 s78, %s, 6144' % sW, 's_add_u32 s78, s78, %d' % RED, 'v_add_u32 v15, s78, v7',
                 's_lshl_b32 s78, %s, 6' % sW, 's_add_u32 s78, s78, %d' % GL, 'v_lshl_add_u32 v16, v8, 2, s78']
        assert issued == len(loads)
    rd = trD(i + 2) if i + 2 < NS else []
    m.run(weave(mfD(i), rd, fill))
    if i in (0, 6, 13, 20, last_p0, NS - 8): m.stamp('g2_%d' % i)
m.stamp('G2end')
m.barrier()
e('ds_read_b32 v13, v16')
for ct in range(4): e('ds_read_b128 %s, v15 offset:%d' % (v(64 + 4 * ct, 4), 1024 * ct))
m.run([m.poll(mpx, ['v87', 'v91', 'v95'], sT1, 1)])
m.stamp('px')
for k, r in enumerate([84, 85, 86, 88, 89, 90, 92, 93]):
    e('v_lshlrev_b32 v%d, 16, v%d' % (32 + 2 * k, r)); e('v_and_b32 v%d, 0xffff0000, v%d' % (33 + 2 * k, r))
for k in range(16): e('v_add_f32 v%d, v%d, v%d' % (48 + k, 48 + k, 32 + k))
e('v_sub_f32 v13, 1.0, v13')
for k in range(16): e('v_fmac_f32 v%d, v13, v%d' % (64 + k, 48 + k))
for k in range(8): e('v_cvt_pk_bf16_f32 v%d, v%d, v%d' % (80 + k, 64 + 2 * k, 65 + 2 * k))
for p in range(2):
    e('v_permlane16_swap_b32 v%d, v%d' % (80 + 4 * p, 82 + 4 * p)); e('v_permlane16_swap_b32 v%d, v%d' % (81 + 4 * p, 83 + 4 * p))
for p in range(2):
    e('buffer_store_dwordx4 %s, v14, %s, s66 offen offset:%d%s' % (v(80 + 4 * p, 4), SOUT, 64 * p, ['', ' sc1', ' nt', ' sc0 sc1'][opt('osc', 0)]))
e('s_or_b32 s77, s2, %s' % sW); e('s_cmp_lg_u32 s77, 0'); e('s_cbranch_scc1 L_fin'); m.cond_begin()
e('v_mov_b32 v2, %s' % sEN); e('s_mov_b64 exec, 1'); e('buffer_store_dword v2, off, %s, 0 sc1' % SWS); e('s_mov_b64 exec, -1')
m.endc('L_fin')
m.finish(0)

f = Role(); e = f.e
f.raw('L_fft:')
e('s_setprio %d' % opt('fprio', 2))
f.run([f.signal(SYM, 0)]); e('ds_write_b32 v26, v28 offset:%d' % (SYF - SYM)); e('ds_write_b32 v26, v28 offset:%d' % (SYM2 - SYM)); e('ds_write_b32 v26, v28 offset:%d' % (SYX - SYM))
f.run(['v_lshrrev_b32 v32, 1, v6', 's_lshl_b32 s77, %s, 4' % sNB, 'v_add_u32 v32, s77, v32', 'v_and_b32 v33, 1, v1', 'v_cvt_f32_u32 v34, v33',
     'v_mul_f32 v34, 0x3e800000, v34', 'v_lshl_add_u32 v35, v32, 1, v33', 'v_cmp_eq_u32 vcc, 1, v35', 'v_mov_b32 v35, 224',
     'v_cndmask_b32 v32, v32, v35, vcc', 'v_cndmask_b32 v34, v34, v28, vcc', 'v_cvt_f32_u32 v32, v32', 'v_mul_f32 v32, %s, v32' % fl(1.0 / 448),
     's_mul_i32 s77, %s, 112' % sW, 'v_lshl_add_u32 v35, v5, 3, s77', 'v_cvt_f32_u32 v35, v35', 'v_fmac_f32 v34, v32, v35', 'v_fract_f32 v34, v34',
     's_mul_i32 s77, %s, 7168' % sW, 's_add_u32 s77, s77, %d' % CB, 'v_add_u32 v35, s77, v7'])
def w1pf():
    f.raw('    s_waitcnt lgkmcnt(0)'); f.lg_done = len(f.lg)
    f.srd(28, 56, 1605632)
    e('v_lshrrev_b32 v36, 1, v1'); e('v_min_u32 v36, 27, v36'); e('v_mul_u32_u24 v36, 3584, v36'); e('v_and_b32 v37, 1, v1'); e('v_lshl_add_u32 v36, v37, 7, v36')
    e('s_and_b32 s77, %s, 15' % sSQ); e('s_mul_i32 s77, s77, %d' % (28 * 3584)); e('s_lshl_b32 s78, %s, 8' % sNB); e('s_add_u32 s77, s77, s78')
    f.raw('    buffer_load_ubyte v142, v36, s[28:31], s77 offen')
for tt in range(7):
    if tt == opt('w1pf', 9): w1pf()
    b = 40 + 12 * (tt & 1)
    for j in range(8): e('v_fmamk_f32 v%d, v32, %s, v34' % (b + j, fl(16.0 * tt + j)))
    for j in range(8): e('v_cos_f32 v%d, v%d' % (b + j, b + j))
    for j in range(4): e('v_cvt_pk_bf16_f32 v%d, v%d, v%d' % (b + 8 + j, b + 2 * j, b + 2 * j + 1))
    e('ds_write_b128 v35, %s offset:%d' % (v(b + 8, 4), 1024 * tt))
f.raw('    s_waitcnt lgkmcnt(0)'); f.lg_done = len(f.lg)
f.stamp('genC')
FCH = ['s%d' % (8 + p) for p in range(7)]
f.chtab(FCH, 12)
f.srd(16, 70, WS_SIZE); f.srd(20, 50, 921600); f.srd(24, 52, 921600); f.srd(40, 62, 896)
e('s_lshl_b32 s50, %s, 12' % sW)
e('v_add_u32 v13, %d, v7' % CB)
f.xread_addrs(9)
e('v_and_b32 v21, 1, v1'); e('v_lshlrev_b32 v22, 1, v21'); e('v_lshlrev_b32 v21, 31, v21'); e('v_or_b32 v21, 1.0, v21')
e('v_lshrrev_b32 v14, 1, v6'); e('v_lshl_add_u32 v22, v14, 4, v22'); e('v_lshl_add_u32 v22, v5, 10, v22')
e('s_lshl_b32 s77, %s, 2' % sW); e('s_add_u32 s77, s77, %d' % TT); e('v_add_u32 v22, s77, v22')
e('s_lshl_b32 s77, %s, 11' % sW); e('s_add_u32 s77, s77, %d' % TT); e('v_add_u32 v15, s77, v7')
e('v_lshlrev_b32 v16, 4, v8'); e('v_lshl_add_u32 v16, v4, 12, v16')
e('s_lshl_b32 s55, %s, 17' % sNB); e('s_add_u32 s55, s55, %d' % TB)
e('s_lshl_b32 s58, %s, 15' % sW); e('s_lshl_b32 s78, %s, 8' % sMB); e('s_add_u32 s58, s58, s78'); e('s_add_u32 s58, s58, s55'); e('s_add_u32 s59, s58, 16384')
gf1 = ['v_cvt_f32_u32 v32, v6', 'v_mul_f32 v32, 0x3d000000, v32', 'v_mul_u32_u24 v33, %s, v8' % sSQ,
     'v_bfe_u32 v34, v1, 4, 1', 's_lshr_b32 s79, %s, 5' % sSQ, 's_lshl_b32 s79, s79, 9', 'v_mad_u32_u24 v33, v34, s79, v33',
     'v_cvt_f32_u32 v33, v33', 'v_mul_f32 v33, 0x3a000000, v33', 'v_lshlrev_b32 v34, 3, v5', 'v_cvt_f32_u32 v34, v34', 'v_fmac_f32 v33, v32, v34']
for cc in range(2):
    for hq in range(2):
        for j in range(4): gf1.append('v_fmamk_f32 v%d, v32, %s, v33' % (36 + j, fl(16.0 * hq + 2 * j + cc)))
        for j in range(4): gf1 += ['v_sin_f32 v%d, v%d' % (40 + j, 36 + j), 'v_cos_f32 v%d, v%d' % (36 + j, 36 + j)]
        for j in range(2): gf1 += ['v_cvt_pk_bf16_f32 v%d, v%d, v%d' % (128 + 4 * cc + 2 * hq + j, 36 + 2 * j, 37 + 2 * j), 'v_cvt_pk_bf16_f32 v%d, v%d, v%d' % (136 + 4 * cc + 2 * hq + j, 40 + 2 * j, 41 + 2 * j)]
f.barrier()
cr = []
for p in range(7): cr += ['v_add_u32 v23, %s, v13' % FCH[p]] + ['ds_read_b128 %s, v23 offset:%d' % (ag(16 * p + 4 * tt, 4), 1024 * tt) for tt in range(4)]
f.run(weave(gf1[:-4], cr))
f.raw('    s_waitcnt vmcnt(0)')
f.run(gf1[-4:])
XB = [48, 64, 96, 112]
def f1_mfma(p):
    return ['v_mfma_f32_32x32x16_bf16 %s, %s, %s, %s' % (v(80, 16), v(XB[p & 3] + 4 * tt, 4), ag(16 * p + 4 * tt, 4), '0' if (p == 0 and tt == 0) else v(80, 16)) for tt in range(4)]
def fxr(p): return [('ds_read_b128 %s, v%d offset:%d' % (v(XB[p & 3] + 4 * tt, 4), 9 + tt, (p % 4) * 16384), 'xr%d' % p) for tt in range(4)]
f.run([f.sread1(SYX), f.scheck1(SYX, 1)])
f.stamp('x0')
f.run(fxr(0) + fxr(1) + weave(f1_mfma(0), fxr(2) + fxr(3)) + [f.sread1(SYX)] + ['v_add_u32 v%d, 65536, v%d' % (9 + tt, 9 + tt) for tt in range(4)])
f.run(f1_mfma(1) + [f.scheck1(SYX, 2), f.signal(SYF, 4)])
f.run(weave(f1_mfma(2), fxr(4) + fxr(5)) + weave(f1_mfma(3), fxr(6)) + f1_mfma(4) + f1_mfma(5) + [f.L('xr6'), f.signal(SYF, 7)] + f1_mfma(6))
e('buffer_load_dword v24, off, %s, 0 sc1' % SWS)
f.stamp('F1end')
for j in range(8): e('v_cvt_pk_bf16_f32 v%d, v%d, v%d' % (80 + j, 80 + 2 * j, 81 + 2 * j))
e('v_mfma_f32_32x32x16_bf16 %s, %s, %s, 0' % (v(32, 16), v(128, 4), v(80, 4)))
e('v_mfma_f32_32x32x16_bf16 %s, %s, %s, 0' % (v(48, 16), v(136, 4), v(80, 4)))
e('v_mfma_f32_32x32x16_bf16 %s, %s, %s, %s' % (v(32, 16), v(132, 4), v(84, 4), v(32, 16)))
e('v_mfma_f32_32x32x16_bf16 %s, %s, %s, %s' % (v(48, 16), v(140, 4), v(84, 4), v(48, 16)))
f.ifnb0('L_sp1')
for k in range(16): e('v_cvt_pk_bf16_f32 v%d, v%d, -v%d' % (64 + k, 32 + k, 48 + k))
f.endc('L_sp1')
for k in range(16): e('v_fmac_f32_dpp v%d, v%d, v21 quad_perm:[1,0,3,2] %s' % (32 + k, 48 + k, DP))
for k in range(0, 16, 2): e('v_cvt_pk_bf16_f32 v%d, v%d, v%d' % (48 + k // 2, 32 + k, 33 + k))
for k in range(0, 16, 2):
    off = (8 * (k >> 2) + (k & 3)) * 256
    e('ds_write_b16 v22, v%d offset:%d' % (48 + k // 2, off)); e('ds_write_b16_d16_hi v22, v%d offset:%d' % (48 + k // 2, off + 256))
f.ifnb0('L_sp2')
e('v_and_b32 v23, 1, v1'); e('s_mov_b32 s77, %d' % (TT - YX + 2)); e('v_mul_u32_u24 v23, s77, v23'); e('v_sub_u32 v23, v22, v23')
e('s_mov_b32 exec_lo, 3'); e('s_mov_b32 exec_hi, 3')
for k in range(16): e('ds_write_b32 v23, v%d offset:%d' % (64 + k, (8 * (k >> 2) + (k & 3)) * 256))
e('s_mov_b64 exec, -1')
f.endc('L_sp2')
f.run([f.signal(SYF, 8), f.sread(SYF)])
f.run([f.scheck(SYF, 8)])
e('ds_read_b128 %s, v15' % v(64, 4)); e('ds_read_b128 %s, v15 offset:1024' % v(68, 4))
e('buffer_store_dwordx4 %s, v16, %s, s58 offen sc1' % (v(64, 4), SWS), tag='T')
e('buffer_store_dwordx4 %s, v16, %s, s59 offen sc1' % (v(68, 4), SWS), tag='T')
f.ifnb0('L_sp3')
e('s_lshl_b32 s77, %s, 11' % sW); e('s_add_u32 s77, s77, %d' % YX); e('v_lshlrev_b32 v21, 8, v1'); e('v_add_u32 v22, s77, v21')
e('v_lshlrev_b32 v21, 11, v1'); e('s_lshl_b32 s77, %s, 14' % sW); e('s_lshl_b32 s78, %s, 7' % sMB); e('s_add_u32 s77, s77, s78'); e('s_add_u32 s77, s77, %d' % TVB)
e('s_mov_b64 exec, 0xff'); e('ds_read_b128 %s, v22' % v(72, 4))
e('buffer_store_dwordx4 %s, v21, %s, s77 offen sc1' % (v(72, 4), SWS), tag='T')
e('s_mov_b64 exec, -1')
f.endc('L_sp3')
f.stamp('Tst')
f.tags()
f.run([f.signal(SYF, 9)])
for k in range(16): e('v_mov_b32 v%d, 0' % (96 + k))
e('v_lshlrev_b32 v19, 1, v8'); e('s_mov_b32 s77, %d' % (256 * 450)); e('v_mad_u32_u24 v19, v4, s77, v19')
e('s_lshl_b32 s56, %s, 4' % sW); e('s_add_u32 s56, s56, %s' % sMB); e('s_mul_i32 s77, s56, 450'); e('s_lshl_b32 s78, %s, 5' % sNB); e('s_add_u32 s57, s77, s78')
wl = []
for k in range(8):
    wl += [f.U(['s_add_u32 s79, s57, %d' % ((16 * (k >> 2) + (k & 3)) * 28800), 'buffer_load_short_d16_hi v%d, v19, %s, s79 offen' % (96 + k, SWR)]),
           'buffer_load_short_d16_hi v%d, v19, %s, s79 offen' % (104 + k, SWI)]
psp = ['buffer_load_dwordx4 %s, v20, %s, s65 offen offset:%d sc1' % (v(128 + 4 * mt, 4), SWS, 256 * mt) for mt in range(2)]
def wsp():
    e('v_lshrrev_b32 v20, 2, v1'); e('v_lshlrev_b32 v20, 4, v20')
    f.ifnb0('L_sp4')
    e('s_lshl_b32 s65, %s, 9' % sSQ); e('s_add_u32 s65, s65, %d' % SPB)
    f.run(psp)
    f.endc('L_sp4')
e('s_lshl_b32 s60, %s, 2' % sNB); e('s_add_u32 s60, s60, %s' % sW); e('s_lshl_b32 s60, s60, 2'); e('s_and_b32 s77, %s, 3' % sMB); e('s_add_u32 s60, s60, s77')
e('s_lshl_b32 s60, s60, 3'); e('s_lshr_b32 s78, %s, 2' % sMB); e('s_add_u32 s60, s60, s78'); e('s_lshl_b32 s60, s60, 4'); e('s_add_u32 s60, s60, %d' % FL1)
e('s_lshl_b32 s62, %s, 2' % sNT); e('s_add_u32 s62, s62, s77'); e('s_lshl_b32 s62, s62, 1'); e('s_and_b32 s77, %s, 1' % sW); e('s_add_u32 s62, s62, s77'); e('s_lshl_b32 s62, s62, 3')
e('s_and_b32 s77, s2, 7'); e('s_add_u32 s62, s62, s77'); e('s_lshl_b32 s62, s62, 4')
e('s_lshr_b32 s77, %s, 1' % sW); e('s_lshl_b32 s77, s77, 13'); e('s_add_u32 s62, s62, s77'); e('s_add_u32 s62, s62, %d' % FL3)
e('s_lshr_b32 s77, %s, 3' % sMB); e('s_and_b32 s78, %s, 1' % sW); e('s_lshl_b32 s79, s78, 1'); e('s_add_u32 s77, s77, s79')
e('s_lshl_b32 s79, %s, 2' % sNB); e('s_add_u32 s77, s77, s79'); e('s_lshl_b32 s77, s77, 9'); e('s_add_u32 s63, s77, %d' % FL1)
e('v_and_b32 v9, 3, v1'); e('v_lshlrev_b32 v9, 7, v9'); e('v_bfe_u32 v10, v1, 2, 2'); e('v_lshl_add_u32 v9, v10, 4, v9')
gi = ['s_lshl_b32 s68, %s, 6' % sNT, 'v_add_u32 v80, s68, v8', 'v_cvt_f32_u32 v80, v80', 's_lshl_b32 s68, %s, 6' % sW, 'v_bfe_u32 v81, v1, 4, 1', 'v_lshl_add_u32 v81, v81, 1, v5', 'v_lshl_add_u32 v81, v81, 4, s68',
      'v_cvt_f32_u32 v81, v81', 'v_and_b32 v84, 1, v1', 'v_lshlrev_b32 v84, 31, v84', 'v_or_b32 v84, 0x3e803e80, v84', 'v_cmp_eq_u32 s[70:71], 0, v81']
gihead = list(gi)
for ct in range(4):
    gi += ['v_add_f32 v82, %s, v80' % fl(16.0 * ct), 'v_mul_f32 v82, %s, v82' % fl(1.0 / 448), 'v_mul_f32 v83, v82, v81', 'v_fract_f32 v83, v83']
    for cc in range(4):
        for q in range(4): gi.append('v_fmamk_f32 v%d, v82, %s, v83' % (88 + q, fl(4.0 * q + cc)))
        for q in range(4): gi += ['v_sin_f32 v%d, v%d' % (92 + q, 88 + q), 'v_cos_f32 v%d, v%d' % (88 + q, 88 + q)]
        for q in range(4): gi.append('v_cvt_pk_bf16_f32 v%d, v%d, -v%d' % (88 + q, 88 + q, 92 + q))
        if cc == 0: gi.append('v_cndmask_b32 v88, v88, v84, s[70:71]')
        for q in range(4): gi.append('v_accvgpr_write_b32 a%d, v%d' % (48 + 16 * cc + 4 * ct + q, 88 + q))
r = []
r += ['v_lshl_add_u32 v32, v8, 2, %s' % sW, 'v_cvt_f32_u32 v32, v32', 'v_mul_f32 v32, 0x3c000000, v32', 'v_lshlrev_b32 v34, 2, v4', 'v_cvt_f32_u32 v34, v34']
for mt in range(2):
    if mt: r.append('v_add_f32 v32, 0.5, v32')
    r.append('v_mul_f32 v33, v32, v34')
    for j in range(8): r.append('v_fmamk_f32 v%d, v32, %s, v33' % (40 + j, fl(16.0 * (j >> 2) + (j & 3))))
    for j in range(8): r += ['v_sin_f32 v%d, v%d' % (48 + j, 40 + j), 'v_cos_f32 v%d, v%d' % (40 + j, 40 + j)]
    for j in range(8):
        r += ['v_cvt_pk_bf16_f32 v%d, v%d, v%d' % (56 + (j & 3), 40 + j, 48 + j), 'v_cvt_pk_bf16_f32 v%d, -v%d, v%d' % (60 + (j & 3), 48 + j, 40 + j),
              'v_accvgpr_write_b32 a%d, v%d' % (8 * mt + j, 56 + (j & 3)), 'v_accvgpr_write_b32 a%d, v%d' % (16 + 8 * mt + j, 60 + (j & 3))]
gi = r + gi
if opt('nogen', 0): gi = ['s_sleep 1'] * 40 + [None] * 500
n1, n2, n3, n4 = opt('gi1', 90), opt('gi2', 200), opt('gi3', 217), opt('gi4', 217)
def f2const():
    e('s_lshr_b32 s77, %s, 1' % sW); e('s_mul_i32 s66, s77, 0x80008000')
    for kb in range(1, 4):
        e('s_mul_i32 s77, %s, %d' % (sW, kb)); e('s_and_b32 s77, s77, 3'); e('s_and_b32 s78, s77, 1'); e('s_lshl_b32 s%d, s78, 4' % (67 + kb))
        e('s_lshr_b32 s78, s77, 1'); e('s_xor_b32 s79, s77, s78'); e('s_lshl_b32 s79, s79, 31'); e('s_lshl_b32 s78, s78, 15'); e('s_or_b32 s%d, s79, s78' % (51 + kb))
    e('v_lshlrev_b32 v22, 4, v8'); e('v_lshl_add_u32 v22, v4, 10, v22'); e('s_lshl_b32 s77, %s, 2' % sW); e('s_add_u32 s77, s77, %d' % YX); e('v_add_u32 v22, s77, v22')
    e('v_add_u32 v23, %d, v7' % YX)
    e('s_mov_b32 s77, %d' % (4 * 28672)); e('v_lshlrev_b32 v21, 4, v3'); e('v_mad_u32_u24 v21, v2, s77, v21')
    e('s_mul_i32 s58, %s, 28672' % sW); e('s_mul_i32 s78, %s, 1792' % sMB); e('s_add_u32 s58, s58, s78')
    e('s_lshl_b32 s78, %s, 7' % sNB); e('s_add_u32 s58, s58, s78'); e('s_add_u32 s58, s58, %d' % RB); e('s_add_u32 s59, s58, %d' % (32 * 28672))
    e('s_lshl_b32 s77, %s, 11' % sW); e('s_add_u32 s77, s77, %d' % TT)
    e('v_xor_b32 v14, v4, v3'); e('v_lshlrev_b32 v14, 4, v14'); e('v_lshl_add_u32 v14, v8, 7, v14'); e('v_add_u32 v14, s77, v14'); e('v_xor_b32 v15, 64, v14')
    e('v_xor_b32 v16, v2, v3'); e('v_lshlrev_b32 v16, 4, v16'); e('v_lshl_add_u32 v16, v2, 7, v16'); e('v_add_u32 v16, s77, v16')
    e('v_lshlrev_b32 v17, 14, v1')
    e('v_mov_b32 v18, %s' % sMB); e('v_cvt_f32_u32 v18, v18'); e('v_mul_f32 v18, 0x3d000000, v18'); e('v_sin_f32 v19, v18'); e('v_cos_f32 v18, v18')
p1 = 'buffer_load_dword v10, v9, %s, s63 offen %s' % (SWS, PSC)
LO, HI = 's_setprio %d' % opt('flo', 0), 's_setprio %d' % opt('fhi2', 2)
HI3 = 's_setprio %d' % opt('fhi3', 2)
f.run([LO if opt('lo1', 1) else None] + gi[:n1] + [f.S('preWT'), f.W('T'), f.S('WT'), f.flag('v24', 's60'), LO, wsp] + weave(gi[n1:n2], (wl, 0, 60)) + [(p1, 'p1')] + gi[n2:n3] + [f2const if opt('f2c', 1) else None, HI, f.S('prepollT'), f.W('p1'), f.S('p1back'), f.poll([p1], ['v10'], sT1, 1)])
f.stamp('pollT')
e('s_and_b32 s78, %s, 1' % sW); e('s_lshl_b32 s78, s78, 4'); e('s_add_u32 s78, s78, %s' % sMB)
e('s_lshl_b32 s77, s78, 12'); e('s_add_u32 s77, s77, s55')
for q in range(4): e('buffer_load_dwordx4 %s, v7, %s, s77 offen offset:%d sc1' % (v(32 + 4 * q, 4), SWS, 1024 * q))
e('s_lshl_b32 s61, %s, 1' % sMB); e('s_add_u32 s61, s61, %s' % sHALF); e('s_lshl_b32 s61, s61, 9'); e('s_add_u32 s61, s61, %d' % GB); e('v_lshlrev_b32 v11, 3, v1')
pg = 'buffer_load_dwordx2 v[12:13], v11, %s, s61 offen sc1' % SWS
e(pg)
f.ifnb0('L_sp5')
e('v_lshlrev_b32 v64, 26, v8'); e('v_lshl_add_u32 v64, v4, 7, v64'); e('s_lshl_b32 s77, s78, 11'); e('s_add_u32 s77, s77, %d' % TVB)
for q in range(4): e('buffer_load_dwordx4 %s, v64, %s, s77 offen offset:%d sc1' % (v(48 + 4 * q, 4), SWS, 512 * q))
f.run([f.poll(psp, ['v130', 'v134'], sT1, 1)])
e('v_cmp_ne_u32 vcc, 0, v8')
for mt in range(2):
    for c2 in range(2):
        e('v_lshlrev_b32 v%d, 16, v%d' % (136 + 4 * mt + 2 * c2, 128 + 4 * mt + c2)); e('v_and_b32 v%d, 0xffff0000, v%d' % (137 + 4 * mt + 2 * c2, 128 + 4 * mt + c2))
for k in range(8):
    mt, kk = k >> 2, k & 3
    sh0 = 'row_shl:%d' % (4 * kk) if kk else 'quad_perm:[0,1,2,3]'
    for ri in range(2):
        e('v_cndmask_b32_dpp v%d, v%d, v%d, vcc %s %s bound_ctrl:0' % (96 + 8 * ri + k, 136 + 4 * mt + ri, 96 + 8 * ri + k, sh0, DP))
        e('v_mov_b32_dpp v%d, v%d %s %s bound_ctrl:0' % (112 + 8 * ri + k, 138 + 4 * mt + ri, sh0, DP))
f.endc('L_sp5')
f.run(gi[n3:n4])
if not opt('f2c', 1): f2const()
e(f.sread(SYF))
f.run([f.scheck(SYF, 9)])
f.stamp('preF2')
def F2_fwd(D, B):
    for q in range(4):
        if q >= 2:
            for k in range(4): e('v_xor_b32 v%d, s66, v%d' % (B + 4 * q + k, B + 4 * q + k))
        for mt in range(2):
            for part in range(2):
                d = v(D + 8 * mt + 4 * part, 4)
                e('v_mfma_f32_16x16x32_bf16 %s, %s, %s, %s' % (d, ag(16 * part + 8 * mt + 4 * (q & 1), 4), v(B + 4 * q, 4), '0' if q == 0 else d))
F2_fwd(64, 32)
f.ifnb0('L_sp6'); F2_fwd(80, 48); f.endc('L_sp6')
for k in range(8):
    zr = 64 + 8 * (k >> 2) + (k & 3)
    e('v_mul_f32 v%d, v%d, v%d' % (128 + k, zr, 96 + k)); e('v_mul_f32 v%d, v%d, v%d' % (136 + k, zr, 104 + k))
for k in range(8):
    zi = 68 + 8 * (k >> 2) + (k & 3)
    e('v_fma_f32 v%d, -v%d, v%d, v%d' % (128 + k, zi, 104 + k, 128 + k)); e('v_fmac_f32 v%d, v%d, v%d' % (136 + k, zi, 96 + k))
f.ifnb0('L_sp7')
for k in range(8):
    zr = 80 + 8 * (k >> 2) + (k & 3)
    e('v_fma_f32 v%d, -v%d, v%d, v%d' % (128 + k, zr, 120 + k, 128 + k)); e('v_fmac_f32 v%d, v%d, v%d' % (136 + k, zr, 112 + k))
for k in range(8):
    zi = 84 + 8 * (k >> 2) + (k & 3)
    e('v_fma_f32 v%d, -v%d, v%d, v%d' % (128 + k, zi, 112 + k, 128 + k)); e('v_fma_f32 v%d, -v%d, v%d, v%d' % (136 + k, zi, 120 + k, 136 + k))
f.endc('L_sp7')
for k in range(8): e('v_cvt_pk_bf16_f32 v%d, v%d, -v%d' % (128 + k, 128 + k, 136 + k))
for k in range(8): e('ds_write_b32 v22, v%d offset:%d' % (128 + k, (16 * (k >> 2) + (k & 3)) * 256))
f.run([f.S('F2fwd'), f.signal(SYF, 10), f.sread(SYF), f.scheck(SYF, 10), f.S('Ysync')])
for q in range(8): e('ds_read_b128 %s, v23 offset:%d' % (v(32 + 4 * q, 4), 1024 * q))
for q in range(8):
    kb, t = q >> 1, q & 1
    if kb:
        if kb != 2:
            for j in range(4): e('v_alignbit_b32 v%d, v%d, v%d, s%d' % ((32 + 4 * q + j,) * 3 + (67 + kb,)))
        for j in range(4): e('v_xor_b32 v%d, s%d, v%d' % (32 + 4 * q + j, 51 + kb, 32 + 4 * q + j))
    for mt in range(2):
        for part in range(2):
            d = v(64 + 8 * mt + 4 * part, 4)
            e('v_mfma_f32_16x16x32_bf16 %s, %s, %s, %s' % (d, v(32 + 4 * q, 4), ag(16 * part + 8 * mt + 4 * t, 4), '0' if q == 0 else d))
for mt in range(2):
    if mt:
        for k in range(4): e('v_mul_f32 v%d, v19, v%d' % (80 + k, 76 + k)); e('v_mul_f32 v%d, v19, v%d' % (84 + k, 72 + k))
        for k in range(4): e('v_fma_f32 v%d, v18, v%d, v%d' % (72 + k, 72 + k, 80 + k)); e('v_fma_f32 v%d, v18, v%d, -v%d' % (76 + k, 76 + k, 84 + k))
    for k in range(4): e('v_cvt_pk_bf16_f32 v%d, v%d, -v%d' % (128 + 4 * mt + k, 64 + 8 * mt + k, 68 + 8 * mt + k))
    e('ds_write_b128 v%d, %s' % (14 + mt, v(128 + 4 * mt, 4)))
for u in range(2): e('ds_read_b128 %s, v16 offset:%d' % (v(136 + 4 * u, 4), 1024 * u))
e(f.sread(SYM))
for u in range(2): e('buffer_store_dwordx4 %s, v21, %s, %s offen sc1' % (v(136 + 4 * u, 4), SWS, 's58' if u == 0 else 's59'), tag='R')
f.run([f.scheck(SYM, 1), f.poll([pg], ['v13'], sT1, 1), 'v_lshlrev_b32 v11, 2, v1', 'v_add_u32 v11, %d, v11' % GL, 'ds_write_b32 v11, v12'])
f.stamp('Rst')
e('s_lshl_b32 s77, %s, 1' % sHALF); e('s_lshl_b32 s64, %s, 2' % sMB); e('s_add_u32 s64, s64, s77')
gs = ['v_lshlrev_b32 v33, 2, v4', 'v_cvt_f32_u32 v33, v33', 's_lshr_b32 s77, %s, 1' % sW, 's_add_u32 s53, s64, s77', 's_xor_b32 s52, s53, 1',
      's_lshl_b32 s77, %s, 6' % sW, 's_add_u32 s77, s77, %d' % GL, 'v_lshl_add_u32 v34, v8, 2, s77', 'ds_read_b32 v25, v34']
for lam in range(2):
    gs += ['v_lshl_add_u32 v34, v8, 7, s%d' % (52 + lam), 'v_cvt_f32_u32 v34, v34', 'v_mul_f32 v34, 0x3a000000, v34', 'v_mul_f32 v35, v34, v33']
    for q in range(4): gs.append('v_fmamk_f32 v%d, v34, %s, v35' % (40 + q, fl(1.0 * q)))
    for q in range(4): gs += ['v_sin_f32 v%d, v%d' % (44 + q, 40 + q), 'v_cos_f32 v%d, v%d' % (40 + q, 40 + q)]
    for q in range(4): gs += ['v_cvt_pk_bf16_f32 v%d, v%d, -v%d' % (96 + 8 * lam + q, 40 + q, 44 + q), 'v_cvt_pk_bf16_f32 v%d, v%d, v%d' % (100 + 8 * lam + q, 44 + q, 40 + q)]
gs += ['v_sub_f32 v11, 1.0, v25', 'v_mul_f32 v25, %s, v25' % fl(1.0 / (224 * 2048))]
gs2 = ['s_and_b32 s77, s2, 7', 's_lshl_b32 s77, s77, 13', 's_add_u32 s63, s77, %d' % FL3, 's_lshl_b32 s77, %s, 2' % sW,
       'v_add_u32 v9, s77, v4', 'v_min_u32 v9, 13, v9', 'v_cmp_lt_u32 vcc, 6, v9', 'v_subrev_u32 v12, 7, v9', 'v_cndmask_b32 v9, v9, v12, vcc', 'v_lshlrev_b32 v9, 10, v9',
       'v_cndmask_b32 v12, 0, 16, vcc', 'v_add_u32 v9, v9, v12', 'v_and_b32 v12, 3, v1', 'v_lshl_add_u32 v9, v12, 8, v9', 'v_bfe_u32 v12, v1, 2, 2', 'v_lshl_add_u32 v9, v12, 5, v9',
       's_and_b32 s77, %s, 1' % sW, 's_lshl_b32 s77, s77, 6', 'v_lshlrev_b32 v10, 4, v8', 'v_xor_b32 v10, s77, v10', 's_movk_i32 s77, 7168', 'v_mad_u32_u24 v10, v4, s77, v10',
       's_lshl_b32 s66, %s, 9' % sW, 's_add_u32 s66, s66, %d' % RB, 's_cmp_eq_u32 %s, 3' % sW, 's_cselect_b32 s67, 0x40000000, 256']
gs2[-1] = 's_movk_i32 s67, 256'; gs2.append('s_cselect_b32 s67, 0x40000000, s67')
for lam in (1, 0):
    gs2 += ['s_mul_i32 s77, s%d, 28672' % (52 + lam), 's_add_u32 s%d, s77, s66' % (52 + 2 * lam), 's_add_u32 s%d, s%d, s67' % (53 + 2 * lam, 52 + 2 * lam)]
for q in range(4): gs2.append('s_add_u32 s%d, s%d, 3584' % (68 + q, 52 + q))
p3 = ['buffer_load_dword v12, v9, %s, s63 offen %s' % (SWS, PSC), 'buffer_load_dword v13, v9, %s, s63 offen offset:128 %s' % (SWS, PSC)]
flag3 = None if (opt('nopoll', 0) >= 2 or opt('onlyfl2', 0)) else f.U(['s_mov_b64 exec, 15', ('%s v24, v17, %s, s62 offen %s' % (FST, SWS, FSC), 'flag'), 's_mov_b64 exec, -1'])
gs = gs + gihead + gi[n4:]
k1 = opt('gs1', 70)
assert (n4 - 127) % 85 == 0 or True
gi2 = []
f.run([LO if opt('lo2', 1) else None] + gs[:k1] + [f.S('preWR'), f.W('R'), f.S('WR'), flag3, LO] + gs[k1:] + gi2 + gs2 + ['s_sleep %d' % opt('rsleep', 0) if opt('rsleep', 0) else None, HI3, p3[0], (p3[1], 'p3'), f.S('prepollR'), f.W('p3'), f.S('p3back')] + [f.poll(p3, ['v12', 'v13'], sT1, 1)])
f.stamp('pollR')
def raw(q, j): return ag(16 * q + 4 * j, 4) if q < 3 else v(112 + 4 * j, 4)
def R_load(q): return ['buffer_load_dwordx4 %s, v10, %s, s%d offen offset:%d sc1' % (raw(q, j), SWS, (52 if j < 2 else 68) + q, 1792 * (j & 1)) for j in range(4)]
f.run(R_load(0) + R_load(1) + R_load(2) + R_load(3))
e('s_xor_b32 s77, %s, 1' % sHALF); e('s_mul_i32 s77, s77, 7'); e('s_add_u32 s77, s77, %s' % sNT)
e('s_lshl_b32 s78, %s, 4' % sMB); e('s_add_u32 s77, s77, s78'); e('s_lshl_b32 s77, s77, 2'); e('s_add_u32 s77, s77, %s' % sW)
e('s_lshl_b32 s61, s77, 12'); e('s_add_u32 s61, s61, %d' % PXB)
e(f.sread(SYM2))
f.run([f.scheck(SYM2, 2)])
D4 = ((12, 16), (20, 28))
def FR(P, h): return 128 + 8 * (P & 1) + 4 * h
def RD(P, h):
    q, cc = 2 * (P >> 2) + h, P & 3
    return [('v_accvgpr_read_b32 v%d, a%d' % (FR(P, h) + j, 16 * q + 4 * j + cc)) if q < 3 else ('v_mov_b32 v%d, v%d' % (FR(P, h) + j, 112 + 4 * j + cc)) for j in range(4)]
def S4(P): return ['v_mfma_f32_16x16x32_bf16 %s, %s, %s, 0' % (v(D4[h][part], 4), v(FR(P, h), 4), v(96 + 8 * (P >> 2) + 4 * part, 4)) for h in range(2) for part in range(2)]
def CV(P): return ['v_cvt_pk_bf16_f32 v%d, v%d, v%d' % (FR(P, h) + j, D4[h][0] + j, D4[h][1] + j) for h in range(2) for j in range(4)] + \
                  ['v_permlane16_swap_b32 v%d, v%d' % (FR(P, 0) + j, FR(P, 1) + j) for j in range(4)]
def FD(P, h):
    A = 32 + 16 * (2 * (1 - (P >> 2)) + h); cc = P & 3
    return ['v_mfma_f32_16x16x32_bf16 %s, %s, %s, %s' % (v(A + 4 * ct, 4), ag(48 + 16 * cc + 4 * ct, 4), v(FR(P, h), 4), '0' if cc == 0 else v(A + 4 * ct, 4)) for ct in range(4)]
def ship(rho):
    P = 32 + 16 * rho
    return ['s_xor_b32 s77, %s, %d' % (sW, rho), 's_mul_i32 s77, s77, 6144', 's_add_u32 s77, s77, %d' % (RED + 2048 * (rho - 1)), 'v_add_u32 v9, s77, v7'] + \
           ['v_cvt_pk_bf16_f32 v%d, v%d, v%d' % (P + k, P + 2 * k, P + 2 * k + 1) for k in range(8)] + ['ds_write_b128 v9, %s' % v(P, 4), 'ds_write_b128 v9, %s offset:1024' % v(P + 4, 4)]
pxl = ['buffer_load_dwordx4 %s, v7, %s, s61 offen offset:%d sc1' % (v(64 + 4 * k, 4), SWS, 1024 * k) for k in range(3)]
f.run(RD(0, 0) + RD(0, 1) + S4(0) + RD(1, 0) + RD(1, 1) + CV(0))
for P in range(8):
    extra = []
    if P == 5: extra = ship(2)
    if P == 6: extra = ship(3)
    if P == 7: extra = ['v_lshlrev_b32 v10, 3, v4', 's_lshl_b32 s77, %s, 7' % sNT] + ['buffer_load_dwordx2 %s, v10, %s, s77 offen offset:%d' % (v(88 + 2 * ct, 2), SB2, 32 * ct) for ct in range(4)]
    nx = P + 1 < 8; n2x = P + 2 < 8
    main = (S4(P + 1) if nx else []) + FD(P, 1) + FD(P, 0)
    o = 4 if nx else 0
    f.run(weave(main, (extra, 0, o + 2), (CV(P + 1) if nx else [], o + 2, o + 8), (RD(P + 2, 1) if n2x else [], o + 4, o + 8)) + (RD(P + 2, 0) if n2x else []))
f.run(ship(1))
f.stamp('F3')
f.run([f.signal(SYF, 11)])
f.run([f.sread(SYF), f.scheck(SYF, 11)])
e('s_mul_i32 s77, %s, 6144' % sW); e('s_add_u32 s77, s77, %d' % RED); e('v_add_u32 v9, s77, v7')
for k in range(6): e('ds_read_b128 %s, v9 offset:%d' % (v(96 + 4 * k, 4), 1024 * k))
for s in range(3):
    for k in range(8):
        e('v_lshlrev_b32 v%d, 16, v%d' % (128 + 2 * k, 96 + 8 * s + k)); e('v_and_b32 v%d, 0xffff0000, v%d' % (129 + 2 * k, 96 + 8 * s + k))
    for k in range(16): e('v_add_f32 v%d, v%d, v%d' % (32 + k, 32 + k, 128 + k))
for k in range(16): e('v_mul_f32 v%d, v25, v%d' % (32 + k, 32 + k))
for k in range(8):
    e('v_lshlrev_b32 v%d, 16, v%d' % (128 + 2 * k, 88 + k)); e('v_and_b32 v%d, 0xffff0000, v%d' % (129 + 2 * k, 88 + k))
for k in range(16): e('v_fmac_f32 v%d, v11, v%d' % (32 + k, 128 + k))
f.stamp('red')
for ct in range(4): e('ds_write_b128 v9, %s offset:%d' % (v(32 + 4 * ct, 4), 1024 * ct))
f.wait_lg()
f.barrier()
f.finish(1)

x = Role(); e = x.e
x.raw('L_aux:')
e('s_and_b32 s44, s2, 1')
e('s_bfe_u32 s45, s2, 0x20001')
e('s_bfe_u32 s46, s2, 0x20003'); e('s_lshl_b32 s46, s46, 3'); e('s_add_u32 s46, s46, s79')
e('v_lshrrev_b32 v2, 4, v1'); e('v_and_b32 v3, 15, v1'); e('v_min_u32 v3, 13, v3'); e('v_lshlrev_b32 v3, 7, v3')
e('s_movk_i32 s77, 3584'); e('v_mad_u32_u24 v2, v2, s77, v3')
e('v_lshlrev_b32 v4, 7, v1')
e('v_lshrrev_b32 v5, 4, v1'); e('v_bfe_u32 v6, v1, 2, 2'); e('v_lshl_add_u32 v5, v5, 4, v6'); e('v_mul_u32_u24 v5, 450, v5')
e('v_and_b32 v6, 3, v1'); e('v_lshlrev_b32 v6, 7, v6'); e('v_min_u32 v6, 224, v6'); e('v_add_u32 v5, v5, v6')
e('s_mul_i32 s47, s44, 1792'); e('s_mul_i32 s77, s46, %d' % (4 * 3584)); e('s_add_u32 s47, s47, s77')
e('s_mul_i32 s72, s44, 802816'); e('s_lshl_b32 s77, s46, 13'); e('s_add_u32 s72, s72, s77')
e('s_lshl_b32 s73, s46, 6'); e('s_lshl_b32 s77, s45, 2'); e('s_add_u32 s73, s73, s77'); e('s_mul_i32 s73, s73, 450'); e('s_mul_i32 s77, s44, 224'); e('s_add_u32 s73, s73, s77')
x.raw('    s_waitcnt lgkmcnt(0)')
x.srd(8, 56, 1605632); x.srd(12, 60, 1605632); x.srd(20, 50, 921600); x.srd(24, 52, 921600)
e('v_mov_b32 v8, v2'); e('v_mov_b32 v9, v4'); e('s_mov_b32 s40, s47'); e('s_mov_b32 s41, s72'); e('s_mov_b32 s42, s73')
if opt('upf', 0):
    e('s_and_b32 s77, s2, 7'); e('s_lshl_b32 s78, s46, 3'); e('s_add_u32 s77, s77, s78'); e('s_lshl_b32 s77, s77, 13')
    e('buffer_load_ubyte v10, v9, %s, s77 offen' % SW1); e('buffer_load_ubyte v11, v9, %s, s77 offen' % SW2)
    e('s_xor_b32 s78, s77, 0x100000')
    e('buffer_load_ubyte v12, v9, %s, s77 offen' % SWR); e('buffer_load_ubyte v13, v9, %s, s78 offen' % SWI)
x.srd(4, 48, 1835008); x.srd(32, 64, 896); x.srd(16, 70, WS_SIZE)
e('buffer_load_dword v24, off, %s, 0 sc1' % SWS)
e('s_lshr_b32 s47, s46, 3'); e('s_lshl_b32 s77, s45, 2'); e('s_add_u32 s47, s47, s77'); e('s_lshl_b32 s47, s47, 1'); e('s_add_u32 s47, s47, s44')
e('s_and_b32 s77, s79, 1'); e('s_lshl_b32 s77, s77, 10'); e('s_bfe_u32 s78, s79, 0x10001'); e('s_lshl_b32 s78, s78, 6'); e('s_add_u32 s77, s77, s78')
e('s_lshr_b32 s78, s79, 2'); e('s_add_u32 s77, s77, s78'); e('s_lshl_b32 s78, s47, 1'); e('s_add_u32 s77, s77, s78'); e('s_mul_i32 s72, s77, 896')
e('v_lshrrev_b32 v2, 3, v1'); e('v_and_b32 v3, 7, v1'); e('v_lshlrev_b32 v3, 4, v3'); e('s_mov_b32 s77, %d' % (128 * 896)); e('v_mad_u32_u24 v4, v2, s77, v3')
for k in range(7):
    e('buffer_load_dwordx4 %s, v4, %s, s72 offen offset:%d' % (v(32 + 4 * k, 4), SX, 128 * k)); e('buffer_load_dwordx4 %s, v3, %s, 0 offen offset:%d' % (v(64 + 4 * k, 4), SGW, 128 * k))
e('s_and_b32 s77, s2, 3'); e('s_lshl_b32 s36, s77, 5'); e('s_add_u32 s36, s36, s46')
e('s_lshr_b32 s77, s36, 3'); e('s_bfe_u32 s78, s36, 0x20001'); e('s_lshl_b32 s78, s78, 4'); e('s_add_u32 s77, s77, s78'); e('s_and_b32 s78, s36, 1'); e('s_lshl_b32 s78, s78, 10'); e('s_add_u32 s77, s77, s78')
e('v_lshrrev_b32 v26, 2, v1'); e('v_lshl_add_u32 v27, v26, 6, s77'); e('v_sub_u32 v28, 2048, v27'); e('v_and_b32 v28, 2047, v28'); e('v_and_b32 v29, 1, v1'); e('v_cmp_eq_u32 vcc, 1, v29')
e('v_bfe_u32 v29, v1, 1, 1'); e('v_mul_u32_u24 v29, 448, v29'); e('v_cndmask_b32 v27, v27, v28, vcc'); e('s_movk_i32 s77, 450'); e('v_mad_u32_u24 v27, v27, s77, v29')
e('s_bitcmp1_b32 s2, 2'); e('s_cselect_b32 s37, 0x40000000, 0')
e('buffer_load_ushort v22, v27, %s, s37 offen' % SWR); e('buffer_load_ushort v23, v27, %s, s37 offen' % SWI)
pfl = []
for k in range(4 if opt('pfw1', 1) else 0): pfl.append(['buffer_load_ubyte v%d, v8, %s, s40 offen' % (10 + k, SW1), 's_add_u32 s40, s40, %d' % (128 * 3584)])
for k in range(3): pfl.append(['buffer_load_ubyte v%d, v9, %s, s41 offen' % (14 + k, SW2), 's_add_u32 s41, s41, %d' % (32 * 8192)])
pfl.append(['buffer_load_ubyte v18, v5, %s, s42 offen' % SWR, 'buffer_load_ubyte v19, v5, %s, s42 offen' % SWI])
pfl.append(['s_cmp_ge_u32 s46, 2', 's_cselect_b32 s41, 0x40000000, s41', 'buffer_load_ubyte v17, v9, %s, s41 offen' % SW2])
if opt('pft', 0):
    e('s_and_b32 s77, s2, 7'); e('s_lshl_b32 s78, s46, 3'); e('s_add_u32 s77, s77, s78'); e('s_lshl_b32 s77, s77, 13')
    e('s_add_u32 s78, s77, %d' % (FL2 - 0x20000)); e('s_cmp_ge_u32 s77, 0x20000'); e('s_cselect_b32 s77, s78, s77')
    e('s_cmp_ge_u32 s77, %d' % (TB if opt('pft', 2) > 1 else 0x20000)); e('s_cselect_b32 s77, 0x40000000, s77')
    e('buffer_load_ubyte v25, v9, %s, s77 offen' % SWS)
PFE = opt('pfe', 0)
for y in pfl[:PFE]: x.run(y)
e('v_mov_b32 v20, 0'); e('v_mov_b32 v21, 0')
x.stamp('iss')
x.tags()
x.stamp('E')
e('v_lshlrev_b32 v22, 16, v22'); e('v_lshlrev_b32 v23, 16, v23')
e('v_add_f32_dpp v28, v22, v22 quad_perm:[1,0,3,2] %s' % DP); e('v_subrev_f32_dpp v29, v23, v23 quad_perm:[1,0,3,2] %s' % DP)
e('v_cvt_pk_bf16_f32 v28, v28, v29'); e('v_mov_b32 v30, v24'); e('v_mov_b32 v31, v24'); e('v_mov_b32_dpp v29, v28 quad_perm:[2,2,2,2] %s' % DP)
e('v_lshlrev_b32 v26, 4, v26'); e('s_lshl_b32 s77, s36, 8'); e('s_add_u32 s77, s77, %d' % SPB); e('s_add_u32 s77, s77, s37')
e('s_mov_b32 exec_lo, 0x11111111'); e('s_mov_b32 exec_hi, 0x11111111')
e('buffer_store_dwordx4 v[28:31], v26, %s, s77 offen sc1' % SWS)
e('s_mov_b64 exec, -1')
x.stamp('sp')
for k in range(28): e('v_dot2c_f32_bf16 v%d, v%d, v%d' % (20 + (k & 1), 32 + k, 64 + k))
e('v_add_f32 v20, v20, v21')
e('v_add_f32_dpp v20, v20, v20 quad_perm:[1,0,3,2] %s' % DP); e('v_add_f32_dpp v20, v20, v20 quad_perm:[2,3,0,1] %s' % DP); e('v_add_f32_dpp v20, v20, v20 row_half_mirror %s' % DP)
e('v_mul_f32 v20, %s, v20' % fl(-1.4426950408889634)); e('v_exp_f32 v20, v20'); e('v_add_f32 v20, 1.0, v20'); e('v_rcp_f32 v20, v20'); e('v_mov_b32 v21, v24')
e('s_lshl_b32 s77, s47, 9'); e('s_lshl_b32 s78, s79, 6'); e('s_add_u32 s77, s77, s78'); e('s_add_u32 s77, s77, %d' % GB); e('v_lshlrev_b32 v2, 3, v2')
e('s_mov_b32 exec_lo, 0x01010101'); e('s_mov_b32 exec_hi, 0x01010101')
e('buffer_store_dwordx2 v[20:21], v2, %s, s77 offen sc1' % SWS)
e('s_mov_b64 exec, -1')
x.stamp('g')
if DIAG: x.wait_vm_all(); x.stamp('ack')
x.barrier()
if opt('pf', 0):
    for y in pfl[PFE:]: x.run(y)
if DIAG: e('s_mov_b32 %s, s79' % sW); x.finish(0)

hdr = open('cdna_kernels/%s.s.ref' % NAME).read().split('; Override')[0]
txt = hdr + '; @launch grid=(%d,1,1) block=(512,1,1) lds=%d\n' % (NWG, LDS_SIZE)
txt += '.amdgcn_target "amdgcn-amd-amdhsa--gfx950"\n.text\n.globl %s_kernel\n.p2align 8\n.type %s_kernel,@function\n' % (NAME, NAME)
txt += c.text() + m.text() + f.text() + x.text() + 'L_end:\n    s_endpgm\n'
txt += '''.section .rodata,"a"
.p2align 6
.amdhsa_kernel %s_kernel
  .amdhsa_next_free_vgpr 256
  .amdhsa_next_free_sgpr 102
  .amdhsa_accum_offset 144
  .amdhsa_group_segment_fixed_size 0
  .amdhsa_kernarg_size 96
  .amdhsa_user_sgpr_count 2
  .amdhsa_user_sgpr_kernarg_segment_ptr 1
  .amdhsa_system_sgpr_workgroup_id_x 1
.end_amdhsa_kernel
''' % NAME
out = [x for x in sys.argv[1:] if not x.startswith('--')]
open(out[0] if out else 'cdna_kernels/%s.s' % NAME, 'w').write(txt)
if DIAG: open('names.txt', 'w').write(repr([m.names, f.names, x.names]))
print('instrs mlp', sum(m.count.values()), 'fft', sum(f.count.values()), 'nops', m.nnop, f.nnop, file=sys.stderr)
```

```python
import sys
from asmlib import *

NAME = 'gated_mix__spectral_gfnet__dense_activation_gelu__prompt'
DIAG = '--diag' in sys.argv
def opt(name, default):
    for x in sys.argv:
        if x.startswith('--%s=' % name): return int(x.split('=')[1])
    return default
FL1, FL3, FL2 = 0x1000, 0x10000, 0x80000
GB = 0x8000
SPB = 0x40000
TVB = 0x50000

TB = 0x100000
RB = TB + 1835008
HB = RB + 1835008
PXB = HB + 7340032
DIAGB = PXB + 16 * 16 * 16384
WS_SIZE = DIAGB + (256 * 2048 if DIAG else 0)
W1H1 = 57344
CB = 122880
RED = 90112
YX = 114688
TT = 151552
TV = 159744
GW = 160256
B1L = 161280
GL = 161792
SYM = 162304; SYF = 162320; SYM2 = 162336; SYX = 162352
LDS_SIZE = 163840
SX, SW1, SW2, SWS, SWR, SWI, SOUT, SGW, SB1, SB2 = ['s[%d:%d]' % (i, i + 3) for i in range(4, 44, 4)]
sMB, sNB, sHALF, sNT, sW, sT1, sT2, sEN, sSQ = 's44', 's45', 's46', 's47', 's72', 's73', 's74', 's75', 's76'
sROT = 's3'
SPIN = 20000
FST = 'buffer_atomic_swap' if opt('atf', 0) else 'buffer_store_dword'
FSC = ['sc1', 'sc0 sc1', 'sc1 nt'][opt('fsc', 0)]
PSC = ['sc1', 'sc0 sc1', 'sc1 nt', 'nt', 'sc0 sc1 nt'][opt('psc', 0)]
NWG = 256 if opt('aux', 1) else 224
DP = 'row_mask:0xf bank_mask:0xf'
def v(i, n=1): return 'v%d' % i if n == 1 else 'v[%d:%d]' % (i, i + n - 1)
def ag(i, n=1): return 'a%d' % i if n == 1 else 'a[%d:%d]' % (i, i + n - 1)
lab = [0]

class Role(Asm):
    def __init__(self):
        super().__init__(); self.ns = 1; self.names = ['start']
    def stamp(self, name=''):
        if not DIAG: return
        if opt('dbg', 0) and name not in ('xiss', 'Xend', 'G1a', 'G1b', 'gelu3', 'hiss', 'G2end', 'end', 'F1end', 'pollT', 'Rst', 'pollR', 'red'): return
        assert self.ns < 60
        self.raw('    s_memtime s[98:99]\n    s_waitcnt lgkmcnt(0)\n    v_writelane_b32 v0, s98, %d' % self.ns); self.pos += 3
        self.names.append(name); self.ns += 1
    def S(self, name=''): return lambda: self.stamp(name)
    def W(self, tag): return lambda: self.wait_vm(tag)
    def L(self, tag=None): return lambda: self.wait_lg(tag)
    def U(self, items): return lambda: self.run(items)
    def flag(self, vtag, soff):
        if opt('nopoll', 0) >= 2: return None
        if opt('onlyfl2', 0) and soff != 's61': return None
        if opt('fullfl', 0) and soff == 's61':
            return self.U(['s_mov_b64 exec, 0x%x' % ((1 << opt('fullfl', 0)) - 1), ('buffer_store_dword %s, v5, %s, %s offen sc1' % (vtag, SWS, soff), 'flag'), 's_mov_b64 exec, -1'])
        return self.U(['s_mov_b64 exec, 1', ('%s %s, off, %s, %s %s' % (FST, vtag, SWS, soff, FSC), 'flag'), 's_mov_b64 exec, -1'])
    def spin(self, loads, waitc, tests, sleep):
        n = lab[0]; lab[0] += 1
        def f():
            for t in tests: self.e(t)
            self.nop(1)
            self.e('s_cmp_eq_u64 vcc, 0'); self.e('s_cbranch_scc1 L_pd%d' % n)
            t = ['    s_mov_b32 s96, %d' % SPIN, 'L_pl%d:' % n] + (['    s_sleep %d' % sleep] if sleep else [])
            t += ['    ' + l for l in loads] + ['    s_waitcnt ' + waitc] + ['    ' + x for x in tests]
            t += ['    s_sub_u32 s96, s96, 1', '    s_cmp_eq_u32 s96, 0', '    s_cbranch_scc1 L_pd%d' % n,
                  '    s_cmp_eq_u64 vcc, 0', '    s_cbranch_scc0 L_pl%d' % n, 'L_pd%d:' % n]
            self.raw('\n'.join(t))
        return f
    def poll(self, loads, regs, stag, lim):
        if opt('nopoll', 0): return None
        tests = ['v_subrev_u32 %s, %s, %s' % (r, stag, r) for r in regs] + ['v_max_u32 %s, %s, %s' % (regs[0], regs[0], r) for r in regs[1:]]
        tests += ['v_cmp_le_u32 vcc, %d, %s' % (lim, regs[0])]
        return self.spin(loads, 'vmcnt(0)', tests, opt('gsleep', 10))
    def signal(self, base, k):
        return self.U(['v_mov_b32 v28, %d' % k, 'ds_write_b32 v26, v28 offset:%d' % (base - SYM)])
    def sread(self, base): return 'ds_read_b128 v[28:31], v27 offset:%d' % (base - SYM)
    def scheck(self, base, k):
        tests = ['v_min_u32 v28, v28, v29', 'v_min3_u32 v28, v28, v30, v31', 'v_cmp_gt_u32 vcc, %d, v28' % k]
        return self.spin([self.sread(base)], 'lgkmcnt(0)', tests, opt('lsleep', 1))
    def sread1(self, base): return 'ds_read_b32 v28, v26 offset:%d' % (base - SYM)
    def scheck1(self, base, k):
        return self.spin([self.sread1(base)], 'lgkmcnt(0)', ['v_cmp_gt_u32 vcc, %d, v28' % k], opt('lsleep', 1))
    def chtab(self, regs, shift):
        e = self.e
        e('s_mov_b32 s77, %s' % sROT)
        for p in range(7):
            e('s_lshl_b32 %s, s77, %d' % (regs[p], shift))
            if p < 6: e('s_add_u32 s77, s77, 1'); e('s_cmp_eq_u32 s77, 7'); e('s_cselect_b32 s77, 0, s77')
    def srd(self, d, lo, n):
        e = self.e
        e('s_mov_b32 s%d, s%d' % (d, lo)); e('s_mov_b32 s%d, s%d' % (d + 1, lo + 1))
        e('s_mov_b32 s%d, %d' % (d + 2, n)); e('s_mov_b32 s%d, 0x20000' % (d + 3))
    def tags(self):
        e = self.e
        e('v_readfirstlane_b32 s77, v24')
        e('s_add_u32 %s, s77, 1' % sEN); e('s_mul_i32 s77, s77, 0x9E3779B1')
        e('s_add_u32 %s, s77, 0x7F4A7C15' % sT1); e('s_add_u32 %s, %s, 1' % (sT2, sT1))
        e('v_mov_b32 v24, %s' % sT1)
    def xread_addrs(self, b):
        e = self.e
        e('v_bfe_u32 v%d, v1, 1, 3' % b); e('v_xor_b32 v%d, v%d, v5' % (b, b)); e('v_lshlrev_b32 v%d, 4, v%d' % (b, b))
        e('v_lshl_add_u32 v%d, v6, 7, v%d' % (b, b)); e('v_add_u32 v%d, s50, v%d' % (b, b))
        for tt in range(1, 4): e('v_xor_b32 v%d, %d, v%d' % (b + tt, 32 * tt, b))
    def ifnb0(self, label):
        self.e('s_cmp_lg_u32 %s, 0' % sNB); self.e('s_cbranch_scc1 %s' % label); self.cond_begin()
    def endc(self, label):
        self.cond_end(); self.raw(label + ':')
    def finish(self, role):
        if DIAG:
            e = self.e
            self.raw('    s_waitcnt vmcnt(0)')
            self.stamp('end')
            self.raw('    s_memrealtime s[98:99]\n    s_waitcnt lgkmcnt(0)\n    v_writelane_b32 v0, s98, 63\n    v_writelane_b32 v0, s94, 62\n    v_writelane_b32 v0, s80, 0')
            e('s_lshl_b32 s77, s2, 3'); e('s_add_u32 s77, s77, %s' % sW); e('s_lshl_b32 s77, s77, 8'); e('s_add_u32 s77, s77, %d' % (DIAGB + 1024 * role))
            e('v_lshlrev_b32 v2, 2, v1')
            e('buffer_store_dword v0, v2, %s, s77 offen' % SWS)
            if opt('dbg', 0) and self is not globals().get('x'):
                self.raw('    s_load_dwordx2 s[4:5], s[0:1], 80\n    s_waitcnt lgkmcnt(0)\n    s_mov_b32 s6, 256\n    s_mov_b32 s7, 0x20000')
                e('v_subrev_u32 v3, s80, v0'); e('v_mov_b32 v4, s98'); e('s_not_b32 s94, s94'); e('v_mov_b32 v5, s94')
                e('s_mov_b64 exec, 0x%x' % (0x1fe if role == 0 else 0x3e))
                e('buffer_atomic_umax v3, v2, s[4:7], 0 offen offset:%d sc1' % (0 if role == 0 else 32))
                e('s_mov_b64 exec, 1')
                e('buffer_atomic_umax v4, off, s[4:7], 0 offset:56 sc1'); e('buffer_atomic_umax v5, off, s[4:7], 0 offset:60 sc1')
        self.raw('    s_endpgm')

c = Role(); e = c.e
c.raw('%s_kernel:' % NAME)
e('s_cmp_ge_u32 s2, %d' % NWG)
e('s_cbranch_scc1 L_end')
if DIAG: c.raw('    s_memrealtime s[98:99]\n    s_waitcnt lgkmcnt(0)\n    s_mov_b32 s94, s98\n    s_memtime s[98:99]\n    s_waitcnt lgkmcnt(0)\n    s_mov_b32 s80, s98')
c.raw('    s_load_dwordx16 s[48:63], s[0:1], 0\n    s_load_dwordx8 s[64:71], s[0:1], 64')
e('v_lshrrev_b32 v2, 6, v0')
e('v_and_b32 v1, 63, v0')
e('v_readfirstlane_b32 s79, v2')
e('s_cmp_ge_u32 s2, 224')
e('s_cbranch_scc1 L_aux')
e('s_getpc_b64 s[96:97]')
c.raw('L_pc:')
e('v_lshlrev_b32 v2, 7, v0')
e('v_min_u32 v2, L_end-L_pc, v2')
e('v_mov_b32 v3, s97')
e('v_add_co_u32 v2, vcc, s96, v2')
e('v_addc_co_u32 v3, vcc, 0, v3, vcc')
c.raw('    global_load_dword v143, v[2:3], off')
e('s_and_b32 s77, s2, 7'); e('s_lshr_b32 s78, s2, 3')
e('s_and_b32 %s, s77, 1' % sHALF); e('s_lshr_b32 s77, s77, 1'); e('s_lshl_b32 s77, s77, 2')
e('s_and_b32 %s, s78, 3' % sMB); e('s_add_u32 %s, %s, s77' % (sMB, sMB))
e('s_lshr_b32 %s, s78, 2' % sNT); e('s_mul_i32 %s, %s, 7' % (sNB, sHALF)); e('s_add_u32 %s, %s, %s' % (sNB, sNB, sNT))
e('s_and_b32 %s, s79, 3' % sW)
e('s_and_b32 s77, s78, 3'); e('s_lshl_b32 s77, s77, 1'); e('s_add_u32 s77, s77, %s' % sNT); e('s_sub_u32 s78, s77, 7'); e('s_cmp_ge_u32 s77, 7'); e('s_cselect_b32 %s, s78, s77' % sROT)
if not opt('rot', 1): e('s_mov_b32 %s, 0' % sROT)
e('s_lshl_b32 %s, %s, 2' % (sSQ, sMB)); e('s_add_u32 %s, %s, %s' % (sSQ, sSQ, sW))
e('v_lshrrev_b32 v2, 3, v1'); e('v_and_b32 v3, 7, v1'); e('v_lshrrev_b32 v4, 4, v1'); e('v_lshrrev_b32 v5, 5, v1')
e('v_and_b32 v6, 31, v1'); e('v_lshlrev_b32 v7, 4, v1'); e('v_and_b32 v8, 15, v1')
e('v_mov_b32 v27, %d' % SYM); e('s_lshl_b32 s78, %s, 2' % sW); e('v_add_u32 v26, s78, v27')
e('s_cmp_lt_u32 s79, 4') if opt('fftfirst', 1) else e('s_cmp_ge_u32 s79, 4')
e('s_cbranch_scc1 L_fft')

F1ADDR = ['s_lshl_b32 s77, %s, 12' % sW, 's_cmp_ge_u32 %s, 2' % sW, 's_mov_b32 s78, %d' % TT, 's_cselect_b32 s78, %d, s78' % (YX - 8192), 's_add_u32 s77, s77, s78', 'v_add_u32 v35, s77, v7']
m = Role(); e = m.e
e('s_setprio %d' % opt('mprio', 1))
e('v_xor_b32 v17, v3, v4'); e('v_lshlrev_b32 v17, 4, v17'); e('s_mov_b32 s77, %d' % (128 * 896)); e('v_mad_u32_u24 v9, v2, s77, v17')
e('v_xor_b32 v10, 64, v9'); e('v_add_u32 v10, %d, v10' % (1024 * 896 - 1024))
e('v_add_u32 v11, %d, v9' % (64 * 896 - 2048)); e('v_add_u32 v12, %d, v10' % (64 * 896 - 2048))
XCH = ['s%d' % (20 + p) for p in range(7)]
e('s_mul_i32 s100, %s, 896' % sSQ)
for u in range(4): e('v_add_u32 v%d, s100, v%d' % (9 + u, 9 + u))
m.chtab(XCH, 7)
e('s_lshl_b32 s101, %s, 12' % sW)
X0R = opt('x0r', 0)
X0OFF = lambda d: ['s_cmp_ge_u32 %s, 2' % sW, 's_mov_b32 %s, %d' % (d, YX), 's_cselect_b32 %s, %d, %s' % (d, TT - 8192, d)]
m.run(X0OFF('s39') + ['s_add_u32 s27, s39, s101', 's_mov_b32 s71x, s39'][:1])
e('s_mov_b32 s97, s39')
m.raw('    s_waitcnt lgkmcnt(0)')
m.srd(32, 48, 1835008)
def dma_x(p):
    return [('s_mov_b32 m0, s27' if (p == 0 and X0R) else 's_add_u32 m0, s101, %d' % (p * 16384))] + [('buffer_load_dwordx4 v%d, s[32:35], %s offen offset:%d lds' % (9 + u, XCH[p], 1024 * u), 'x%d' % p) for u in range(4)]
m.srd(8, 56, 1605632)
e('s_lshl_b32 s43, s2, 2'); e('s_add_u32 s43, s43, %s' % sW); e('s_mul_i32 s49, s43, 1152'); e('s_mul_i32 s43, s43, 1792'); e('v_lshlrev_b32 v23, 7, v1')
def upf(srd, soff, n, dst): return m.U(['s_mov_b64 exec, 0x%x' % ((1 << n) - 1), 'buffer_load_ubyte v%d, v23, %s, %s offen' % (dst, srd, soff), 's_mov_b64 exec, -1'])
W1AT = opt('w1at', 0)
for p in range(4):
    m.run(dma_x(p))
    if p == W1AT: m.run([upf(SW1, 's43', 14, 140)])
    if p == opt('barp', 3): m.barrier()
for p in range(4, 7):
    m.run(dma_x(p))
    if p == W1AT: m.run([upf(SW1, 's43', 14, 140)])
m.stamp('xiss')
m.run([m.W('x3'), m.signal(SYX, 1)])
m.srd(16, 70, WS_SIZE); m.srd(36, 58, 3584)
m.srd(12, 60, 1605632); m.srd(28, 66, 1835008); m.srd(4, 50, 921600); m.srd(32, 52, 921600)
pf2 = [upf(SW2, 's43', 14, 141), upf('s[4:7]', 's49', 9, 142), upf('s[32:35]', 's49', 9, 139)]
if opt('pf2at', 0) == 0: m.run(pf2)
e('s_lshl_b32 s50, %s, 12' % sW); e('s_lshl_b32 s51, %s, 11' % sW)
e('v_and_b32 v17, 1, v4'); e('v_lshlrev_b32 v17, 2, v17'); e('v_xor_b32 v17, v3, v17'); e('v_lshlrev_b32 v17, 4, v17')
e('s_movk_i32 s77, 3584'); e('v_mad_u32_u24 v13, v2, s77, v17'); e('s_lshl_b32 s78, %s, 8' % sNB); e('v_add_u32 v13, s78, v13')
for u in range(1, 4): e('v_add_u32 v%d, %d, v13' % (13 + u, u * 27648))
m.xread_addrs(17)
def dma_w1(p):
    r = ['s_add_u32 s77, %s, %d' % (sW, 4 * p), 's_sub_u32 s78, s77, 14', 's_cmp_ge_u32 s77, 14', 's_cselect_b32 s77, s78, s77', 's_cselect_b32 s79, 128, 0',
         's_lshl_b32 s78, %s, 1' % sROT, 's_add_u32 s77, s77, s78', 's_sub_u32 s78, s77, 14', 's_cmp_ge_u32 s77, 14', 's_cselect_b32 s77, s78, s77',
         's_mul_i32 s77, s77, %d' % (32 * 3584), 's_add_u32 s60, s77, s79', 's_add_u32 m0, s50, %d' % (p * 16384)]
    return r, [('buffer_load_dwordx4 v%d, %s, s60 offen offset:%d lds' % (13 + u, SW1, 1024 * u), 'w1_%d' % p) for u in range(4)]
CH = ['s4', 's5', 's6', 's7', 's40', 's41', 's42']
CW = XCH
setup0 = ['s_lshl_b32 %s, %s, 6' % (CH[k], XCH[k]) for k in range(7)] + ['s_mul_i32 %s, %s, 896' % (CW[k], XCH[k]) for k in range(7)]
setup = []
setup += ['v_bfe_u32 v21, v1, 2, 2', 'v_lshl_add_u32 v21, v5, 3, v21', 'v_lshlrev_b32 v21, 7, v21', 'v_bfe_u32 v22, v1, 3, 1', 'v_lshl_add_u32 v21, v22, 6, v21',
          'v_bfe_u32 v22, v1, 4, 1', 'v_lshl_add_u32 v21, v22, 5, v21', 'v_and_b32 v22, 3, v1', 'v_lshl_add_u32 v21, v22, 3, v21', 'v_xor_b32 v22, 64, v21',
          'v_lshlrev_b32 v128, 16, v25', 'v_and_b32 v129, 0xffff0000, v25', 'v_lshlrev_b32 v130, 3, v1', 'v_add_u32 v130, %d, v130' % B1L, 'ds_write_b64 v130, v[128:129]',
          'v_lshlrev_b32 v130, 4, v5', 'v_add_u32 v130, %d, v130' % B1L]
for j in range(4):
    for q in range(4): setup.append('ds_read_b128 %s, v130 offset:%d' % (v(32 + 16 * j + 4 * q, 4), (32 * j + 8 * q) * 4))
setup.append(m.tags)
setup2 = setup0 + ['s_mul_i32 s53, %s, 896' % sHALF, 's_lshl_b32 s78, %s, 4' % sW, 's_add_u32 s53, s53, s78', 's_mul_i32 s53, s53, 896', 's_lshl_b32 s78, %s, 7' % sNT, 's_add_u32 s53, s53, s78',
          'v_lshlrev_b32 v9, 1, v4', 'v_xor_b32 v9, v3, v9', 'v_lshl_add_u32 v9, v9, 4, s53', 's_movk_i32 s78, 896', 'v_mad_u32_u24 v9, v2, s78, v9', 'v_add_u32 v10, 6144, v9',
          'v_add_u32 v11, %d, v9' % (64 * 896), 'v_add_u32 v12, %d, v10' % (64 * 896),
          'v_mov_b32 v23, %s' % fl(-0.1029432397),
          's_mul_i32 s58, %s, 56' % sSQ, 's_lshl_b32 s78, %s, 2' % sNB, 's_add_u32 s58, s58, s78', 's_lshl_b32 s58, s58, 11', 's_add_u32 s58, s58, %d' % HB, 's_add_u32 s59, s58, 4096',
          's_lshl_b32 s61, %s, 4' % sSQ, 's_add_u32 s61, s61, %s' % sNB, 's_lshl_b32 s61, s61, 7', 's_add_u32 s61, s61, %d' % FL2,
          's_lshl_b32 s62, %s, 4' % sMB, 's_add_u32 s62, s62, %s' % sNB, 's_lshl_b32 s62, s62, 2', 's_add_u32 s62, s62, %s' % sW,
          's_lshl_b32 s63, s62, 12', 's_add_u32 s63, s63, %d' % PXB,
          's_lshr_b32 s78, %s, 1' % sW, 's_lshl_b32 s79, %s, 2' % sMB, 's_add_u32 s78, s78, s79', 's_lshl_b32 s79, %s, 1' % sHALF, 's_add_u32 s55, s78, s79', 's_xor_b32 s54, s55, 2',
          's_lshl_b32 s65, s78, 4', 's_mul_i32 s79, %s, 7' % sHALF, 's_add_u32 s65, s65, s79', 's_lshl_b32 s65, s65, 7', 's_add_u32 s65, s65, %d' % FL2,
          's_mov_b32 s64, s55', 's_mul_i32 s79, %s, 28' % sHALF, 's_and_b32 s78, %s, 1' % sW, 's_lshl_b32 s78, s78, 8', 's_add_u32 s78, s78, %d' % HB]
for r in (54, 55): setup2 += ['s_mul_i32 s%d, s%d, 56' % (r, r), 's_add_u32 s%d, s%d, s79' % (r, r), 's_lshl_b32 s%d, s%d, 11' % (r, r), 's_add_u32 s%d, s%d, s78' % (r, r)]
setup3 = ['v_lshlrev_b32 v13, 4, v8', 'v_lshl_add_u32 v13, v4, 9, v13', 'v_add_u32 v15, s55, v13', 'v_add_u32 v13, s54, v13', 'v_add_u32 v14, 4096, v13', 'v_add_u32 v16, 4096, v15',
          'v_bfe_u32 v17, v1, 2, 2', 'v_lshl_add_u32 v17, v5, 4, v17', 'v_bfe_u32 v18, v1, 4, 1', 'v_lshl_add_u32 v17, v18, 2, v17', 'v_lshlrev_b32 v17, 7, v17',
          'v_bfe_u32 v18, v1, 3, 2', 'v_lshl_add_u32 v17, v18, 5, v17', 'v_and_b32 v18, 3, v1', 'v_lshl_add_u32 v17, v18, 3, v17', 'v_add_u32 v17, %d, v17' % CB]
setup3 += ['v_xor_b32 v%d, %d, v17' % (17 + ct, 32 * ct) for ct in range(1, 4)]
setup3 += ['v_lshlrev_b32 v5, 7, v1', 'v_min_u32 v25, 6, v3', 'v_and_b32 v6, 1, v2', 'v_lshl_add_u32 v25, v6, 5, v25', 'v_lshlrev_b32 v25, 7, v25']
for k in range(1, 4): setup3.append('s_add_u32 s%d, s65, %d' % (67 + k, 0x20000 * k))
e('v_lshlrev_b32 v12, 2, v1'); e('s_lshl_b32 s78, %s, 8' % sNB)
e('buffer_load_dword v24, off, %s, 0 sc1' % SWS); e('buffer_load_dword v25, v12, %s, s78 offen' % SB1)
def xrd(p): return [('ds_read_b128 %s, v%d offset:%d' % (ag(16 * p + 4 * tt, 4), 17 + tt, (p % 4) * 16384), 'xr%d' % p) for tt in range(4)]
def xrd0(role, dst, ar, sreg, tmp):
    r = []
    for tt in range(4): r += ['v_add_u32 v%d, %s, v%d' % (tmp + tt, sreg, ar + tt), ('ds_read_b128 %s, v%d' % (dst(tt), tmp + tt), 'xr0')]
    return r
if X0R:
    pre, L = dma_w1(0); m.run(pre + L)
m.run((xrd0(m, lambda tt: ag(4 * tt, 4), 17, 's97', 128) if X0R else xrd(0)) + xrd(1) + xrd(2) + xrd(3) + [m.W('x6'), m.signal(SYX, 2), m.sread1(SYF)])
for tt in range(4): e('v_add_u32 v%d, 65536, v%d' % (17 + tt, 17 + tt))
m.stamp('X6')
NR0 = opt('nr0', 2)
w1rest = []
for rr in range(7):
    pre, L = dma_w1(rr)
    if rr == 0 and X0R: continue
    if rr < NR0:
        m.run(pre)
        if rr == X0R: m.run([m.scheck1(SYF, 4)] + xrd(4) + xrd(5) + xrd(6))
        m.run([m.L('xr%d' % rr)] + L)
    else:
        if rr == 4: pre = [m.sread1(SYF)] + pre + [m.scheck1(SYF, 7)]
        w1rest.append([m.U(pre + [L[0]])] + L[1:])
if opt('pf2at', 0) == 1: m.run(pf2)
m.run(setup)
m.stamp('Xend')
K0 = fl(-2.302208198)
PK = opt('pk', 0)
def gelu(j, tb, pk=0):
    r = []; A = 32 + 16 * j
    for h in range(2):
        for q in range(2):
            X = [A + 8 * h + 4 * q + i for i in range(4)]; T = [tb + 4 * q + i for i in range(4)]
            if pk:
                P = [(v(T[0], 2), v(X[0], 2)), (v(T[2], 2), v(X[2], 2))]
                r += ['v_pk_mul_f32 %s, %s, %s' % (t, x, x) for t, x in P]
                r += ['v_pk_fma_f32 %s, %s, s[66:67], s[66:67] op_sel:[0,0,1] op_sel_hi:[1,0,1]' % (t, t) for t, x in P]
                r += ['v_pk_mul_f32 %s, %s, %s' % (t, t, x) for t, x in P]
                r += ['v_exp_f32 v%d, v%d' % (t, t) for t in T]
                r += ['v_pk_add_f32 %s, %s, 1.0 op_sel_hi:[1,0]' % (t, t) for t, x in P]
                r += ['v_rcp_f32 v%d, v%d' % (t, t) for t in T]
                r += ['v_pk_mul_f32 %s, %s, %s' % (x, t, x) for t, x in P]
            else:
                r += ['v_mul_f32 v%d, v%d, v%d' % (t, x, x) for t, x in zip(T, X)]
                r += ['v_fmaak_f32 v%d, v%d, v23, %s' % (t, t, K0) for t in T]
                r += ['v_mul_f32 v%d, v%d, v%d' % (t, t, x) for t, x in zip(T, X)]
                r += ['v_exp_f32 v%d, v%d' % (t, t) for t in T]
                r += ['v_add_f32 v%d, 1.0, v%d' % (t, t) for t in T]
                r += ['v_rcp_f32 v%d, v%d' % (t, t) for t in T]
                r += ['v_mul_f32 v%d, v%d, v%d' % (x, t, x) for t, x in zip(T, X)]
            r += ['v_cvt_pk_bf16_f32 v%d, v%d, v%d' % (A + 8 * h + 2 * q + i, X[2 * i], X[2 * i + 1]) for i in range(2)]
        r.append(('buffer_store_dwordx4 %s, v7, %s, %s offen offset:%d%s' % (v(A + 8 * h, 4), SWS, 's58' if j < 2 else 's59', (j & 1) * 2048 + h * 1024, '' if opt('hsp', 0) else ' sc1'), 'h%d' % j))
        if opt('hdbl', 0): r.append((r[-1][0].replace(' sc1', ''), 'h%d' % j))
    return r
setup3 += ['s_mov_b32 s66, %s' % fl(-0.1029432397), 's_mov_b32 s67, %s' % K0]
def w2_lds(mm, late):
    k = mm + 7 * late
    if k < 3: return CB + 8192 * k
    return 8192 * (k - 3)
def dma_w2(mm, late):
    tag = 'w2a' if mm + 7 * late < 10 else 'w2b'
    L = [('buffer_load_dwordx4 v%d, %s, %s offen offset:%d lds' % (9 + 2 * late + u, SW2, CW[mm], 1024 * u), tag) for u in range(2)]
    return [m.U(['s_add_u32 m0, s51, %d' % w2_lds(mm, late), L[0]]), L[1]]
def trG(i):
    r = []
    if i == 28: r += ['v_add_u32 v21, %d, v21' % W1H1, 'v_add_u32 v22, %d, v22' % W1H1]
    return r + ['ds_read_b64_tr_b16 %s, v%d offset:%d' % (v(96 + 8 * (i % 4) + 4 * j + 2 * aa, 2), 21 + j, 2048 * (i % 28) + 512 * aa) for j in range(2) for aa in range(2)]
def g1(i, j):
    d = v(32 + 16 * (2 * (i // 28) + j), 16)
    return 'v_mfma_f32_32x32x16_bf16 %s, %s, %s, %s' % (d, v(96 + 8 * (i % 4) + 4 * j, 4), ag(4 * (i % 28), 4), d)
def hpf(j):
    fl_ = m.flag('v24', 's61')
    if not opt('hpf', 0): return fl_
    n, so, off = (32, 's59', 0) if j == 3 else (16, 's58', 2048 * j)
    return m.U([fl_, 's_mov_b64 exec, 0x%x' % ((1 << n) - 1), lambda: (m.raw('    buffer_load_ubyte v2, v5, %s, %s offen offset:%d sc1' % (SWS, so, off)), m.vm.append((None, 'hpf'))), 's_mov_b64 exec, -1'])
def hflag(j): return [m.W('h%d' % j), hpf(j), 's_add_u32 s61, s61, 0x20000']
m.run([m.W('w1_0'), m.signal(SYM, 1), m.sread(SYM), m.scheck(SYM, 1)])
m.run(trG(0) + trG(1))
SYNC = {8: 1, 16: 3, 32: 6}
def g1_items(lo, hi):
    main = []
    for i in range(lo, hi):
        rd = trG(i + 2) if i + 2 < 56 else [None] * 4
        pre = []
        if i + 5 in SYNC: pre = [m.W('w1_%d' % SYNC[i + 5]), m.signal(SYM, SYNC[i + 5] + 1)]
        if i + 4 in SYNC: pre = [m.sread(SYM)]
        if i + 2 in SYNC: pre = [m.scheck(SYM, SYNC[i + 2] + 1)]
        if i == 17: pre = [m.sread(SYF)]
        if i == 19: pre = [m.scheck(SYF, 7)]
        if i == 31: pre = [m.signal(SYM2, 1)]
        if i == 32: pre = [m.sread(SYM2)]
        if i == 33: pre = [m.scheck(SYM2, 1)]
        if i == opt('hf0', 50) and opt('lv2', 2) != 1: pre = hflag(0)
        if i in (1, 8, 14, 18, 24, 34, 40, 46): pre = pre + [m.S('g1_%d' % i)]
        main.append(m.U(pre + [g1(i, 0)] + rd[:-2])); main.append(m.U([g1(i, 1)] + rd[-2:]))
    return main
w2c = dma_w2(0, 0) + dma_w2(1, 0) + dma_w2(2, 0)
m.run(weave(g1_items(0, 28), (sum(w1rest[:-3], []), 0, 12), (sum(w1rest[-3:], []), opt('r4lo', 14), opt('r4hi', 34)), ((pf2 if opt('pf2at', 0) == 2 else []) + setup2, 34, 46), (w2c, 46, 56)))
m.run(setup3)
m.stamp('G1a')
w2a = []
for k in range(3, 10): w2a += dma_w2(k % 7, k // 7)
GE = opt('ge', 48)
m.run(weave(g1_items(28, 56), (gelu(0, 128, PK > 1) + gelu(1, 136, PK > 1), 0, GE), (w2a, 12, 56)))
m.stamp('G1b')
m.run([m.signal(SYM2, 2), m.sread(SYM2)])
def p2(j): return 'buffer_load_dword v6, v25, %s, %s offen %s' % (SWS, ['s65', 's68', 's69', 's70'][j], PSC)
def hcheck(j): return m.poll([p2(j)], ['v6'], sT1, 1)
g2 = gelu(2, 128, PK); n2 = len(g2)
w2b = []
for mm in range(3, 7): w2b += dma_w2(mm, 1)
NEWO = opt('newo', 0)
LV2 = opt('lv2', 2); DEF = opt('defer', 0)
if DEF:
    st2 = [y for y in g2 if isinstance(y, tuple)]; g2 = [y for y in g2 if not isinstance(y, tuple)]; k2 = n2 * opt('f1at', 60) // 100
    m.run(g2[:n2 // 5] + [m.scheck(SYM2, 2)] + weave(g2[n2 // 5:k2], w2b) + [m.W('h1'), p2(0)] + hflag(1)[1:] + g2[k2:])
    m.stamp('gelu2')
elif LV2:
    k2 = n2 * opt('f1at', 60) // 100
    m.run(g2[:n2 // 5] + [m.scheck(SYM2, 2)] + weave(g2[n2 // 5:k2], w2b) + hflag(1) + g2[k2:])
    m.stamp('gelu2')
elif not NEWO:
    m.run(g2[:n2 // 5] + [m.scheck(SYM2, 2)] + weave(g2[n2 // 5:n2 * 3 // 4], w2b) + [m.W('h1'), p2(0)] + hflag(1)[1:] + g2[n2 * 3 // 4:])
    m.stamp('gelu2')
MERGE = opt('merge', 2)
steps = [(mm, j, (0, 1)) for j in range(MERGE) for mm in range(7)] + [(mm, j, (0,)) for j in range(MERGE, 4) for mm in range(7)] + \
        [(mm, j, (1,)) for j in range(MERGE, 4) for mm in range(7)]
loads = [(i, p) for i, st in enumerate(steps) for p in st[2]]
lidx = {x: k for k, x in enumerate(loads)}
NH = 28; NS = len(steps)
def h_load(k):
    i, p = loads[k]; mm, j, _ = steps[i]
    return 'buffer_load_dwordx4 %s, v%d, %s, %s offen offset:%d%s' % (ag(4 * (k % NH), 4), 13 + 2 * p + (j >> 1), SWS, CH[mm], 2048 * (j & 1), '' if opt('hlp', 0) else ' sc1')
def trD(i):
    mm, j, _ = steps[i]
    ad = w2_lds(mm, j >> 1) + 4096 * (j & 1)
    base, ar = (CB, 17) if ad >= CB else ((0, 64) if ad < W1H1 else (W1H1, 68))
    return ['ds_read_b64_tr_b16 %s, v%d offset:%d' % (v(96 + 16 * (i % 3) + 4 * ct + 2 * aa, 2), ar + ct, ad - base + 1024 * aa) for ct in range(4) for aa in range(2)]
started = set()
def mfD(i):
    r = []
    for p in steps[i][2]:
        for ct in range(4):
            d = v(32 + 16 * p + 4 * ct, 4)
            r.append('v_mfma_f32_16x16x32_bf16 %s, %s, %s, %s' % (d, v(96 + 16 * (i % 3) + 4 * ct, 4), ag(4 * (lidx[(i, p)] % NH), 4), d if p in started else '0'))
        started.add(p)
    return r
first_lvl = {j: min(k for k, (i, p) in enumerate(loads) if steps[i][1] == j) for j in range(4)}
issued = 0
PLEAD = opt('plead', 3)
def issue_upto(n, fill):
    global issued
    while issued < min(n, len(loads)):
        if LV2 in (1, 2):
            if LV2 == 2 and first_lvl[1] == issued: fill.append(hcheck(1))
            if first_lvl[2] == issued: fill.append(hcheck(LV2))
            if first_lvl[2] - PLEAD == issued: fill.append(p2(LV2))
        for j in (() if LV2 in (1, 2) else range(1, 4)):
            if first_lvl[j] == issued: fill.append(hcheck(j))
            if j > 1 and first_lvl[j] - PLEAD == issued: fill.append(p2(j))
        fill.append(h_load(issued)); issued += 1
g3 = gelu(3, 136, PK)
k3 = len(g3) * opt('c0at', 70) // 100
fl0 = []; issue_upto(first_lvl[1], fl0)
if DEF:
    st3 = [y for y in g3 if isinstance(y, tuple)]; g3 = [y for y in g3 if not isinstance(y, tuple)]; k3 = len(g3) * opt('c0at2', 30) // 100
    m.run(g3[:k3] + [m.S('gelu3'), hcheck(0), m.S('chk0')] + weave(g3[k3:], fl0) + ([p2(1)] if DEF == 2 else []) + st2 + st3 + ([p2(1)] if DEF == 1 else []) + [m.S('L0iss')])
elif LV2:
    k3 = len(g3) * opt('p0at', 40) // 100
    m.run(g3[:k3] + [p2(0)] + g3[k3:] + [m.S('gelu3'), hcheck(0), m.S('chk0')] + (hflag(2) if LV2 == 4 else []) + (hflag(3)[:2] + fl0 if opt('f3first', 0) else fl0 + [m.W('h3'), p2(1) if LV2 >= 2 else None] + hflag(3)[1:2]) + [m.S('L0iss')])
elif NEWO:
    sp = lambda L: ([y for y in L if not isinstance(y, tuple)], [y for y in L if isinstance(y, tuple)])
    (a2, st2), (a3, st3) = sp(g2), sp(g3)
    aa = a2 + a3; n = len(a2); c0 = n * opt('c0', 90) // 100; c1 = n * opt('c1', 150) // 100
    seq = aa[:n // 6] + [m.scheck(SYM2, 2), p2(0)] + weave(aa[n // 6:n // 2], w2b) + hflag(1) + aa[n // 2:c0] + [m.S('gelu2'), hcheck(0), m.S('chk0')] + weave(aa[c0:c1], fl0) + [p2(1)] + st2 + aa[c1:] + st3
    m.run(seq + [m.S('gelu3')])
elif opt('l0early', 0):
    st3 = [y for y in g3 if isinstance(y, tuple)]; g3 = [y for y in g3 if not isinstance(y, tuple)]; k3 = len(g3) * opt('l0early', 0) // 100
    m.run(g3[:k3] + [m.S('gelu3'), hcheck(0), m.S('chk0')] + weave(g3[k3:], fl0) + st3 + [m.S('L0iss'), p2(1)] + hflag(2))
else:
    m.run(g3[:k3] + hflag(2) + g3[k3:] + [m.S('gelu3'), hcheck(0), m.S('chk0'), p2(1)] + fl0 + [m.S('L0iss')] + hflag(3)[:2])
for ct in range(4): e('v_subrev_u32 v%d, %d, v%d' % (64 + ct, CB, 17 + ct)); e('v_subrev_u32 v%d, %d, v%d' % (68 + ct, CB - W1H1, 17 + ct))
m.run([m.W('w2b'), m.signal(SYM2, 3), m.sread(SYM2), m.scheck(SYM2, 3)])
m.run(trD(0) + trD(1))
m.stamp('hiss')
last_p0 = max(i for i, st in enumerate(steps) if 0 in st[2])
LEAD = opt('lead', 8)
mpx = ['buffer_load_dwordx4 %s, v7, %s, s79 offen offset:%d sc1' % (v(84 + 4 * k, 4), SWS, 1024 * k) for k in range(3)]
for i in range(NS):
    fill = []
    issue_upto(max(lidx[(i, steps[i][2][-1])] + 1 + LEAD, min(first_lvl[2] - PLEAD, first_lvl[1] + opt('burst', 6) * (i + 1 - opt('b0', 1))) if opt('burst', 6) else 0), fill)
    if i == NS - 1 - opt('pxl', 1): fill += ['s_cmp_eq_u32 %s, 0' % sHALF, 's_mov_b32 s79, %d' % (7 * 16384), 's_cselect_b32 s79, s79, %d' % ((1 << 32) - 7 * 16384), 's_add_u32 s79, s79, s63'] + mpx
    if opt('l0early', 0) and i == opt('hf3', 4): fill += hflag(3)[:2]
    if NEWO and i == opt('f2at', 2): fill += hflag(2)
    if NEWO and i == opt('f3at', 5): fill += hflag(3)[:2]
    if DEF and i == opt('f3at2', 3): fill = hflag(3)[:2] + fill
    if i == opt('sig4', 3): fill += [m.signal(SYM2, 4)]
    if i == last_p0 + 1:
        PXR = [72, 73, 74, 76, 77, 78, 80, 81]
        fill += ['v_mov_b32 v%d, %s' % (r, sT1) for r in (75, 79, 83)]
        fill += ['v_cvt_pk_bf16_f32 v%d, v%d, v%d' % (PXR[k], 32 + 2 * k, 33 + 2 * k) for k in range(8)]
        fill += ['buffer_store_dwordx4 %s, v7, %s, s63 offen offset:%d sc1' % (v(72 + 4 * k, 4), SWS, 1024 * k) for k in range(3)]
    if i == NS - 6:
        fill += ['s_mov_b32 s78, %d' % (128 * 896), 'v_and_b32 v14, 1, v4', 'v_lshlrev_b32 v14, 5, v14', 'v_lshrrev_b32 v15, 1, v4', 'v_lshl_add_u32 v14, v15, 4, v14',
                 'v_mad_u32_u24 v14, v8, s78, v14',
                 's_and_b32 s66, %s, 1' % sW, 's_lshl_b32 s66, s66, 6', 's_add_u32 s66, s66, s64', 's_mul_i32 s66, s66, 896', 's_lshl_b32 s78, %s, 7' % sNT, 's_add_u32 s66, s66, s78',
                 's_mul_i32 s78, %s, 6144' % sW, 's_add_u32 s78, s78, %d' % RED, 'v_add_u32 v15, s78, v7',
                 's_lshl_b32 s78, %s, 6' % sW, 's_add_u32 s78, s78, %d' % GL, 'v_lshl_add_u32 v16, v8, 2, s78']
        assert issued == len(loads)
    rd = trD(i + 2) if i + 2 < NS else []
    m.run(weave(mfD(i), rd, fill))
    if i in (0, 6, 13, 20, last_p0, NS - 8): m.stamp('g2_%d' % i)
m.stamp('G2end')
m.barrier()
e('ds_read_b32 v13, v16')
for ct in range(4): e('ds_read_b128 %s, v15 offset:%d' % (v(64 + 4 * ct, 4), 1024 * ct))
m.run([m.poll(mpx, ['v87', 'v91', 'v95'], sT1, 1)])
m.stamp('px')
for k, r in enumerate([84, 85, 86, 88, 89, 90, 92, 93]):
    e('v_lshlrev_b32 v%d, 16, v%d' % (32 + 2 * k, r)); e('v_and_b32 v%d, 0xffff0000, v%d' % (33 + 2 * k, r))
for k in range(16): e('v_add_f32 v%d, v%d, v%d' % (48 + k, 48 + k, 32 + k))
e('v_sub_f32 v13, 1.0, v13')
for k in range(16): e('v_fmac_f32 v%d, v13, v%d' % (64 + k, 48 + k))
for k in range(8): e('v_cvt_pk_bf16_f32 v%d, v%d, v%d' % (80 + k, 64 + 2 * k, 65 + 2 * k))
for p in range(2):
    e('v_permlane16_swap_b32 v%d, v%d' % (80 + 4 * p, 82 + 4 * p)); e('v_permlane16_swap_b32 v%d, v%d' % (81 + 4 * p, 83 + 4 * p))
for p in range(2):
    e('buffer_store_dwordx4 %s, v14, %s, s66 offen offset:%d%s' % (v(80 + 4 * p, 4), SOUT, 64 * p, ['', ' sc1', ' nt', ' sc0 sc1'][opt('osc', 0)]))
e('s_or_b32 s77, s2, %s' % sW); e('s_cmp_lg_u32 s77, 0'); e('s_cbranch_scc1 L_fin'); m.cond_begin()
e('v_mov_b32 v2, %s' % sEN); e('s_mov_b64 exec, 1'); e('buffer_store_dword v2, off, %s, 0 sc1' % SWS); e('s_mov_b64 exec, -1')
m.endc('L_fin')
m.finish(0)

f = Role(); e = f.e
f.raw('L_fft:')
e('s_setprio %d' % opt('fprio', 2))
f.run([f.signal(SYM, 0)]); e('ds_write_b32 v26, v28 offset:%d' % (SYF - SYM)); e('ds_write_b32 v26, v28 offset:%d' % (SYM2 - SYM)); e('ds_write_b32 v26, v28 offset:%d' % (SYX - SYM))
f.run(['v_lshrrev_b32 v32, 1, v6', 's_lshl_b32 s77, %s, 4' % sNB, 'v_add_u32 v32, s77, v32', 'v_and_b32 v33, 1, v1', 'v_cvt_f32_u32 v34, v33',
     'v_mul_f32 v34, 0x3e800000, v34', 'v_lshl_add_u32 v35, v32, 1, v33', 'v_cmp_eq_u32 vcc, 1, v35', 'v_mov_b32 v35, 224',
     'v_cndmask_b32 v32, v32, v35, vcc', 'v_cndmask_b32 v34, v34, v28, vcc', 'v_cvt_f32_u32 v32, v32', 'v_mul_f32 v32, %s, v32' % fl(1.0 / 448),
     's_mul_i32 s77, %s, 112' % sW, 'v_lshl_add_u32 v35, v5, 3, s77', 'v_cvt_f32_u32 v35, v35', 'v_fmac_f32 v34, v32, v35', 'v_fract_f32 v34, v34',
     's_mul_i32 s77, %s, 7168' % sW, 's_add_u32 s77, s77, %d' % CB, 'v_add_u32 v35, s77, v7'])
def w1pf():
    f.raw('    s_waitcnt lgkmcnt(0)'); f.lg_done = len(f.lg)
    f.srd(28, 56, 1605632)
    e('v_lshrrev_b32 v36, 1, v1'); e('v_min_u32 v36, 27, v36'); e('v_mul_u32_u24 v36, 3584, v36'); e('v_and_b32 v37, 1, v1'); e('v_lshl_add_u32 v36, v37, 7, v36')
    e('s_and_b32 s77, %s, 15' % sSQ); e('s_mul_i32 s77, s77, %d' % (28 * 3584)); e('s_lshl_b32 s78, %s, 8' % sNB); e('s_add_u32 s77, s77, s78')
    f.raw('    buffer_load_ubyte v142, v36, s[28:31], s77 offen')
for tt in range(7):
    if tt == opt('w1pf', 9): w1pf()
    b = 40 + 12 * (tt & 1)
    for j in range(8): e('v_fmamk_f32 v%d, v32, %s, v34' % (b + j, fl(16.0 * tt + j)))
    for j in range(8): e('v_cos_f32 v%d, v%d' % (b + j, b + j))
    for j in range(4): e('v_cvt_pk_bf16_f32 v%d, v%d, v%d' % (b + 8 + j, b + 2 * j, b + 2 * j + 1))
    e('ds_write_b128 v35, %s offset:%d' % (v(b + 8, 4), 1024 * tt))
f.raw('    s_waitcnt lgkmcnt(0)'); f.lg_done = len(f.lg)
f.stamp('genC')
FCH = ['s%d' % (8 + p) for p in range(7)]
f.chtab(FCH, 12)
f.srd(16, 70, WS_SIZE); f.srd(20, 50, 921600); f.srd(24, 52, 921600); f.srd(40, 62, 896)
e('s_lshl_b32 s50, %s, 12' % sW)
e('v_add_u32 v13, %d, v7' % CB)
f.xread_addrs(9)
e('v_and_b32 v21, 1, v1'); e('v_lshlrev_b32 v22, 1, v21'); e('v_lshlrev_b32 v21, 31, v21'); e('v_or_b32 v21, 1.0, v21')
e('v_lshrrev_b32 v14, 1, v6'); e('v_lshl_add_u32 v22, v14, 4, v22'); e('v_lshl_add_u32 v22, v5, 10, v22')
e('s_lshl_b32 s77, %s, 2' % sW); e('s_add_u32 s77, s77, %d' % TT); e('v_add_u32 v22, s77, v22')
e('s_lshl_b32 s77, %s, 11' % sW); e('s_add_u32 s77, s77, %d' % TT); e('v_add_u32 v15, s77, v7')
e('v_lshlrev_b32 v16, 4, v8'); e('v_lshl_add_u32 v16, v4, 12, v16')
e('s_lshl_b32 s55, %s, 17' % sNB); e('s_add_u32 s55, s55, %d' % TB)
e('s_lshl_b32 s58, %s, 15' % sW); e('s_lshl_b32 s78, %s, 8' % sMB); e('s_add_u32 s58, s58, s78'); e('s_add_u32 s58, s58, s55'); e('s_add_u32 s59, s58, 16384')
gf1 = ['v_cvt_f32_u32 v32, v6', 'v_mul_f32 v32, 0x3d000000, v32', 'v_mul_u32_u24 v33, %s, v8' % sSQ,
     'v_bfe_u32 v34, v1, 4, 1', 's_lshr_b32 s79, %s, 5' % sSQ, 's_lshl_b32 s79, s79, 9', 'v_mad_u32_u24 v33, v34, s79, v33',
     'v_cvt_f32_u32 v33, v33', 'v_mul_f32 v33, 0x3a000000, v33', 'v_lshlrev_b32 v34, 3, v5', 'v_cvt_f32_u32 v34, v34', 'v_fmac_f32 v33, v32, v34']
for cc in range(2):
    for hq in range(2):
        for j in range(4): gf1.append('v_fmamk_f32 v%d, v32, %s, v33' % (36 + j, fl(16.0 * hq + 2 * j + cc)))
        for j in range(4): gf1 += ['v_sin_f32 v%d, v%d' % (40 + j, 36 + j), 'v_cos_f32 v%d, v%d' % (36 + j, 36 + j)]
        for j in range(2): gf1 += ['v_cvt_pk_bf16_f32 v%d, v%d, v%d' % (128 + 4 * cc + 2 * hq + j, 36 + 2 * j, 37 + 2 * j), 'v_cvt_pk_bf16_f32 v%d, v%d, v%d' % (136 + 4 * cc + 2 * hq + j, 40 + 2 * j, 41 + 2 * j)]
f.run(gf1[:-4])
f.raw('    s_waitcnt vmcnt(0)')
f.run(gf1[-4:])
f.barrier()
cr = []
for p in range(7): cr += ['v_add_u32 v23, %s, v13' % FCH[p]] + ['ds_read_b128 %s, v23 offset:%d' % (ag(16 * p + 4 * tt, 4), 1024 * tt) for tt in range(4)]
f.run(cr)
XB = [48, 64, 96, 112]
def f1_mfma(p):
    return ['v_mfma_f32_32x32x16_bf16 %s, %s, %s, %s' % (v(80, 16), v(XB[p & 3] + 4 * tt, 4), ag(16 * p + 4 * tt, 4), '0' if (p == 0 and tt == 0) else v(80, 16)) for tt in range(4)]
def fxr(p): return [('ds_read_b128 %s, v%d offset:%d' % (v(XB[p & 3] + 4 * tt, 4), 9 + tt, (p % 4) * 16384), 'xr%d' % p) for tt in range(4)]
f.run([f.sread1(SYX), f.scheck1(SYX, 1)])
f.stamp('x0')
if X0R: f.run(X0OFF('s79'))
f.run((xrd0(f, lambda tt: v(XB[0] + 4 * tt, 4), 9, 's79', 44) if X0R else fxr(0)) + fxr(1) + weave(f1_mfma(0), fxr(2) + fxr(3)) + [f.sread(SYX)] + ['v_add_u32 v%d, 65536, v%d' % (9 + tt, 9 + tt) for tt in range(4)])
f.run(f1_mfma(1) + [f.L('xr3'), 'v_mov_b32 v47, 4', 'ds_write_b32 v26, v47 offset:%d' % (SYF - SYM), f.scheck(SYX, 2)])
f.run(weave(f1_mfma(2), fxr(4) + fxr(5)) + weave(f1_mfma(3), fxr(6)) + f1_mfma(4) + f1_mfma(5) + [f.L('xr6'), f.signal(SYF, 7), f.sread(SYF)] + f1_mfma(6) + [f.scheck(SYF, 4)])
e('buffer_load_dword v24, off, %s, 0 sc1' % SWS)
f.stamp('F1end')
for j in range(8): e('v_cvt_pk_bf16_f32 v%d, v%d, v%d' % (80 + j, 80 + 2 * j, 81 + 2 * j))
e('v_mfma_f32_32x32x16_bf16 %s, %s, %s, 0' % (v(32, 16), v(128, 4), v(80, 4)))
e('v_mfma_f32_32x32x16_bf16 %s, %s, %s, 0' % (v(48, 16), v(136, 4), v(80, 4)))
e('v_mfma_f32_32x32x16_bf16 %s, %s, %s, %s' % (v(32, 16), v(132, 4), v(84, 4), v(32, 16)))
e('v_mfma_f32_32x32x16_bf16 %s, %s, %s, %s' % (v(48, 16), v(140, 4), v(84, 4), v(48, 16)))
f.ifnb0('L_sp1')
for k in range(16): e('v_cvt_pk_bf16_f32 v%d, v%d, -v%d' % (64 + k, 32 + k, 48 + k))
f.endc('L_sp1')
for k in range(16): e('v_fmac_f32_dpp v%d, v%d, v21 quad_perm:[1,0,3,2] %s' % (32 + k, 48 + k, DP))
for k in range(0, 16, 2): e('v_cvt_pk_bf16_f32 v%d, v%d, v%d' % (48 + k // 2, 32 + k, 33 + k))
for k in range(0, 16, 2):
    off = (8 * (k >> 2) + (k & 3)) * 256
    e('ds_write_b16 v22, v%d offset:%d' % (48 + k // 2, off)); e('ds_write_b16_d16_hi v22, v%d offset:%d' % (48 + k // 2, off + 256))
f.ifnb0('L_sp2')
e('v_and_b32 v23, 1, v1'); e('s_mov_b32 s77, %d' % (TT - YX + 2)); e('v_mul_u32_u24 v23, s77, v23'); e('v_sub_u32 v23, v22, v23')
e('s_mov_b32 exec_lo, 3'); e('s_mov_b32 exec_hi, 3')
for k in range(16): e('ds_write_b32 v23, v%d offset:%d' % (64 + k, (8 * (k >> 2) + (k & 3)) * 256))
e('s_mov_b64 exec, -1')
f.endc('L_sp2')
f.run([f.signal(SYF, 8), f.sread(SYF)])
f.run([f.scheck(SYF, 8)])
e('ds_read_b128 %s, v15' % v(64, 4)); e('ds_read_b128 %s, v15 offset:1024' % v(68, 4))
e('buffer_store_dwordx4 %s, v16, %s, s58 offen sc1' % (v(64, 4), SWS), tag='T')
e('buffer_store_dwordx4 %s, v16, %s, s59 offen sc1' % (v(68, 4), SWS), tag='T')
f.ifnb0('L_sp3')
e('s_lshl_b32 s77, %s, 11' % sW); e('s_add_u32 s77, s77, %d' % YX); e('v_lshlrev_b32 v21, 8, v1'); e('v_add_u32 v22, s77, v21')
e('v_lshlrev_b32 v21, 11, v1'); e('s_lshl_b32 s77, %s, 14' % sW); e('s_lshl_b32 s78, %s, 7' % sMB); e('s_add_u32 s77, s77, s78'); e('s_add_u32 s77, s77, %d' % TVB)
e('s_mov_b64 exec, 0xff'); e('ds_read_b128 %s, v22' % v(72, 4))
e('buffer_store_dwordx4 %s, v21, %s, s77 offen sc1' % (v(72, 4), SWS), tag='T')
e('s_mov_b64 exec, -1')
f.endc('L_sp3')
f.stamp('Tst')
f.tags()
f.run([f.signal(SYF, 9)])
for k in range(16): e('v_mov_b32 v%d, 0' % (96 + k))
e('v_lshlrev_b32 v19, 1, v8'); e('s_mov_b32 s77, %d' % (256 * 450)); e('v_mad_u32_u24 v19, v4, s77, v19')
e('s_lshl_b32 s56, %s, 4' % sW); e('s_add_u32 s56, s56, %s' % sMB); e('s_mul_i32 s77, s56, 450'); e('s_lshl_b32 s78, %s, 5' % sNB); e('s_add_u32 s57, s77, s78')
wl = []
for k in range(8):
    wl += [f.U(['s_add_u32 s79, s57, %d' % ((16 * (k >> 2) + (k & 3)) * 28800), 'buffer_load_short_d16_hi v%d, v19, %s, s79 offen' % (96 + k, SWR)]),
           'buffer_load_short_d16_hi v%d, v19, %s, s79 offen' % (104 + k, SWI)]
psp = ['buffer_load_dwordx4 %s, v20, %s, s65 offen offset:%d sc1' % (v(128 + 4 * mt, 4), SWS, 256 * mt) for mt in range(2)]
def wsp():
    e('v_lshrrev_b32 v20, 2, v1'); e('v_lshlrev_b32 v20, 4, v20')
    f.ifnb0('L_sp4')
    e('s_lshl_b32 s65, %s, 9' % sSQ); e('s_add_u32 s65, s65, %d' % SPB)
    f.run(psp)
    f.endc('L_sp4')
e('s_lshl_b32 s60, %s, 2' % sNB); e('s_add_u32 s60, s60, %s' % sW); e('s_lshl_b32 s60, s60, 2'); e('s_and_b32 s77, %s, 3' % sMB); e('s_add_u32 s60, s60, s77')
e('s_lshl_b32 s60, s60, 3'); e('s_lshr_b32 s78, %s, 2' % sMB); e('s_add_u32 s60, s60, s78'); e('s_lshl_b32 s60, s60, 4'); e('s_add_u32 s60, s60, %d' % FL1)
e('s_lshl_b32 s62, %s, 2' % sNT); e('s_add_u32 s62, s62, s77'); e('s_lshl_b32 s62, s62, 1'); e('s_and_b32 s77, %s, 1' % sW); e('s_add_u32 s62, s62, s77'); e('s_lshl_b32 s62, s62, 3')
e('s_and_b32 s77, s2, 7'); e('s_add_u32 s62, s62, s77'); e('s_lshl_b32 s62, s62, 4')
e('s_lshr_b32 s77, %s, 1' % sW); e('s_lshl_b32 s77, s77, 13'); e('s_add_u32 s62, s62, s77'); e('s_add_u32 s62, s62, %d' % FL3)
e('s_lshr_b32 s77, %s, 3' % sMB); e('s_and_b32 s78, %s, 1' % sW); e('s_lshl_b32 s79, s78, 1'); e('s_add_u32 s77, s77, s79')
e('s_lshl_b32 s79, %s, 2' % sNB); e('s_add_u32 s77, s77, s79'); e('s_lshl_b32 s77, s77, 9'); e('s_add_u32 s63, s77, %d' % FL1)
e('v_and_b32 v9, 3, v1'); e('v_lshlrev_b32 v9, 7, v9'); e('v_bfe_u32 v10, v1, 2, 2'); e('v_lshl_add_u32 v9, v10, 4, v9')
gi = ['s_lshl_b32 s68, %s, 6' % sNT, 'v_add_u32 v80, s68, v8', 'v_cvt_f32_u32 v80, v80', 's_lshl_b32 s68, %s, 6' % sW, 'v_bfe_u32 v81, v1, 4, 1', 'v_lshl_add_u32 v81, v81, 1, v5', 'v_lshl_add_u32 v81, v81, 4, s68',
      'v_cvt_f32_u32 v81, v81', 'v_and_b32 v84, 1, v1', 'v_lshlrev_b32 v84, 31, v84', 'v_or_b32 v84, 0x3e803e80, v84', 'v_cmp_eq_u32 s[70:71], 0, v81']
gihead = list(gi)
for ct in range(4):
    gi += ['v_add_f32 v82, %s, v80' % fl(16.0 * ct), 'v_mul_f32 v82, %s, v82' % fl(1.0 / 448), 'v_mul_f32 v83, v82, v81', 'v_fract_f32 v83, v83']
    for cc in range(4):
        for q in range(4): gi.append('v_fmamk_f32 v%d, v82, %s, v83' % (88 + q, fl(4.0 * q + cc)))
        for q in range(4): gi += ['v_sin_f32 v%d, v%d' % (92 + q, 88 + q), 'v_cos_f32 v%d, v%d' % (88 + q, 88 + q)]
        for q in range(4): gi.append('v_cvt_pk_bf16_f32 v%d, v%d, -v%d' % (88 + q, 88 + q, 92 + q))
        if cc == 0: gi.append('v_cndmask_b32 v88, v88, v84, s[70:71]')
        for q in range(4): gi.append('v_accvgpr_write_b32 a%d, v%d' % (48 + 16 * cc + 4 * ct + q, 88 + q))
r = []
r += ['v_lshl_add_u32 v32, v8, 2, %s' % sW, 'v_cvt_f32_u32 v32, v32', 'v_mul_f32 v32, 0x3c000000, v32', 'v_lshlrev_b32 v34, 2, v4', 'v_cvt_f32_u32 v34, v34']
for mt in range(2):
    if mt: r.append('v_add_f32 v32, 0.5, v32')
    r.append('v_mul_f32 v33, v32, v34')
    for j in range(8): r.append('v_fmamk_f32 v%d, v32, %s, v33' % (40 + j, fl(16.0 * (j >> 2) + (j & 3))))
    for j in range(8): r += ['v_sin_f32 v%d, v%d' % (48 + j, 40 + j), 'v_cos_f32 v%d, v%d' % (40 + j, 40 + j)]
    for j in range(8):
        r += ['v_cvt_pk_bf16_f32 v%d, v%d, v%d' % (56 + (j & 3), 40 + j, 48 + j), 'v_cvt_pk_bf16_f32 v%d, -v%d, v%d' % (60 + (j & 3), 48 + j, 40 + j),
              'v_accvgpr_write_b32 a%d, v%d' % (8 * mt + j, 56 + (j & 3)), 'v_accvgpr_write_b32 a%d, v%d' % (16 + 8 * mt + j, 60 + (j & 3))]
gi = r + gi
if opt('nogen', 0): gi = ['s_sleep 1'] * 40 + [None] * 500
n1, n2, n3, n4 = opt('gi1', 90), opt('gi2', 150), opt('gi3', 217), opt('gi4', 217)
def wpatch():
    f.ifnb0('L_sp8')
    f.run([f.poll(psp, ['v130', 'v134'], sT1, 1)])
    e('v_cmp_ne_u32 vcc, 0, v8')
    for mt in range(2):
        for c2 in range(2):
            e('v_lshlrev_b32 v%d, 16, v%d' % (136 + 4 * mt + 2 * c2, 128 + 4 * mt + c2)); e('v_and_b32 v%d, 0xffff0000, v%d' % (137 + 4 * mt + 2 * c2, 128 + 4 * mt + c2))
    for k in range(8):
        mt, kk = k >> 2, k & 3
        sh0 = 'row_shl:%d' % (4 * kk) if kk else 'quad_perm:[0,1,2,3]'
        for ri in range(2):
            e('v_cndmask_b32_dpp v%d, v%d, v%d, vcc %s %s bound_ctrl:0' % (96 + 8 * ri + k, 136 + 4 * mt + ri, 96 + 8 * ri + k, sh0, DP))
            e('v_mov_b32_dpp v%d, v%d %s %s bound_ctrl:0' % (112 + 8 * ri + k, 138 + 4 * mt + ri, sh0, DP))
    f.endc('L_sp8')
def f2const():
    e('s_lshr_b32 s77, %s, 1' % sW); e('s_mul_i32 s66, s77, 0x80008000')
    for kb in range(1, 4):
        e('s_mul_i32 s77, %s, %d' % (sW, kb)); e('s_and_b32 s77, s77, 3'); e('s_and_b32 s78, s77, 1'); e('s_lshl_b32 s%d, s78, 4' % (67 + kb))
        e('s_lshr_b32 s78, s77, 1'); e('s_xor_b32 s79, s77, s78'); e('s_lshl_b32 s79, s79, 31'); e('s_lshl_b32 s78, s78, 15'); e('s_or_b32 s%d, s79, s78' % (51 + kb))
    e('v_lshlrev_b32 v22, 4, v8'); e('v_lshl_add_u32 v22, v4, 10, v22'); e('s_lshl_b32 s77, %s, 2' % sW); e('s_add_u32 s77, s77, %d' % YX); e('v_add_u32 v22, s77, v22')
    e('v_add_u32 v23, %d, v7' % YX)
    e('s_mov_b32 s77, %d' % (4 * 28672)); e('v_lshlrev_b32 v21, 4, v3'); e('v_mad_u32_u24 v21, v2, s77, v21')
    e('s_mul_i32 s58, %s, 28672' % sW); e('s_mul_i32 s78, %s, 1792' % sMB); e('s_add_u32 s58, s58, s78')
    e('s_lshl_b32 s78, %s, 7' % sNB); e('s_add_u32 s58, s58, s78'); e('s_add_u32 s58, s58, %d' % RB); e('s_add_u32 s59, s58, %d' % (32 * 28672))
    e('s_lshl_b32 s77, %s, 11' % sW); e('s_add_u32 s77, s77, %d' % TT)
    e('v_xor_b32 v14, v4, v3'); e('v_lshlrev_b32 v14, 4, v14'); e('v_lshl_add_u32 v14, v8, 7, v14'); e('v_add_u32 v14, s77, v14'); e('v_xor_b32 v15, 64, v14')
    e('v_xor_b32 v16, v2, v3'); e('v_lshlrev_b32 v16, 4, v16'); e('v_lshl_add_u32 v16, v2, 7, v16'); e('v_add_u32 v16, s77, v16')
    e('v_lshlrev_b32 v17, 14, v1')
    e('v_mov_b32 v18, %s' % sMB); e('v_cvt_f32_u32 v18, v18'); e('v_mul_f32 v18, 0x3d000000, v18'); e('v_sin_f32 v19, v18'); e('v_cos_f32 v18, v18')
p1 = 'buffer_load_dword v10, v9, %s, s63 offen %s' % (SWS, PSC)
LO, HI = 's_setprio %d' % opt('flo', 0), 's_setprio %d' % opt('fhi2', 2)
HI3 = 's_setprio %d' % opt('fhi3', 2)
f.run([LO if opt('lo1', 1) else None] + gi[:n1] + [f.S('preWT'), f.W('T'), f.S('WT'), f.flag('v24', 's60'), LO, wsp] + weave(gi[n1:n2], (wl, 0, 60)) + [(p1, 'p1')] + gi[n2:n3] + [f2const if opt('f2c', 1) else None, wpatch, HI, f.S('prepollT'), f.W('p1'), f.S('p1back'), f.poll([p1], ['v10'], sT1, 1)])
f.stamp('pollT')
e('s_and_b32 s78, %s, 1' % sW); e('s_lshl_b32 s78, s78, 4'); e('s_add_u32 s78, s78, %s' % sMB)
e('s_lshl_b32 s77, s78, 12'); e('s_add_u32 s77, s77, s55')
for q in range(4): e('buffer_load_dwordx4 %s, v7, %s, s77 offen offset:%d sc1' % (v(32 + 4 * q, 4), SWS, 1024 * q))
e('s_lshl_b32 s61, %s, 1' % sMB); e('s_add_u32 s61, s61, %s' % sHALF); e('s_lshl_b32 s61, s61, 9'); e('s_add_u32 s61, s61, %d' % GB); e('v_lshlrev_b32 v11, 3, v1')
pg = 'buffer_load_dwordx2 v[12:13], v11, %s, s61 offen sc1' % SWS
e(pg)
f.ifnb0('L_sp5')
e('v_lshlrev_b32 v64, 26, v8'); e('v_lshl_add_u32 v64, v4, 7, v64'); e('s_lshl_b32 s77, s78, 11'); e('s_add_u32 s77, s77, %d' % TVB)
for q in range(4): e('buffer_load_dwordx4 %s, v64, %s, s77 offen offset:%d sc1' % (v(48 + 4 * q, 4), SWS, 512 * q))
f.endc('L_sp5')
f.run(gi[n3:n4])
if not opt('f2c', 1): f2const()
e(f.sread(SYF))
f.run([f.scheck(SYF, 9)])
f.stamp('preF2')
def F2_fwd(D, B):
    for q in range(4):
        if q >= 2:
            for k in range(4): e('v_xor_b32 v%d, s66, v%d' % (B + 4 * q + k, B + 4 * q + k))
        for mt in range(2):
            for part in range(2):
                d = v(D + 8 * mt + 4 * part, 4)
                e('v_mfma_f32_16x16x32_bf16 %s, %s, %s, %s' % (d, ag(16 * part + 8 * mt + 4 * (q & 1), 4), v(B + 4 * q, 4), '0' if q == 0 else d))
F2_fwd(64, 32)
f.ifnb0('L_sp6'); F2_fwd(80, 48); f.endc('L_sp6')
for k in range(8):
    zr = 64 + 8 * (k >> 2) + (k & 3)
    e('v_mul_f32 v%d, v%d, v%d' % (128 + k, zr, 96 + k)); e('v_mul_f32 v%d, v%d, v%d' % (136 + k, zr, 104 + k))
for k in range(8):
    zi = 68 + 8 * (k >> 2) + (k & 3)
    e('v_fma_f32 v%d, -v%d, v%d, v%d' % (128 + k, zi, 104 + k, 128 + k)); e('v_fmac_f32 v%d, v%d, v%d' % (136 + k, zi, 96 + k))
f.ifnb0('L_sp7')
for k in range(8):
    zr = 80 + 8 * (k >> 2) + (k & 3)
    e('v_fma_f32 v%d, -v%d, v%d, v%d' % (128 + k, zr, 120 + k, 128 + k)); e('v_fmac_f32 v%d, v%d, v%d' % (136 + k, zr, 112 + k))
for k in range(8):
    zi = 84 + 8 * (k >> 2) + (k & 3)
    e('v_fma_f32 v%d, -v%d, v%d, v%d' % (128 + k, zi, 112 + k, 128 + k)); e('v_fma_f32 v%d, -v%d, v%d, v%d' % (136 + k, zi, 120 + k, 136 + k))
f.endc('L_sp7')
for k in range(8): e('v_cvt_pk_bf16_f32 v%d, v%d, -v%d' % (128 + k, 128 + k, 136 + k))
for k in range(8): e('ds_write_b32 v22, v%d offset:%d' % (128 + k, (16 * (k >> 2) + (k & 3)) * 256))
f.run([f.S('F2fwd'), f.signal(SYF, 10), f.sread(SYF), f.scheck(SYF, 10), f.S('Ysync')])
for q in range(8): e('ds_read_b128 %s, v23 offset:%d' % (v(32 + 4 * q, 4), 1024 * q))
for q in range(8):
    kb, t = q >> 1, q & 1
    if kb:
        if kb != 2:
            for j in range(4): e('v_alignbit_b32 v%d, v%d, v%d, s%d' % ((32 + 4 * q + j,) * 3 + (67 + kb,)))
        for j in range(4): e('v_xor_b32 v%d, s%d, v%d' % (32 + 4 * q + j, 51 + kb, 32 + 4 * q + j))
    for mt in range(2):
        for part in range(2):
            d = v(64 + 8 * mt + 4 * part, 4)
            e('v_mfma_f32_16x16x32_bf16 %s, %s, %s, %s' % (d, v(32 + 4 * q, 4), ag(16 * part + 8 * mt + 4 * t, 4), '0' if q == 0 else d))
for mt in range(2):
    if mt:
        for k in range(4): e('v_mul_f32 v%d, v19, v%d' % (80 + k, 76 + k)); e('v_mul_f32 v%d, v19, v%d' % (84 + k, 72 + k))
        for k in range(4): e('v_fma_f32 v%d, v18, v%d, v%d' % (72 + k, 72 + k, 80 + k)); e('v_fma_f32 v%d, v18, v%d, -v%d' % (76 + k, 76 + k, 84 + k))
    for k in range(4): e('v_cvt_pk_bf16_f32 v%d, v%d, -v%d' % (128 + 4 * mt + k, 64 + 8 * mt + k, 68 + 8 * mt + k))
    e('ds_write_b128 v%d, %s' % (14 + mt, v(128 + 4 * mt, 4)))
for u in range(2): e('ds_read_b128 %s, v16 offset:%d' % (v(136 + 4 * u, 4), 1024 * u))
e(f.sread(SYM))
for u in range(2): e('buffer_store_dwordx4 %s, v21, %s, %s offen sc1' % (v(136 + 4 * u, 4), SWS, 's58' if u == 0 else 's59'), tag='R')
f.run([f.scheck(SYM, 1), f.poll([pg], ['v13'], sT1, 1), 'v_lshlrev_b32 v11, 2, v1', 'v_add_u32 v11, %d, v11' % GL, 'ds_write_b32 v11, v12'])
f.stamp('Rst')
e('s_lshl_b32 s77, %s, 1' % sHALF); e('s_lshl_b32 s64, %s, 2' % sMB); e('s_add_u32 s64, s64, s77')
gs = ['v_lshlrev_b32 v33, 2, v4', 'v_cvt_f32_u32 v33, v33', 's_lshr_b32 s77, %s, 1' % sW, 's_add_u32 s53, s64, s77', 's_xor_b32 s52, s53, 1',
      's_lshl_b32 s77, %s, 6' % sW, 's_add_u32 s77, s77, %d' % GL, 'v_lshl_add_u32 v34, v8, 2, s77', 'ds_read_b32 v25, v34']
for lam in range(2):
    gs += ['v_lshl_add_u32 v34, v8, 7, s%d' % (52 + lam), 'v_cvt_f32_u32 v34, v34', 'v_mul_f32 v34, 0x3a000000, v34', 'v_mul_f32 v35, v34, v33']
    for q in range(4): gs.append('v_fmamk_f32 v%d, v34, %s, v35' % (40 + q, fl(1.0 * q)))
    for q in range(4): gs += ['v_sin_f32 v%d, v%d' % (44 + q, 40 + q), 'v_cos_f32 v%d, v%d' % (40 + q, 40 + q)]
    for q in range(4): gs += ['v_cvt_pk_bf16_f32 v%d, v%d, -v%d' % (96 + 8 * lam + q, 40 + q, 44 + q), 'v_cvt_pk_bf16_f32 v%d, v%d, v%d' % (100 + 8 * lam + q, 44 + q, 40 + q)]
gs += ['v_sub_f32 v11, 1.0, v25', 'v_mul_f32 v25, %s, v25' % fl(1.0 / (224 * 2048))]
gs2 = ['s_and_b32 s77, s2, 7', 's_lshl_b32 s77, s77, 13', 's_add_u32 s63, s77, %d' % FL3, 's_lshl_b32 s77, %s, 2' % sW,
       'v_add_u32 v9, s77, v4', 'v_min_u32 v9, 13, v9', 'v_cmp_lt_u32 vcc, 6, v9', 'v_subrev_u32 v12, 7, v9', 'v_cndmask_b32 v9, v9, v12, vcc', 'v_lshlrev_b32 v9, 10, v9',
       'v_cndmask_b32 v12, 0, 16, vcc', 'v_add_u32 v9, v9, v12', 'v_and_b32 v12, 3, v1', 'v_lshl_add_u32 v9, v12, 8, v9', 'v_bfe_u32 v12, v1, 2, 2', 'v_lshl_add_u32 v9, v12, 5, v9',
       's_and_b32 s77, %s, 1' % sW, 's_lshl_b32 s77, s77, 6', 'v_lshlrev_b32 v10, 4, v8', 'v_xor_b32 v10, s77, v10', 's_movk_i32 s77, 7168', 'v_mad_u32_u24 v10, v4, s77, v10',
       's_lshl_b32 s66, %s, 9' % sW, 's_add_u32 s66, s66, %d' % RB, 's_cmp_eq_u32 %s, 3' % sW, 's_cselect_b32 s67, 0x40000000, 256']
gs2[-1] = 's_movk_i32 s67, 256'; gs2.append('s_cselect_b32 s67, 0x40000000, s67')
for lam in (1, 0):
    gs2 += ['s_mul_i32 s77, s%d, 28672' % (52 + lam), 's_add_u32 s%d, s77, s66' % (52 + 2 * lam), 's_add_u32 s%d, s%d, s67' % (53 + 2 * lam, 52 + 2 * lam)]
for q in range(4): gs2.append('s_add_u32 s%d, s%d, 3584' % (68 + q, 52 + q))
p3 = ['buffer_load_dword v12, v9, %s, s63 offen %s' % (SWS, PSC), 'buffer_load_dword v13, v9, %s, s63 offen offset:128 %s' % (SWS, PSC)]
flag3 = None if (opt('nopoll', 0) >= 2 or opt('onlyfl2', 0)) else f.U(['s_mov_b64 exec, 15', ('%s v24, v17, %s, s62 offen %s' % (FST, SWS, FSC), 'flag'), 's_mov_b64 exec, -1'])
gs = gs + gihead + gi[n4:]
k1 = opt('gs1', 70)
assert (n4 - 127) % 85 == 0 or True
gi2 = []
f.run([LO if opt('lo2', 1) else None] + gs[:k1] + [f.S('preWR'), f.W('R'), f.S('WR'), flag3, LO] + gs[k1:] + gi2 + gs2 + ['s_sleep %d' % opt('rsleep', 0) if opt('rsleep', 0) else None, f.sread(SYM2), f.scheck(SYM2, opt('gate3', 3)), HI3, p3[0], (p3[1], 'p3'), f.S('prepollR'), f.W('p3'), f.S('p3back')] + [f.poll(p3, ['v12', 'v13'], sT1, 1)])
f.stamp('pollR')
def raw(q, j): return ag(16 * q + 4 * j, 4) if q < 3 else v(112 + 4 * j, 4)
def R_load(q): return ['buffer_load_dwordx4 %s, v10, %s, s%d offen offset:%d sc1' % (raw(q, j), SWS, (52 if j < 2 else 68) + q, 1792 * (j & 1)) for j in range(4)]
f.run(R_load(0) + R_load(1) + R_load(2) + R_load(3))
e('s_xor_b32 s77, %s, 1' % sHALF); e('s_mul_i32 s77, s77, 7'); e('s_add_u32 s77, s77, %s' % sNT)
e('s_lshl_b32 s78, %s, 4' % sMB); e('s_add_u32 s77, s77, s78'); e('s_lshl_b32 s77, s77, 2'); e('s_add_u32 s77, s77, %s' % sW)
e('s_lshl_b32 s61, s77, 12'); e('s_add_u32 s61, s61, %d' % PXB)
pass
D4 = ((12, 16), (20, 28))
def FR(P, h): return 128 + 8 * (P & 1) + 4 * h
def RD(P, h):
    q, cc = 2 * (P >> 2) + h, P & 3
    return [('v_accvgpr_read_b32 v%d, a%d' % (FR(P, h) + j, 16 * q + 4 * j + cc)) if q < 3 else ('v_mov_b32 v%d, v%d' % (FR(P, h) + j, 112 + 4 * j + cc)) for j in range(4)]
def S4(P): return ['v_mfma_f32_16x16x32_bf16 %s, %s, %s, 0' % (v(D4[h][part], 4), v(FR(P, h), 4), v(96 + 8 * (P >> 2) + 4 * part, 4)) for h in range(2) for part in range(2)]
def CV(P): return ['v_cvt_pk_bf16_f32 v%d, v%d, v%d' % (FR(P, h) + j, D4[h][0] + j, D4[h][1] + j) for h in range(2) for j in range(4)] + \
                  ['v_permlane16_swap_b32 v%d, v%d' % (FR(P, 0) + j, FR(P, 1) + j) for j in range(4)]
def FD(P, h):
    A = 32 + 16 * (2 * (1 - (P >> 2)) + h); cc = P & 3
    return ['v_mfma_f32_16x16x32_bf16 %s, %s, %s, %s' % (v(A + 4 * ct, 4), ag(48 + 16 * cc + 4 * ct, 4), v(FR(P, h), 4), '0' if cc == 0 else v(A + 4 * ct, 4)) for ct in range(4)]
def ship(rho):
    P = 32 + 16 * rho
    return ['s_xor_b32 s77, %s, %d' % (sW, rho), 's_mul_i32 s77, s77, 6144', 's_add_u32 s77, s77, %d' % (RED + 2048 * (rho - 1)), 'v_add_u32 v9, s77, v7'] + \
           ['v_cvt_pk_bf16_f32 v%d, v%d, v%d' % (P + k, P + 2 * k, P + 2 * k + 1) for k in range(8)] + ['ds_write_b128 v9, %s' % v(P, 4), 'ds_write_b128 v9, %s offset:1024' % v(P + 4, 4)]
pxl = ['buffer_load_dwordx4 %s, v7, %s, s61 offen offset:%d sc1' % (v(64 + 4 * k, 4), SWS, 1024 * k) for k in range(3)]
f.run(RD(0, 0) + RD(0, 1) + S4(0) + RD(1, 0) + RD(1, 1) + CV(0))
for P in range(8):
    extra = []
    if P == 5: extra = ship(2)
    if P == 6: extra = ship(3)
    if P == 7: extra = ['v_lshlrev_b32 v10, 3, v4', 's_lshl_b32 s77, %s, 7' % sNT] + ['buffer_load_dwordx2 %s, v10, %s, s77 offen offset:%d' % (v(88 + 2 * ct, 2), SB2, 32 * ct) for ct in range(4)]
    nx = P + 1 < 8; n2x = P + 2 < 8
    main = (S4(P + 1) if nx else []) + FD(P, 1) + FD(P, 0)
    o = 4 if nx else 0
    f.run(weave(main, (extra, 0, o + 2), (CV(P + 1) if nx else [], o + 2, o + 8), (RD(P + 2, 1) if n2x else [], o + 4, o + 8)) + (RD(P + 2, 0) if n2x else []))
f.run(ship(1))
f.stamp('F3')
f.run([f.signal(SYF, 11)])
f.run([f.sread(SYF), f.scheck(SYF, 11)])
e('s_mul_i32 s77, %s, 6144' % sW); e('s_add_u32 s77, s77, %d' % RED); e('v_add_u32 v9, s77, v7')
for k in range(6): e('ds_read_b128 %s, v9 offset:%d' % (v(96 + 4 * k, 4), 1024 * k))
for s in range(3):
    for k in range(8):
        e('v_lshlrev_b32 v%d, 16, v%d' % (128 + 2 * k, 96 + 8 * s + k)); e('v_and_b32 v%d, 0xffff0000, v%d' % (129 + 2 * k, 96 + 8 * s + k))
    for k in range(16): e('v_add_f32 v%d, v%d, v%d' % (32 + k, 32 + k, 128 + k))
for k in range(16): e('v_mul_f32 v%d, v25, v%d' % (32 + k, 32 + k))
for k in range(8):
    e('v_lshlrev_b32 v%d, 16, v%d' % (128 + 2 * k, 88 + k)); e('v_and_b32 v%d, 0xffff0000, v%d' % (129 + 2 * k, 88 + k))
for k in range(16): e('v_fmac_f32 v%d, v11, v%d' % (32 + k, 128 + k))
f.stamp('red')
for ct in range(4): e('ds_write_b128 v9, %s offset:%d' % (v(32 + 4 * ct, 4), 1024 * ct))
f.wait_lg()
f.barrier()
f.finish(1)

x = Role(); e = x.e
x.raw('L_aux:')
e('s_and_b32 s44, s2, 1')
e('s_bfe_u32 s45, s2, 0x20001')
e('s_bfe_u32 s46, s2, 0x20003'); e('s_lshl_b32 s46, s46, 3'); e('s_add_u32 s46, s46, s79')
e('v_lshrrev_b32 v2, 4, v1'); e('v_and_b32 v3, 15, v1'); e('v_min_u32 v3, 13, v3'); e('v_lshlrev_b32 v3, 7, v3')
e('s_movk_i32 s77, 3584'); e('v_mad_u32_u24 v2, v2, s77, v3')
e('v_lshlrev_b32 v4, 7, v1')
e('v_lshrrev_b32 v5, 4, v1'); e('v_bfe_u32 v6, v1, 2, 2'); e('v_lshl_add_u32 v5, v5, 4, v6'); e('v_mul_u32_u24 v5, 450, v5')
e('v_and_b32 v6, 3, v1'); e('v_lshlrev_b32 v6, 7, v6'); e('v_min_u32 v6, 224, v6'); e('v_add_u32 v5, v5, v6')
e('s_mul_i32 s47, s44, 1792'); e('s_mul_i32 s77, s46, %d' % (4 * 3584)); e('s_add_u32 s47, s47, s77')
e('s_mul_i32 s72, s44, 802816'); e('s_lshl_b32 s77, s46, 13'); e('s_add_u32 s72, s72, s77')
e('s_lshl_b32 s73, s46, 6'); e('s_lshl_b32 s77, s45, 2'); e('s_add_u32 s73, s73, s77'); e('s_mul_i32 s73, s73, 450'); e('s_mul_i32 s77, s44, 224'); e('s_add_u32 s73, s73, s77')
x.raw('    s_waitcnt lgkmcnt(0)')
x.srd(8, 56, 1605632); x.srd(12, 60, 1605632); x.srd(20, 50, 921600); x.srd(24, 52, 921600)
e('v_mov_b32 v8, v2'); e('v_mov_b32 v9, v4'); e('s_mov_b32 s40, s47'); e('s_mov_b32 s41, s72'); e('s_mov_b32 s42, s73')
if opt('upf', 0):
    e('s_and_b32 s77, s2, 7'); e('s_lshl_b32 s78, s46, 3'); e('s_add_u32 s77, s77, s78'); e('s_lshl_b32 s77, s77, 13')
    e('buffer_load_ubyte v10, v9, %s, s77 offen' % SW1); e('buffer_load_ubyte v11, v9, %s, s77 offen' % SW2)
    e('s_xor_b32 s78, s77, 0x100000')
    e('buffer_load_ubyte v12, v9, %s, s77 offen' % SWR); e('buffer_load_ubyte v13, v9, %s, s78 offen' % SWI)
x.srd(4, 48, 1835008); x.srd(32, 64, 896); x.srd(16, 70, WS_SIZE)
e('buffer_load_dword v24, off, %s, 0 sc1' % SWS)
e('s_lshr_b32 s47, s46, 3'); e('s_lshl_b32 s77, s45, 2'); e('s_add_u32 s47, s47, s77'); e('s_lshl_b32 s47, s47, 1'); e('s_add_u32 s47, s47, s44')
e('s_and_b32 s77, s79, 1'); e('s_lshl_b32 s77, s77, 10'); e('s_bfe_u32 s78, s79, 0x10001'); e('s_lshl_b32 s78, s78, 6'); e('s_add_u32 s77, s77, s78')
e('s_lshr_b32 s78, s79, 2'); e('s_add_u32 s77, s77, s78'); e('s_lshl_b32 s78, s47, 1'); e('s_add_u32 s77, s77, s78'); e('s_mul_i32 s72, s77, 896')
e('v_lshrrev_b32 v2, 3, v1'); e('v_and_b32 v3, 7, v1'); e('v_lshlrev_b32 v3, 4, v3'); e('s_mov_b32 s77, %d' % (128 * 896)); e('v_mad_u32_u24 v4, v2, s77, v3')
for k in range(7):
    e('buffer_load_dwordx4 %s, v4, %s, s72 offen offset:%d' % (v(32 + 4 * k, 4), SX, 128 * k)); e('buffer_load_dwordx4 %s, v3, %s, 0 offen offset:%d' % (v(64 + 4 * k, 4), SGW, 128 * k))
e('s_and_b32 s77, s2, 3'); e('s_lshl_b32 s36, s77, 5'); e('s_add_u32 s36, s36, s46')
e('s_lshr_b32 s77, s36, 3'); e('s_bfe_u32 s78, s36, 0x20001'); e('s_lshl_b32 s78, s78, 4'); e('s_add_u32 s77, s77, s78'); e('s_and_b32 s78, s36, 1'); e('s_lshl_b32 s78, s78, 10'); e('s_add_u32 s77, s77, s78')
e('v_lshrrev_b32 v26, 2, v1'); e('v_lshl_add_u32 v27, v26, 6, s77'); e('v_sub_u32 v28, 2048, v27'); e('v_and_b32 v28, 2047, v28'); e('v_and_b32 v29, 1, v1'); e('v_cmp_eq_u32 vcc, 1, v29')
e('v_bfe_u32 v29, v1, 1, 1'); e('v_mul_u32_u24 v29, 448, v29'); e('v_cndmask_b32 v27, v27, v28, vcc'); e('s_movk_i32 s77, 450'); e('v_mad_u32_u24 v27, v27, s77, v29')
e('s_bitcmp1_b32 s2, 2'); e('s_cselect_b32 s37, 0x40000000, 0')
e('buffer_load_ushort v22, v27, %s, s37 offen' % SWR); e('buffer_load_ushort v23, v27, %s, s37 offen' % SWI)
pfl = []
for k in range(4 if opt('pfw1', 1) else 0): pfl.append(['buffer_load_ubyte v%d, v8, %s, s40 offen' % (10 + k, SW1), 's_add_u32 s40, s40, %d' % (128 * 3584)])
for k in range(3): pfl.append(['buffer_load_ubyte v%d, v9, %s, s41 offen' % (14 + k, SW2), 's_add_u32 s41, s41, %d' % (32 * 8192)])
pfl.append(['buffer_load_ubyte v18, v5, %s, s42 offen' % SWR, 'buffer_load_ubyte v19, v5, %s, s42 offen' % SWI])
pfl.append(['s_cmp_ge_u32 s46, 2', 's_cselect_b32 s41, 0x40000000, s41', 'buffer_load_ubyte v17, v9, %s, s41 offen' % SW2])
if opt('pft', 0):
    e('s_and_b32 s77, s2, 7'); e('s_lshl_b32 s78, s46, 3'); e('s_add_u32 s77, s77, s78'); e('s_lshl_b32 s77, s77, 13')
    e('s_add_u32 s78, s77, %d' % (FL2 - 0x20000)); e('s_cmp_ge_u32 s77, 0x20000'); e('s_cselect_b32 s77, s78, s77')
    e('s_cmp_ge_u32 s77, %d' % (TB if opt('pft', 2) > 1 else 0x20000)); e('s_cselect_b32 s77, 0x40000000, s77')
    e('buffer_load_ubyte v25, v9, %s, s77 offen' % SWS)
PFE = opt('pfe', 0)
for y in pfl[:PFE]: x.run(y)
e('v_mov_b32 v20, 0'); e('v_mov_b32 v21, 0')
x.stamp('iss')
x.tags()
x.stamp('E')
e('v_lshlrev_b32 v22, 16, v22'); e('v_lshlrev_b32 v23, 16, v23')
e('v_add_f32_dpp v28, v22, v22 quad_perm:[1,0,3,2] %s' % DP); e('v_subrev_f32_dpp v29, v23, v23 quad_perm:[1,0,3,2] %s' % DP)
e('v_cvt_pk_bf16_f32 v28, v28, v29'); e('v_mov_b32 v30, v24'); e('v_mov_b32 v31, v24'); e('v_mov_b32_dpp v29, v28 quad_perm:[2,2,2,2] %s' % DP)
e('v_lshlrev_b32 v26, 4, v26'); e('s_lshl_b32 s77, s36, 8'); e('s_add_u32 s77, s77, %d' % SPB); e('s_add_u32 s77, s77, s37')
e('s_mov_b32 exec_lo, 0x11111111'); e('s_mov_b32 exec_hi, 0x11111111')
e('buffer_store_dwordx4 v[28:31], v26, %s, s77 offen sc1' % SWS)
e('s_mov_b64 exec, -1')
x.stamp('sp')
for k in range(28): e('v_dot2c_f32_bf16 v%d, v%d, v%d' % (20 + (k & 1), 32 + k, 64 + k))
e('v_add_f32 v20, v20, v21')
e('v_add_f32_dpp v20, v20, v20 quad_perm:[1,0,3,2] %s' % DP); e('v_add_f32_dpp v20, v20, v20 quad_perm:[2,3,0,1] %s' % DP); e('v_add_f32_dpp v20, v20, v20 row_half_mirror %s' % DP)
e('v_mul_f32 v20, %s, v20' % fl(-1.4426950408889634)); e('v_exp_f32 v20, v20'); e('v_add_f32 v20, 1.0, v20'); e('v_rcp_f32 v20, v20'); e('v_mov_b32 v21, v24')
e('s_lshl_b32 s77, s47, 9'); e('s_lshl_b32 s78, s79, 6'); e('s_add_u32 s77, s77, s78'); e('s_add_u32 s77, s77, %d' % GB); e('v_lshlrev_b32 v2, 3, v2')
e('s_mov_b32 exec_lo, 0x01010101'); e('s_mov_b32 exec_hi, 0x01010101')
e('buffer_store_dwordx2 v[20:21], v2, %s, s77 offen sc1' % SWS)
e('s_mov_b64 exec, -1')
x.stamp('g')
if DIAG: x.wait_vm_all(); x.stamp('ack')
x.barrier()
if opt('pf', 0):
    for y in pfl[PFE:]: x.run(y)
if DIAG: e('s_mov_b32 %s, s79' % sW); x.finish(0)

hdr = open('cdna_kernels/%s.s.ref' % NAME).read().split('; Override')[0]
txt = hdr + '; @launch grid=(%d,1,1) block=(512,1,1) lds=%d\n' % (NWG, LDS_SIZE)
txt += '.amdgcn_target "amdgcn-amd-amdhsa--gfx950"\n.text\n.globl %s_kernel\n.p2align 8\n.type %s_kernel,@function\n' % (NAME, NAME)
txt += c.text() + m.text() + f.text() + x.text() + 'L_end:\n    s_endpgm\n'
txt += '''.section .rodata,"a"
.p2align 6
.amdhsa_kernel %s_kernel
  .amdhsa_next_free_vgpr 256
  .amdhsa_next_free_sgpr 102
  .amdhsa_accum_offset 144
  .amdhsa_group_segment_fixed_size 0
  .amdhsa_kernarg_size 96
  .amdhsa_user_sgpr_count 2
  .amdhsa_user_sgpr_kernarg_segment_ptr 1
  .amdhsa_system_sgpr_workgroup_id_x 1
.end_amdhsa_kernel
''' % NAME
out = [x for x in sys.argv[1:] if not x.startswith('--')]
open(out[0] if out else 'cdna_kernels/%s.s' % NAME, 'w').write(txt)
if DIAG: open('names.txt', 'w').write(repr([m.names, f.names, x.names]))
print('instrs mlp', sum(m.count.values()), 'fft', sum(f.count.values()), 'nops', m.nnop, f.nnop, file=sys.stderr)
```

```python
import sys
from asmlib import *

NAME = 'gated_mix__spectral_gfnet__dense_activation_gelu__prompt'
DIAG = '--diag' in sys.argv
def opt(name, default):
    for x in sys.argv:
        if x.startswith('--%s=' % name): return int(x.split('=')[1])
    return default
FL1, FL3, FL2 = 0x1000, 0x10000, 0x80000
GB = 0x8000
SPB = 0x40000
TVB = 0x50000

TB = 0x100000
RB = TB + 1835008
HB = RB + 1835008
PXB = HB + 7340032
DIAGB = PXB + 16 * 16 * 16384
WS_SIZE = DIAGB + (256 * 2048 if DIAG else 0)
W1H1 = 57344
CB = 122880
RED = 90112
YX = 114688
TT = 151552
TV = 159744
GW = 160256
B1L = 161280
GL = 161792
SYM = 162304; SYF = 162320; SYM2 = 162336; SYX = 162352
LDS_SIZE = 163840
SX, SW1, SW2, SWS, SWR, SWI, SOUT, SGW, SB1, SB2 = ['s[%d:%d]' % (i, i + 3) for i in range(4, 44, 4)]
sMB, sNB, sHALF, sNT, sW, sT1, sT2, sEN, sSQ = 's44', 's45', 's46', 's47', 's72', 's73', 's74', 's75', 's76'
sROT = 's3'
SPIN = 300000
FST = 'buffer_atomic_swap' if opt('atf', 0) else 'buffer_store_dword'
FSC = ['sc1', 'sc0 sc1', 'sc1 nt'][opt('fsc', 0)]
PSC = ['sc1', 'sc0 sc1', 'sc1 nt', 'nt', 'sc0 sc1 nt'][opt('psc', 0)]
NWG = 256 if opt('aux', 1) else 224
DP = 'row_mask:0xf bank_mask:0xf'
def v(i, n=1): return 'v%d' % i if n == 1 else 'v[%d:%d]' % (i, i + n - 1)
def ag(i, n=1): return 'a%d' % i if n == 1 else 'a[%d:%d]' % (i, i + n - 1)
lab = [0]

class Role(Asm):
    def __init__(self):
        super().__init__(); self.ns = 1; self.names = ['start']
    def stamp(self, name=''):
        if not DIAG: return
        if opt('dbg', 0) and name not in ('xiss', 'Xend', 'G1a', 'G1b', 'gelu3', 'hiss', 'G2end', 'end', 'F1end', 'pollT', 'Rst', 'pollR', 'red'): return
        assert self.ns < 60
        self.raw('    s_memtime s[98:99]\n    s_waitcnt lgkmcnt(0)\n    v_writelane_b32 v0, s98, %d' % self.ns); self.pos += 3
        self.names.append(name); self.ns += 1
    def S(self, name=''): return lambda: self.stamp(name)
    def W(self, tag): return lambda: self.wait_vm(tag)
    def L(self, tag=None): return lambda: self.wait_lg(tag)
    def U(self, items): return lambda: self.run(items)
    def flag(self, vtag, soff):
        if opt('nopoll', 0) >= 2: return None
        if opt('onlyfl2', 0) and soff != 's61': return None
        if opt('fullfl', 0) and soff == 's61':
            return self.U(['s_mov_b64 exec, 0x%x' % ((1 << opt('fullfl', 0)) - 1), ('buffer_store_dword %s, v5, %s, %s offen sc1' % (vtag, SWS, soff), 'flag'), 's_mov_b64 exec, -1'])
        return self.U(['s_mov_b64 exec, 1', ('%s %s, off, %s, %s %s' % (FST, vtag, SWS, soff, FSC), 'flag'), 's_mov_b64 exec, -1'])
    def spin(self, loads, waitc, tests, sleep):
        n = lab[0]; lab[0] += 1
        def f():
            for t in tests: self.e(t)
            self.nop(1)
            self.e('s_cmp_eq_u64 vcc, 0'); self.e('s_cbranch_scc1 L_pd%d' % n)
            t = ['    s_mov_b32 s96, %d' % SPIN, 'L_pl%d:' % n] + (['    s_sleep %d' % sleep] if sleep else [])
            t += ['    ' + l for l in loads] + ['    s_waitcnt ' + waitc] + ['    ' + x for x in tests]
            t += ['    s_sub_u32 s96, s96, 1', '    s_cmp_eq_u32 s96, 0', '    s_cbranch_scc1 L_pd%d' % n,
                  '    s_cmp_eq_u64 vcc, 0', '    s_cbranch_scc0 L_pl%d' % n, 'L_pd%d:' % n]
            self.raw('\n'.join(t))
        return f
    def poll(self, loads, regs, stag, lim):
        if opt('nopoll', 0): return None
        tests = ['v_subrev_u32 %s, %s, %s' % (r, stag, r) for r in regs] + ['v_max_u32 %s, %s, %s' % (regs[0], regs[0], r) for r in regs[1:]]
        tests += ['v_cmp_le_u32 vcc, %d, %s' % (lim, regs[0])]
        return self.spin(loads, 'vmcnt(0)', tests, opt('gsleep', 10))
    def signal(self, base, k):
        return self.U(['v_mov_b32 v28, %d' % k, 'ds_write_b32 v26, v28 offset:%d' % (base - SYM)])
    def sread(self, base): return 'ds_read_b128 v[28:31], v27 offset:%d' % (base - SYM)
    def scheck(self, base, k):
        tests = ['v_min_u32 v28, v28, v29', 'v_min3_u32 v28, v28, v30, v31', 'v_cmp_gt_u32 vcc, %d, v28' % k]
        return self.spin([self.sread(base)], 'lgkmcnt(0)', tests, opt('lsleep', 1))
    def sread1(self, base): return 'ds_read_b32 v28, v26 offset:%d' % (base - SYM)
    def scheck1(self, base, k):
        return self.spin([self.sread1(base)], 'lgkmcnt(0)', ['v_cmp_gt_u32 vcc, %d, v28' % k], opt('lsleep', 1))
    def chtab(self, regs, shift):
        e = self.e
        e('s_mov_b32 s77, %s' % sROT)
        for p in range(7):
            e('s_lshl_b32 %s, s77, %d' % (regs[p], shift))
            if p < 6: e('s_add_u32 s77, s77, 1'); e('s_cmp_eq_u32 s77, 7'); e('s_cselect_b32 s77, 0, s77')
    def srd(self, d, lo, n):
        e = self.e
        e('s_mov_b32 s%d, s%d' % (d, lo)); e('s_mov_b32 s%d, s%d' % (d + 1, lo + 1))
        e('s_mov_b32 s%d, %d' % (d + 2, n)); e('s_mov_b32 s%d, 0x20000' % (d + 3))
    def tags(self):
        e = self.e
        e('v_readfirstlane_b32 s77, v24')
        e('s_add_u32 %s, s77, 1' % sEN); e('s_mul_i32 s77, s77, 0x9E3779B1')
        e('s_add_u32 %s, s77, 0x7F4A7C15' % sT1); e('s_add_u32 %s, %s, 1' % (sT2, sT1))
        e('v_mov_b32 v24, %s' % sT1)
    def xread_addrs(self, b):
        e = self.e
        e('v_bfe_u32 v%d, v1, 1, 3' % b); e('v_xor_b32 v%d, v%d, v5' % (b, b)); e('v_lshlrev_b32 v%d, 4, v%d' % (b, b))
        e('v_lshl_add_u32 v%d, v6, 7, v%d' % (b, b)); e('v_add_u32 v%d, s50, v%d' % (b, b))
        for tt in range(1, 4): e('v_xor_b32 v%d, %d, v%d' % (b + tt, 32 * tt, b))
    def ifnb0(self, label):
        self.e('s_cmp_lg_u32 %s, 0' % sNB); self.e('s_cbranch_scc1 %s' % label); self.cond_begin()
    def endc(self, label):
        self.cond_end(); self.raw(label + ':')
    def finish(self, role):
        if DIAG:
            e = self.e
            self.raw('    s_waitcnt vmcnt(0)')
            self.stamp('end')
            self.raw('    s_memrealtime s[98:99]\n    s_waitcnt lgkmcnt(0)\n    v_writelane_b32 v0, s98, 63\n    v_writelane_b32 v0, s94, 62\n    v_writelane_b32 v0, s80, 0')
            e('s_lshl_b32 s77, s2, 3'); e('s_add_u32 s77, s77, %s' % sW); e('s_lshl_b32 s77, s77, 8'); e('s_add_u32 s77, s77, %d' % (DIAGB + 1024 * role))
            e('v_lshlrev_b32 v2, 2, v1')
            e('buffer_store_dword v0, v2, %s, s77 offen' % SWS)
            if opt('dbg', 0) and self is not globals().get('x'):
                self.raw('    s_load_dwordx2 s[4:5], s[0:1], 80\n    s_waitcnt lgkmcnt(0)\n    s_mov_b32 s6, 256\n    s_mov_b32 s7, 0x20000')
                e('v_subrev_u32 v3, s80, v0'); e('v_mov_b32 v4, s98'); e('s_not_b32 s94, s94'); e('v_mov_b32 v5, s94')
                e('s_mov_b64 exec, 0x%x' % (0x1fe if role == 0 else 0x3e))
                e('buffer_atomic_umax v3, v2, s[4:7], 0 offen offset:%d sc1' % (0 if role == 0 else 32))
                e('s_mov_b64 exec, 1')
                e('buffer_atomic_umax v4, off, s[4:7], 0 offset:56 sc1'); e('buffer_atomic_umax v5, off, s[4:7], 0 offset:60 sc1')
        self.raw('    s_endpgm')

c = Role(); e = c.e
c.raw('%s_kernel:' % NAME)
e('s_cmp_ge_u32 s2, %d' % NWG)
e('s_cbranch_scc1 L_end')
if DIAG: c.raw('    s_memrealtime s[98:99]\n    s_waitcnt lgkmcnt(0)\n    s_mov_b32 s94, s98\n    s_memtime s[98:99]\n    s_waitcnt lgkmcnt(0)\n    s_mov_b32 s80, s98')
c.raw('    s_load_dwordx16 s[48:63], s[0:1], 0\n    s_load_dwordx8 s[64:71], s[0:1], 64')
e('v_lshrrev_b32 v2, 6, v0')
e('v_and_b32 v1, 63, v0')
e('v_readfirstlane_b32 s79, v2')
e('s_cmp_ge_u32 s2, 224')
e('s_cbranch_scc1 L_aux')
e('s_getpc_b64 s[96:97]')
c.raw('L_pc:')
if opt('cpf', 1):
    e('s_lshr_b32 s78, s2, 3'); e('s_mul_i32 s78, s78, 12'); e('v_min_u32 v2, 11, v0'); e('v_add_u32 v2, s78, v2'); e('v_lshlrev_b32 v2, 7, v2')
else:
    e('v_lshlrev_b32 v2, 7, v0')
e('v_min_u32 v2, L_end-L_pc, v2')
e('v_mov_b32 v3, s97')
e('v_add_co_u32 v2, vcc, s96, v2')
e('v_addc_co_u32 v3, vcc, 0, v3, vcc')
c.raw('    global_load_dword v143, v[2:3], off')
e('s_and_b32 s77, s2, 7'); e('s_lshr_b32 s78, s2, 3')
e('s_and_b32 %s, s77, 1' % sHALF); e('s_lshr_b32 s77, s77, 1'); e('s_lshl_b32 s77, s77, 2')
e('s_and_b32 %s, s78, 3' % sMB); e('s_add_u32 %s, %s, s77' % (sMB, sMB))
e('s_lshr_b32 %s, s78, 2' % sNT); e('s_mul_i32 %s, %s, 7' % (sNB, sHALF)); e('s_add_u32 %s, %s, %s' % (sNB, sNB, sNT))
e('s_and_b32 %s, s79, 3' % sW)
e('s_and_b32 s77, s78, 3'); e('s_lshl_b32 s77, s77, 1'); e('s_add_u32 s77, s77, %s' % sNT); e('s_sub_u32 s78, s77, 7'); e('s_cmp_ge_u32 s77, 7'); e('s_cselect_b32 %s, s78, s77' % sROT)
if not opt('rot', 1): e('s_mov_b32 %s, 0' % sROT)
e('s_lshl_b32 %s, %s, 2' % (sSQ, sMB)); e('s_add_u32 %s, %s, %s' % (sSQ, sSQ, sW))
e('v_lshrrev_b32 v2, 3, v1'); e('v_and_b32 v3, 7, v1'); e('v_lshrrev_b32 v4, 4, v1'); e('v_lshrrev_b32 v5, 5, v1')
e('v_and_b32 v6, 31, v1'); e('v_lshlrev_b32 v7, 4, v1'); e('v_and_b32 v8, 15, v1')
e('v_mov_b32 v27, %d' % SYM); e('s_lshl_b32 s78, %s, 2' % sW); e('v_add_u32 v26, s78, v27')
e('s_cmp_lt_u32 s79, 4') if opt('fftfirst', 1) else e('s_cmp_ge_u32 s79, 4')
e('s_cbranch_scc1 L_fft')

F1ADDR = ['s_lshl_b32 s77, %s, 12' % sW, 's_cmp_ge_u32 %s, 2' % sW, 's_mov_b32 s78, %d' % TT, 's_cselect_b32 s78, %d, s78' % (YX - 8192), 's_add_u32 s77, s77, s78', 'v_add_u32 v35, s77, v7']
m = Role(); e = m.e
e('s_setprio %d' % opt('mprio', 1))
e('v_xor_b32 v17, v3, v4'); e('v_lshlrev_b32 v17, 4, v17'); e('s_mov_b32 s77, %d' % (128 * 896)); e('v_mad_u32_u24 v9, v2, s77, v17')
e('v_xor_b32 v10, 64, v9'); e('v_add_u32 v10, %d, v10' % (1024 * 896 - 1024))
e('v_add_u32 v11, %d, v9' % (64 * 896 - 2048)); e('v_add_u32 v12, %d, v10' % (64 * 896 - 2048))
XCH = ['s%d' % (20 + p) for p in range(7)]
e('s_mul_i32 s100, %s, 896' % sSQ)
for u in range(4): e('v_add_u32 v%d, s100, v%d' % (9 + u, 9 + u))
m.chtab(XCH, 7)
e('s_lshl_b32 s101, %s, 12' % sW)
X0R = opt('x0r', 0)
X0OFF = lambda d: ['s_cmp_ge_u32 %s, 2' % sW, 's_mov_b32 %s, %d' % (d, YX), 's_cselect_b32 %s, %d, %s' % (d, TT - 8192, d)]
m.run(X0OFF('s39') + ['s_add_u32 s27, s39, s101', 's_mov_b32 s71x, s39'][:1])
e('s_mov_b32 s97, s39')
m.raw('    s_waitcnt lgkmcnt(0)')
m.srd(32, 48, 1835008)
def dma_x(p):
    return [('s_mov_b32 m0, s27' if (p == 0 and X0R) else 's_add_u32 m0, s101, %d' % (p * 16384))] + [('buffer_load_dwordx4 v%d, s[32:35], %s offen offset:%d lds' % (9 + u, XCH[p], 1024 * u), 'x%d' % p) for u in range(4)]
m.srd(8, 56, 1605632)
e('s_lshl_b32 s43, s2, 2'); e('s_add_u32 s43, s43, %s' % sW); e('s_mul_i32 s49, s43, 1152'); e('s_mul_i32 s43, s43, 1792'); e('v_lshlrev_b32 v23, 7, v1')
def upf(srd, soff, n, dst): return m.U(['s_mov_b64 exec, 0x%x' % ((1 << n) - 1), 'buffer_load_ubyte v%d, v23, %s, %s offen' % (dst, srd, soff), 's_mov_b64 exec, -1'])
W1AT = opt('w1at', 0)
for p in range(4):
    m.run(dma_x(p))
    if p == W1AT: m.run([upf(SW1, 's43', 14, 140)])
    if p == opt('barp', 3): m.barrier()
for p in range(4, 7):
    m.run(dma_x(p))
    if p == W1AT: m.run([upf(SW1, 's43', 14, 140)])
m.stamp('xiss')
m.run([m.W('x3'), m.signal(SYX, 1)])
m.srd(16, 70, WS_SIZE); m.srd(36, 58, 3584)
m.srd(12, 60, 1605632); m.srd(28, 66, 1835008); m.srd(4, 50, 921600); m.srd(32, 52, 921600)
pf2 = [upf(SW2, 's43', 14, 141), upf('s[4:7]', 's49', 9, 142), upf('s[32:35]', 's49', 9, 139)]
if opt('pf2at', 0) == 0: m.run(pf2)
e('s_lshl_b32 s50, %s, 12' % sW); e('s_lshl_b32 s51, %s, 11' % sW)
e('v_and_b32 v17, 1, v4'); e('v_lshlrev_b32 v17, 2, v17'); e('v_xor_b32 v17, v3, v17'); e('v_lshlrev_b32 v17, 4, v17')
e('s_movk_i32 s77, 3584'); e('v_mad_u32_u24 v13, v2, s77, v17'); e('s_lshl_b32 s78, %s, 8' % sNB); e('v_add_u32 v13, s78, v13')
for u in range(1, 4): e('v_add_u32 v%d, %d, v13' % (13 + u, u * 27648))
m.xread_addrs(17)
def dma_w1(p):
    r = ['s_add_u32 s77, %s, %d' % (sW, 4 * p), 's_sub_u32 s78, s77, 14', 's_cmp_ge_u32 s77, 14', 's_cselect_b32 s77, s78, s77', 's_cselect_b32 s79, 128, 0',
         's_lshl_b32 s78, %s, 1' % sROT, 's_add_u32 s77, s77, s78', 's_sub_u32 s78, s77, 14', 's_cmp_ge_u32 s77, 14', 's_cselect_b32 s77, s78, s77',
         's_mul_i32 s77, s77, %d' % (32 * 3584), 's_add_u32 s60, s77, s79', 's_add_u32 m0, s50, %d' % (p * 16384)]
    return r, [('buffer_load_dwordx4 v%d, %s, s60 offen offset:%d lds' % (13 + u, SW1, 1024 * u), 'w1_%d' % p) for u in range(4)]
CH = ['s4', 's5', 's6', 's7', 's40', 's41', 's42']
CW = XCH
setup0 = ['s_lshl_b32 %s, %s, 6' % (CH[k], XCH[k]) for k in range(7)] + ['s_mul_i32 %s, %s, 896' % (CW[k], XCH[k]) for k in range(7)]
setup = []
setup += ['v_bfe_u32 v21, v1, 2, 2', 'v_lshl_add_u32 v21, v5, 3, v21', 'v_lshlrev_b32 v21, 7, v21', 'v_bfe_u32 v22, v1, 3, 1', 'v_lshl_add_u32 v21, v22, 6, v21',
          'v_bfe_u32 v22, v1, 4, 1', 'v_lshl_add_u32 v21, v22, 5, v21', 'v_and_b32 v22, 3, v1', 'v_lshl_add_u32 v21, v22, 3, v21', 'v_xor_b32 v22, 64, v21',
          'v_lshlrev_b32 v128, 16, v25', 'v_and_b32 v129, 0xffff0000, v25', 'v_lshlrev_b32 v130, 3, v1', 'v_add_u32 v130, %d, v130' % B1L, 'ds_write_b64 v130, v[128:129]',
          'v_lshlrev_b32 v130, 4, v5', 'v_add_u32 v130, %d, v130' % B1L]
for j in range(4):
    for q in range(4): setup.append('ds_read_b128 %s, v130 offset:%d' % (v(32 + 16 * j + 4 * q, 4), (32 * j + 8 * q) * 4))
setup.append(m.tags)
setup2 = setup0 + ['s_mul_i32 s53, %s, 896' % sHALF, 's_lshl_b32 s78, %s, 4' % sW, 's_add_u32 s53, s53, s78', 's_mul_i32 s53, s53, 896', 's_lshl_b32 s78, %s, 7' % sNT, 's_add_u32 s53, s53, s78',
          'v_lshlrev_b32 v9, 1, v4', 'v_xor_b32 v9, v3, v9', 'v_lshl_add_u32 v9, v9, 4, s53', 's_movk_i32 s78, 896', 'v_mad_u32_u24 v9, v2, s78, v9', 'v_add_u32 v10, 6144, v9',
          'v_add_u32 v11, %d, v9' % (64 * 896), 'v_add_u32 v12, %d, v10' % (64 * 896),
          'v_mov_b32 v23, %s' % fl(-0.1029432397),
          's_mul_i32 s58, %s, 56' % sSQ, 's_lshl_b32 s78, %s, 2' % sNB, 's_add_u32 s58, s58, s78', 's_lshl_b32 s58, s58, 11', 's_add_u32 s58, s58, %d' % HB, 's_add_u32 s59, s58, 4096',
          's_lshl_b32 s61, %s, 4' % sSQ, 's_add_u32 s61, s61, %s' % sNB, 's_lshl_b32 s61, s61, 7', 's_add_u32 s61, s61, %d' % FL2,
          's_lshl_b32 s62, %s, 4' % sMB, 's_add_u32 s62, s62, %s' % sNB, 's_lshl_b32 s62, s62, 2', 's_add_u32 s62, s62, %s' % sW,
          's_lshl_b32 s63, s62, 12', 's_add_u32 s63, s63, %d' % PXB,
          's_lshr_b32 s78, %s, 1' % sW, 's_lshl_b32 s79, %s, 2' % sMB, 's_add_u32 s78, s78, s79', 's_lshl_b32 s79, %s, 1' % sHALF, 's_add_u32 s55, s78, s79', 's_xor_b32 s54, s55, 2',
          's_lshl_b32 s65, s78, 4', 's_mul_i32 s79, %s, 7' % sHALF, 's_add_u32 s65, s65, s79', 's_lshl_b32 s65, s65, 7', 's_add_u32 s65, s65, %d' % FL2,
          's_mov_b32 s64, s55', 's_mul_i32 s79, %s, 28' % sHALF, 's_and_b32 s78, %s, 1' % sW, 's_lshl_b32 s78, s78, 8', 's_add_u32 s78, s78, %d' % HB]
for r in (54, 55): setup2 += ['s_mul_i32 s%d, s%d, 56' % (r, r), 's_add_u32 s%d, s%d, s79' % (r, r), 's_lshl_b32 s%d, s%d, 11' % (r, r), 's_add_u32 s%d, s%d, s78' % (r, r)]
setup3 = ['v_lshlrev_b32 v13, 4, v8', 'v_lshl_add_u32 v13, v4, 9, v13', 'v_add_u32 v15, s55, v13', 'v_add_u32 v13, s54, v13', 'v_add_u32 v14, 4096, v13', 'v_add_u32 v16, 4096, v15',
          'v_bfe_u32 v17, v1, 2, 2', 'v_lshl_add_u32 v17, v5, 4, v17', 'v_bfe_u32 v18, v1, 4, 1', 'v_lshl_add_u32 v17, v18, 2, v17', 'v_lshlrev_b32 v17, 7, v17',
          'v_bfe_u32 v18, v1, 3, 2', 'v_lshl_add_u32 v17, v18, 5, v17', 'v_and_b32 v18, 3, v1', 'v_lshl_add_u32 v17, v18, 3, v17', 'v_add_u32 v17, %d, v17' % CB]
setup3 += ['v_xor_b32 v%d, %d, v17' % (17 + ct, 32 * ct) for ct in range(1, 4)]
setup3 += ['v_lshlrev_b32 v5, 7, v1', 'v_min_u32 v25, 6, v3', 'v_and_b32 v6, 1, v2', 'v_lshl_add_u32 v25, v6, 5, v25', 'v_lshlrev_b32 v25, 7, v25']
for k in range(1, 4): setup3.append('s_add_u32 s%d, s65, %d' % (67 + k, 0x20000 * k))
e('v_lshlrev_b32 v12, 2, v1'); e('s_lshl_b32 s78, %s, 8' % sNB)
e('buffer_load_dword v24, off, %s, 0 sc1' % SWS); e('buffer_load_dword v25, v12, %s, s78 offen' % SB1)
def xrd(p): return [('ds_read_b128 %s, v%d offset:%d' % (ag(16 * p + 4 * tt, 4), 17 + tt, (p % 4) * 16384), 'xr%d' % p) for tt in range(4)]
def xrd0(role, dst, ar, sreg, tmp):
    r = []
    for tt in range(4): r += ['v_add_u32 v%d, %s, v%d' % (tmp + tt, sreg, ar + tt), ('ds_read_b128 %s, v%d' % (dst(tt), tmp + tt), 'xr0')]
    return r
if X0R:
    pre, L = dma_w1(0); m.run(pre + L)
m.run((xrd0(m, lambda tt: ag(4 * tt, 4), 17, 's97', 128) if X0R else xrd(0)) + xrd(1) + xrd(2) + xrd(3) + [m.W('x6'), m.signal(SYX, 2), m.sread1(SYF)])
for tt in range(4): e('v_add_u32 v%d, 65536, v%d' % (17 + tt, 17 + tt))
m.stamp('X6')
NR0 = opt('nr0', 2)
w1rest = []
for rr in range(7):
    pre, L = dma_w1(rr)
    if rr == 0 and X0R: continue
    if rr < NR0:
        m.run(pre)
        if rr == X0R: m.run([m.scheck1(SYF, 4)] + xrd(4) + xrd(5) + xrd(6))
        m.run([m.L('xr%d' % rr)] + L)
    else:
        if rr == 4: pre = [m.sread1(SYF)] + pre + [m.scheck1(SYF, 7)]
        w1rest.append([m.U(pre + [L[0]])] + L[1:])
if opt('pf2at', 0) == 1: m.run(pf2)
m.run(setup)
m.stamp('Xend')
K0 = fl(-2.302208198)
PK = opt('pk', 1)
def gelu(j, tb, pk=0):
    r = []; A = 32 + 16 * j
    for h in range(2):
        for q in range(2):
            X = [A + 8 * h + 4 * q + i for i in range(4)]; T = [tb + 4 * q + i for i in range(4)]
            if pk:
                P = [(v(T[0], 2), v(X[0], 2)), (v(T[2], 2), v(X[2], 2))]
                r += ['v_pk_mul_f32 %s, %s, %s' % (t, x, x) for t, x in P]
                r += ['v_pk_fma_f32 %s, %s, s[66:67], s[66:67] op_sel:[0,0,1] op_sel_hi:[1,0,1]' % (t, t) for t, x in P]
                r += ['v_pk_mul_f32 %s, %s, %s' % (t, t, x) for t, x in P]
                r += ['v_exp_f32 v%d, v%d' % (t, t) for t in T]
                r += ['v_pk_add_f32 %s, %s, 1.0 op_sel_hi:[1,0]' % (t, t) for t, x in P]
                r += ['v_rcp_f32 v%d, v%d' % (t, t) for t in T]
                r += ['v_pk_mul_f32 %s, %s, %s' % (x, t, x) for t, x in P]
            else:
                r += ['v_mul_f32 v%d, v%d, v%d' % (t, x, x) for t, x in zip(T, X)]
                r += ['v_fmaak_f32 v%d, v%d, v23, %s' % (t, t, K0) for t in T]
                r += ['v_mul_f32 v%d, v%d, v%d' % (t, t, x) for t, x in zip(T, X)]
                r += ['v_exp_f32 v%d, v%d' % (t, t) for t in T]
                r += ['v_add_f32 v%d, 1.0, v%d' % (t, t) for t in T]
                r += ['v_rcp_f32 v%d, v%d' % (t, t) for t in T]
                r += ['v_mul_f32 v%d, v%d, v%d' % (x, t, x) for t, x in zip(T, X)]
            r += ['v_cvt_pk_bf16_f32 v%d, v%d, v%d' % (A + 8 * h + 2 * q + i, X[2 * i], X[2 * i + 1]) for i in range(2)]
        r.append(('buffer_store_dwordx4 %s, v7, %s, %s offen offset:%d%s' % (v(A + 8 * h, 4), SWS, 's58' if j < 2 else 's59', (j & 1) * 2048 + h * 1024, '' if opt('hsp', 0) else ' sc1'), 'h%d' % j))
        if opt('hdbl', 0): r.append((r[-1][0].replace(' sc1', ''), 'h%d' % j))
    return r
setup3 += ['s_mov_b32 s66, %s' % fl(-0.1029432397), 's_mov_b32 s67, %s' % K0]
def w2_lds(mm, late):
    k = mm + 7 * late
    if k < 3: return CB + 8192 * k
    return 8192 * (k - 3)
def dma_w2(mm, late):
    tag = 'w2a' if mm + 7 * late < 10 else 'w2b'
    L = [('buffer_load_dwordx4 v%d, %s, %s offen offset:%d lds' % (9 + 2 * late + u, SW2, CW[mm], 1024 * u), tag) for u in range(2)]
    return [m.U(['s_add_u32 m0, s51, %d' % w2_lds(mm, late), L[0]]), L[1]]
def trG(i):
    r = []
    if i == 28: r += ['v_add_u32 v21, %d, v21' % W1H1, 'v_add_u32 v22, %d, v22' % W1H1]
    return r + ['ds_read_b64_tr_b16 %s, v%d offset:%d' % (v(96 + 8 * (i % 4) + 4 * j + 2 * aa, 2), 21 + j, 2048 * (i % 28) + 512 * aa) for j in range(2) for aa in range(2)]
def g1(i, j):
    d = v(32 + 16 * (2 * (i // 28) + j), 16)
    return 'v_mfma_f32_32x32x16_bf16 %s, %s, %s, %s' % (d, v(96 + 8 * (i % 4) + 4 * j, 4), ag(4 * (i % 28), 4), d)
def hpf(j):
    fl_ = m.flag('v24', 's61')
    if not opt('hpf', 0): return fl_
    n, so, off = (32, 's59', 0) if j == 3 else (16, 's58', 2048 * j)
    return m.U([fl_, 's_mov_b64 exec, 0x%x' % ((1 << n) - 1), lambda: (m.raw('    buffer_load_ubyte v2, v5, %s, %s offen offset:%d sc1' % (SWS, so, off)), m.vm.append((None, 'hpf'))), 's_mov_b64 exec, -1'])
def hflag(j): return [m.W('h%d' % j), hpf(j), 's_add_u32 s61, s61, 0x20000']
m.run([m.W('w1_0'), m.signal(SYM, 1), m.sread(SYM), m.scheck(SYM, 1)])
m.run(trG(0) + trG(1))
SYNC = {8: 1, 16: 3, 32: 6}
def g1_items(lo, hi):
    main = []
    for i in range(lo, hi):
        rd = trG(i + 2) if i + 2 < 56 else [None] * 4
        pre = []
        if i + 5 in SYNC: pre = [m.W('w1_%d' % SYNC[i + 5]), m.signal(SYM, SYNC[i + 5] + 1)]
        if i + 4 in SYNC: pre = [m.sread(SYM)]
        if i + 2 in SYNC: pre = [m.scheck(SYM, SYNC[i + 2] + 1)]
        if i == 17: pre = [m.sread(SYF)]
        if i == 19: pre = [m.scheck(SYF, 7)]
        if i == 31: pre = [m.signal(SYM2, 1)]
        if i == 32: pre = [m.sread(SYM2)]
        if i == 33: pre = [m.scheck(SYM2, 1)]
        if i == opt('hf0', 50) and opt('lv2', 2) != 1: pre = hflag(0)
        if i in (1, 8, 14, 18, 24, 34, 40, 46): pre = pre + [m.S('g1_%d' % i)]
        main.append(m.U(pre + [g1(i, 0)] + rd[:-2])); main.append(m.U([g1(i, 1)] + rd[-2:]))
    return main
w2c = dma_w2(0, 0) + dma_w2(1, 0) + dma_w2(2, 0)
m.run(weave(g1_items(0, 28), (sum(w1rest[:-3], []), 0, 12), (sum(w1rest[-3:], []), opt('r4lo', 14), opt('r4hi', 34)), ((pf2 if opt('pf2at', 0) == 2 else []) + setup2, 34, 46), (w2c, 46, 56)))
m.run(setup3)
m.stamp('G1a')
w2a = []
for k in range(3, 10): w2a += dma_w2(k % 7, k // 7)
GE = opt('ge', 48)
m.run(weave(g1_items(28, 56), (gelu(0, 128, PK > 1) + gelu(1, 136, PK > 1), 0, GE), (w2a, 12, 56)))
m.stamp('G1b')
m.run([m.signal(SYM2, 2), m.sread(SYM2)])
def p2(j): return 'buffer_load_dword v6, v25, %s, %s offen %s' % (SWS, ['s65', 's68', 's69', 's70'][j], PSC)
def hcheck(j): return m.poll([p2(j)], ['v6'], sT1, 1)
g2 = gelu(2, 128, PK); n2 = len(g2)
w2b = []
for mm in range(3, 7): w2b += dma_w2(mm, 1)
NEWO = opt('newo', 0)
LV2 = opt('lv2', 2); DEF = opt('defer', 0)
if DEF:
    st2 = [y for y in g2 if isinstance(y, tuple)]; g2 = [y for y in g2 if not isinstance(y, tuple)]; k2 = n2 * opt('f1at', 60) // 100
    m.run(g2[:n2 // 5] + [m.scheck(SYM2, 2)] + weave(g2[n2 // 5:k2], w2b) + [m.W('h1'), p2(0)] + hflag(1)[1:] + g2[k2:])
    m.stamp('gelu2')
elif LV2:
    k2 = n2 * opt('f1at', 60) // 100
    m.run(g2[:n2 // 5] + [m.scheck(SYM2, 2)] + weave(g2[n2 // 5:k2], w2b) + hflag(1) + g2[k2:])
    m.stamp('gelu2')
elif not NEWO:
    m.run(g2[:n2 // 5] + [m.scheck(SYM2, 2)] + weave(g2[n2 // 5:n2 * 3 // 4], w2b) + [m.W('h1'), p2(0)] + hflag(1)[1:] + g2[n2 * 3 // 4:])
    m.stamp('gelu2')
MERGE = opt('merge', 2)
steps = [(mm, j, (0, 1)) for j in range(MERGE) for mm in range(7)] + [(mm, j, (0,)) for j in range(MERGE, 4) for mm in range(7)] + \
        [(mm, j, (1,)) for j in range(MERGE, 4) for mm in range(7)]
loads = [(i, p) for i, st in enumerate(steps) for p in st[2]]
lidx = {x: k for k, x in enumerate(loads)}
NH = 28; NS = len(steps)
def h_load(k):
    i, p = loads[k]; mm, j, _ = steps[i]
    return 'buffer_load_dwordx4 %s, v%d, %s, %s offen offset:%d%s' % (ag(4 * (k % NH), 4), 13 + 2 * p + (j >> 1), SWS, CH[mm], 2048 * (j & 1), '' if opt('hlp', 0) else ' sc1')
def trD(i):
    mm, j, _ = steps[i]
    ad = w2_lds(mm, j >> 1) + 4096 * (j & 1)
    base, ar = (CB, 17) if ad >= CB else ((0, 64) if ad < W1H1 else (W1H1, 68))
    return ['ds_read_b64_tr_b16 %s, v%d offset:%d' % (v(96 + 16 * (i % 3) + 4 * ct + 2 * aa, 2), ar + ct, ad - base + 1024 * aa) for ct in range(4) for aa in range(2)]
started = set()
def mfD(i):
    r = []
    for p in steps[i][2]:
        for ct in range(4):
            d = v(32 + 16 * p + 4 * ct, 4)
            r.append('v_mfma_f32_16x16x32_bf16 %s, %s, %s, %s' % (d, v(96 + 16 * (i % 3) + 4 * ct, 4), ag(4 * (lidx[(i, p)] % NH), 4), d if p in started else '0'))
        started.add(p)
    return r
first_lvl = {j: min(k for k, (i, p) in enumerate(loads) if steps[i][1] == j) for j in range(4)}
issued = 0
PLEAD = opt('plead', 3)
def issue_upto(n, fill):
    global issued
    while issued < min(n, len(loads)):
        if LV2 in (1, 2):
            if LV2 == 2 and first_lvl[1] == issued: fill.append(hcheck(1))
            if first_lvl[2] == issued: fill.append(hcheck(LV2))
            if first_lvl[2] - PLEAD == issued: fill.append(p2(LV2))
        for j in (() if LV2 in (1, 2) else range(1, 4)):
            if first_lvl[j] == issued: fill.append(hcheck(j))
            if j > 1 and first_lvl[j] - PLEAD == issued: fill.append(p2(j))
        fill.append(h_load(issued)); issued += 1
g3 = gelu(3, 136, PK)
k3 = len(g3) * opt('c0at', 70) // 100
fl0 = []; issue_upto(first_lvl[1], fl0)
if DEF:
    st3 = [y for y in g3 if isinstance(y, tuple)]; g3 = [y for y in g3 if not isinstance(y, tuple)]; k3 = len(g3) * opt('c0at2', 30) // 100
    m.run(g3[:k3] + [m.S('gelu3'), hcheck(0), m.S('chk0')] + weave(g3[k3:], fl0) + ([p2(1)] if DEF == 2 else []) + st2 + st3 + ([p2(1)] if DEF == 1 else []) + [m.S('L0iss')])
elif LV2:
    k3 = len(g3) * opt('p0at', 40) // 100
    m.run(g3[:k3] + [p2(0)] + g3[k3:] + [m.S('gelu3'), hcheck(0), m.S('chk0')] + (hflag(2) if LV2 == 4 else []) + (hflag(3)[:2] + fl0 if opt('f3first', 0) else fl0 + [m.W('h3'), p2(1) if LV2 >= 2 else None] + hflag(3)[1:2]) + [m.S('L0iss')])
elif NEWO:
    sp = lambda L: ([y for y in L if not isinstance(y, tuple)], [y for y in L if isinstance(y, tuple)])
    (a2, st2), (a3, st3) = sp(g2), sp(g3)
    aa = a2 + a3; n = len(a2); c0 = n * opt('c0', 90) // 100; c1 = n * opt('c1', 150) // 100
    seq = aa[:n // 6] + [m.scheck(SYM2, 2), p2(0)] + weave(aa[n // 6:n // 2], w2b) + hflag(1) + aa[n // 2:c0] + [m.S('gelu2'), hcheck(0), m.S('chk0')] + weave(aa[c0:c1], fl0) + [p2(1)] + st2 + aa[c1:] + st3
    m.run(seq + [m.S('gelu3')])
elif opt('l0early', 0):
    st3 = [y for y in g3 if isinstance(y, tuple)]; g3 = [y for y in g3 if not isinstance(y, tuple)]; k3 = len(g3) * opt('l0early', 0) // 100
    m.run(g3[:k3] + [m.S('gelu3'), hcheck(0), m.S('chk0')] + weave(g3[k3:], fl0) + st3 + [m.S('L0iss'), p2(1)] + hflag(2))
else:
    m.run(g3[:k3] + hflag(2) + g3[k3:] + [m.S('gelu3'), hcheck(0), m.S('chk0'), p2(1)] + fl0 + [m.S('L0iss')] + hflag(3)[:2])
for ct in range(4): e('v_subrev_u32 v%d, %d, v%d' % (64 + ct, CB, 17 + ct)); e('v_subrev_u32 v%d, %d, v%d' % (68 + ct, CB - W1H1, 17 + ct))
m.run([m.W('w2b'), m.signal(SYM2, 3), m.sread(SYM2), m.scheck(SYM2, 3)])
m.run(trD(0) + trD(1))
m.stamp('hiss')
last_p0 = max(i for i, st in enumerate(steps) if 0 in st[2])
LEAD = opt('lead', 8)
mpx = ['buffer_load_dwordx4 %s, v7, %s, s79 offen offset:%d sc1' % (v(84 + 4 * k, 4), SWS, 1024 * k) for k in range(3)]
for i in range(NS):
    fill = []
    issue_upto(max(lidx[(i, steps[i][2][-1])] + 1 + LEAD, min(first_lvl[2] - PLEAD, first_lvl[1] + opt('burst', 6) * (i + 1 - opt('b0', 1))) if opt('burst', 6) else 0), fill)
    if i == NS - 1 - opt('pxl', 1): fill += ['s_cmp_eq_u32 %s, 0' % sHALF, 's_mov_b32 s79, %d' % (7 * 16384), 's_cselect_b32 s79, s79, %d' % ((1 << 32) - 7 * 16384), 's_add_u32 s79, s79, s63'] + mpx
    if opt('l0early', 0) and i == opt('hf3', 4): fill += hflag(3)[:2]
    if NEWO and i == opt('f2at', 2): fill += hflag(2)
    if NEWO and i == opt('f3at', 5): fill += hflag(3)[:2]
    if DEF and i == opt('f3at2', 3): fill = hflag(3)[:2] + fill
    if i == opt('sig4', 2): fill += [m.signal(SYM2, 4)]
    if i == last_p0 + 1:
        PXR = [72, 73, 74, 76, 77, 78, 80, 81]
        fill += ['v_mov_b32 v%d, %s' % (r, sT1) for r in (75, 79, 83)]
        fill += ['v_cvt_pk_bf16_f32 v%d, v%d, v%d' % (PXR[k], 32 + 2 * k, 33 + 2 * k) for k in range(8)]
        fill += ['buffer_store_dwordx4 %s, v7, %s, s63 offen offset:%d sc1' % (v(72 + 4 * k, 4), SWS, 1024 * k) for k in range(3)]
    if i == NS - 6:
        fill += ['s_mov_b32 s78, %d' % (128 * 896), 'v_and_b32 v14, 1, v4', 'v_lshlrev_b32 v14, 5, v14', 'v_lshrrev_b32 v15, 1, v4', 'v_lshl_add_u32 v14, v15, 4, v14',
                 'v_mad_u32_u24 v14, v8, s78, v14',
                 's_and_b32 s66, %s, 1' % sW, 's_lshl_b32 s66, s66, 6', 's_add_u32 s66, s66, s64', 's_mul_i32 s66, s66, 896', 's_lshl_b32 s78, %s, 7' % sNT, 's_add_u32 s66, s66, s78',
                 's_mul_i32 s78, %s, 6144' % sW, 's_add_u32 s78, s78, %d' % RED, 'v_add_u32 v15, s78, v7',
                 's_lshl_b32 s78, %s, 6' % sW, 's_add_u32 s78, s78, %d' % GL, 'v_lshl_add_u32 v16, v8, 2, s78']
        assert issued == len(loads)
    rd = trD(i + 2) if i + 2 < NS else []
    m.run(weave(mfD(i), rd, fill))
    if i in (0, 6, 13, 20, last_p0, NS - 8): m.stamp('g2_%d' % i)
m.stamp('G2end')
m.barrier()
e('ds_read_b32 v13, v16')
for ct in range(4): e('ds_read_b128 %s, v15 offset:%d' % (v(64 + 4 * ct, 4), 1024 * ct))
m.run([m.poll(mpx, ['v87', 'v91', 'v95'], sT1, 1)])
m.stamp('px')
for k, r in enumerate([84, 85, 86, 88, 89, 90, 92, 93]):
    e('v_lshlrev_b32 v%d, 16, v%d' % (32 + 2 * k, r)); e('v_and_b32 v%d, 0xffff0000, v%d' % (33 + 2 * k, r))
for k in range(16): e('v_add_f32 v%d, v%d, v%d' % (48 + k, 48 + k, 32 + k))
e('v_sub_f32 v13, 1.0, v13')
for k in range(16): e('v_fmac_f32 v%d, v13, v%d' % (64 + k, 48 + k))
for k in range(8): e('v_cvt_pk_bf16_f32 v%d, v%d, v%d' % (80 + k, 64 + 2 * k, 65 + 2 * k))
for p in range(2):
    e('v_permlane16_swap_b32 v%d, v%d' % (80 + 4 * p, 82 + 4 * p)); e('v_permlane16_swap_b32 v%d, v%d' % (81 + 4 * p, 83 + 4 * p))
for p in range(2):
    e('buffer_store_dwordx4 %s, v14, %s, s66 offen offset:%d%s' % (v(80 + 4 * p, 4), SOUT, 64 * p, ['', ' sc1', ' nt', ' sc0 sc1'][opt('osc', 1)]))
e('s_or_b32 s77, s2, %s' % sW); e('s_cmp_lg_u32 s77, 0'); e('s_cbranch_scc1 L_fin'); m.cond_begin()
e('v_mov_b32 v2, %s' % sEN); e('s_mov_b64 exec, 1'); e('buffer_store_dword v2, off, %s, 0 sc1' % SWS); e('s_mov_b64 exec, -1')
m.endc('L_fin')
m.finish(0)

f = Role(); e = f.e
f.raw('L_fft:')
e('s_setprio %d' % opt('fprio', 2))
f.run([f.signal(SYM, 0)]); e('ds_write_b32 v26, v28 offset:%d' % (SYF - SYM)); e('ds_write_b32 v26, v28 offset:%d' % (SYM2 - SYM)); e('ds_write_b32 v26, v28 offset:%d' % (SYX - SYM))
f.run(['v_lshrrev_b32 v32, 1, v6', 's_lshl_b32 s77, %s, 4' % sNB, 'v_add_u32 v32, s77, v32', 'v_and_b32 v33, 1, v1', 'v_cvt_f32_u32 v34, v33',
     'v_mul_f32 v34, 0x3e800000, v34', 'v_lshl_add_u32 v35, v32, 1, v33', 'v_cmp_eq_u32 vcc, 1, v35', 'v_mov_b32 v35, 224',
     'v_cndmask_b32 v32, v32, v35, vcc', 'v_cndmask_b32 v34, v34, v28, vcc', 'v_cvt_f32_u32 v32, v32', 'v_mul_f32 v32, %s, v32' % fl(1.0 / 448),
     's_mul_i32 s77, %s, 112' % sW, 'v_lshl_add_u32 v35, v5, 3, s77', 'v_cvt_f32_u32 v35, v35', 'v_fmac_f32 v34, v32, v35', 'v_fract_f32 v34, v34',
     's_mul_i32 s77, %s, 7168' % sW, 's_add_u32 s77, s77, %d' % CB, 'v_add_u32 v35, s77, v7'])
def w1pf():
    f.raw('    s_waitcnt lgkmcnt(0)'); f.lg_done = len(f.lg)
    f.srd(28, 56, 1605632)
    e('v_lshrrev_b32 v36, 1, v1'); e('v_min_u32 v36, 27, v36'); e('v_mul_u32_u24 v36, 3584, v36'); e('v_and_b32 v37, 1, v1'); e('v_lshl_add_u32 v36, v37, 7, v36')
    e('s_and_b32 s77, %s, 15' % sSQ); e('s_mul_i32 s77, s77, %d' % (28 * 3584)); e('s_lshl_b32 s78, %s, 8' % sNB); e('s_add_u32 s77, s77, s78')
    f.raw('    buffer_load_ubyte v142, v36, s[28:31], s77 offen')
for tt in range(7):
    if tt == opt('w1pf', 9): w1pf()
    b = 40 + 12 * (tt & 1)
    for j in range(8): e('v_fmamk_f32 v%d, v32, %s, v34' % (b + j, fl(16.0 * tt + j)))
    for j in range(8): e('v_cos_f32 v%d, v%d' % (b + j, b + j))
    for j in range(4): e('v_cvt_pk_bf16_f32 v%d, v%d, v%d' % (b + 8 + j, b + 2 * j, b + 2 * j + 1))
    e('ds_write_b128 v35, %s offset:%d' % (v(b + 8, 4), 1024 * tt))
f.raw('    s_waitcnt lgkmcnt(0)'); f.lg_done = len(f.lg)
f.stamp('genC')
FCH = ['s%d' % (8 + p) for p in range(7)]
f.chtab(FCH, 12)
f.srd(16, 70, WS_SIZE); f.srd(20, 50, 921600); f.srd(24, 52, 921600); f.srd(40, 62, 896)
e('s_lshl_b32 s50, %s, 12' % sW)
e('v_add_u32 v13, %d, v7' % CB)
f.xread_addrs(9)
e('v_and_b32 v21, 1, v1'); e('v_lshlrev_b32 v22, 1, v21'); e('v_lshlrev_b32 v21, 31, v21'); e('v_or_b32 v21, 1.0, v21')
e('v_lshrrev_b32 v14, 1, v6'); e('v_lshl_add_u32 v22, v14, 4, v22'); e('v_lshl_add_u32 v22, v5, 10, v22')
e('s_lshl_b32 s77, %s, 2' % sW); e('s_add_u32 s77, s77, %d' % TT); e('v_add_u32 v22, s77, v22')
e('s_lshl_b32 s77, %s, 11' % sW); e('s_add_u32 s77, s77, %d' % TT); e('v_add_u32 v15, s77, v7')
e('v_lshlrev_b32 v16, 4, v8'); e('v_lshl_add_u32 v16, v4, 12, v16')
e('s_lshl_b32 s55, %s, 17' % sNB); e('s_add_u32 s55, s55, %d' % TB)
e('s_lshl_b32 s58, %s, 15' % sW); e('s_lshl_b32 s78, %s, 8' % sMB); e('s_add_u32 s58, s58, s78'); e('s_add_u32 s58, s58, s55'); e('s_add_u32 s59, s58, 16384')
gf1 = ['v_cvt_f32_u32 v32, v6', 'v_mul_f32 v32, 0x3d000000, v32', 'v_mul_u32_u24 v33, %s, v8' % sSQ,
     'v_bfe_u32 v34, v1, 4, 1', 's_lshr_b32 s79, %s, 5' % sSQ, 's_lshl_b32 s79, s79, 9', 'v_mad_u32_u24 v33, v34, s79, v33',
     'v_cvt_f32_u32 v33, v33', 'v_mul_f32 v33, 0x3a000000, v33', 'v_lshlrev_b32 v34, 3, v5', 'v_cvt_f32_u32 v34, v34', 'v_fmac_f32 v33, v32, v34']
for cc in range(2):
    for hq in range(2):
        for j in range(4): gf1.append('v_fmamk_f32 v%d, v32, %s, v33' % (36 + j, fl(16.0 * hq + 2 * j + cc)))
        for j in range(4): gf1 += ['v_sin_f32 v%d, v%d' % (40 + j, 36 + j), 'v_cos_f32 v%d, v%d' % (36 + j, 36 + j)]
        for j in range(2): gf1 += ['v_cvt_pk_bf16_f32 v%d, v%d, v%d' % (128 + 4 * cc + 2 * hq + j, 36 + 2 * j, 37 + 2 * j), 'v_cvt_pk_bf16_f32 v%d, v%d, v%d' % (136 + 4 * cc + 2 * hq + j, 40 + 2 * j, 41 + 2 * j)]
f.run(gf1[:-4])
f.raw('    s_waitcnt vmcnt(0)')
f.run(gf1[-4:])
f.barrier()
cr = []
for p in range(7): cr += ['v_add_u32 v23, %s, v13' % FCH[p]] + ['ds_read_b128 %s, v23 offset:%d' % (ag(16 * p + 4 * tt, 4), 1024 * tt) for tt in range(4)]
f.run(cr)
XB = [48, 64, 96, 112]
def f1_mfma(p):
    return ['v_mfma_f32_32x32x16_bf16 %s, %s, %s, %s' % (v(80, 16), v(XB[p & 3] + 4 * tt, 4), ag(16 * p + 4 * tt, 4), '0' if (p == 0 and tt == 0) else v(80, 16)) for tt in range(4)]
def fxr(p): return [('ds_read_b128 %s, v%d offset:%d' % (v(XB[p & 3] + 4 * tt, 4), 9 + tt, (p % 4) * 16384), 'xr%d' % p) for tt in range(4)]
f.run([f.sread1(SYX), f.scheck1(SYX, 1)])
f.stamp('x0')
if X0R: f.run(X0OFF('s79'))
f.run((xrd0(f, lambda tt: v(XB[0] + 4 * tt, 4), 9, 's79', 44) if X0R else fxr(0)) + fxr(1) + weave(f1_mfma(0), fxr(2) + fxr(3)) + [f.sread(SYX)] + ['v_add_u32 v%d, 65536, v%d' % (9 + tt, 9 + tt) for tt in range(4)])
f.run(f1_mfma(1) + [f.L('xr3'), 'v_mov_b32 v47, 4', 'ds_write_b32 v26, v47 offset:%d' % (SYF - SYM), f.scheck(SYX, 2)])
f.run(weave(f1_mfma(2), fxr(4) + fxr(5)) + weave(f1_mfma(3), fxr(6)) + f1_mfma(4) + f1_mfma(5) + [f.L('xr6'), f.signal(SYF, 7), f.sread(SYF)] + f1_mfma(6) + [f.scheck(SYF, 4)])
e('buffer_load_dword v24, off, %s, 0 sc1' % SWS)
f.stamp('F1end')
for j in range(8): e('v_cvt_pk_bf16_f32 v%d, v%d, v%d' % (80 + j, 80 + 2 * j, 81 + 2 * j))
e('v_mfma_f32_32x32x16_bf16 %s, %s, %s, 0' % (v(32, 16), v(128, 4), v(80, 4)))
e('v_mfma_f32_32x32x16_bf16 %s, %s, %s, 0' % (v(48, 16), v(136, 4), v(80, 4)))
e('v_mfma_f32_32x32x16_bf16 %s, %s, %s, %s' % (v(32, 16), v(132, 4), v(84, 4), v(32, 16)))
e('v_mfma_f32_32x32x16_bf16 %s, %s, %s, %s' % (v(48, 16), v(140, 4), v(84, 4), v(48, 16)))
f.ifnb0('L_sp1')
for k in range(16): e('v_cvt_pk_bf16_f32 v%d, v%d, -v%d' % (64 + k, 32 + k, 48 + k))
f.endc('L_sp1')
for k in range(16): e('v_fmac_f32_dpp v%d, v%d, v21 quad_perm:[1,0,3,2] %s' % (32 + k, 48 + k, DP))
for k in range(0, 16, 2): e('v_cvt_pk_bf16_f32 v%d, v%d, v%d' % (48 + k // 2, 32 + k, 33 + k))
for k in range(0, 16, 2):
    off = (8 * (k >> 2) + (k & 3)) * 256
    e('ds_write_b16 v22, v%d offset:%d' % (48 + k // 2, off)); e('ds_write_b16_d16_hi v22, v%d offset:%d' % (48 + k // 2, off + 256))
f.ifnb0('L_sp2')
e('v_and_b32 v23, 1, v1'); e('s_mov_b32 s77, %d' % (TT - YX + 2)); e('v_mul_u32_u24 v23, s77, v23'); e('v_sub_u32 v23, v22, v23')
e('s_mov_b32 exec_lo, 3'); e('s_mov_b32 exec_hi, 3')
for k in range(16): e('ds_write_b32 v23, v%d offset:%d' % (64 + k, (8 * (k >> 2) + (k & 3)) * 256))
e('s_mov_b64 exec, -1')
f.endc('L_sp2')
f.run([f.signal(SYF, 8), f.sread(SYF)])
f.run([f.scheck(SYF, 8)])
e('ds_read_b128 %s, v15' % v(64, 4)); e('ds_read_b128 %s, v15 offset:1024' % v(68, 4))
e('buffer_store_dwordx4 %s, v16, %s, s58 offen sc1' % (v(64, 4), SWS), tag='T')
e('buffer_store_dwordx4 %s, v16, %s, s59 offen sc1' % (v(68, 4), SWS), tag='T')
f.ifnb0('L_sp3')
e('s_lshl_b32 s77, %s, 11' % sW); e('s_add_u32 s77, s77, %d' % YX); e('v_lshlrev_b32 v21, 8, v1'); e('v_add_u32 v22, s77, v21')
e('v_lshlrev_b32 v21, 11, v1'); e('s_lshl_b32 s77, %s, 14' % sW); e('s_lshl_b32 s78, %s, 7' % sMB); e('s_add_u32 s77, s77, s78'); e('s_add_u32 s77, s77, %d' % TVB)
e('s_mov_b64 exec, 0xff'); e('ds_read_b128 %s, v22' % v(72, 4))
e('buffer_store_dwordx4 %s, v21, %s, s77 offen sc1' % (v(72, 4), SWS), tag='T')
e('s_mov_b64 exec, -1')
f.endc('L_sp3')
f.stamp('Tst')
f.tags()
f.run([f.signal(SYF, 9)])
for k in range(16): e('v_mov_b32 v%d, 0' % (96 + k))
e('v_lshlrev_b32 v19, 1, v8'); e('s_mov_b32 s77, %d' % (256 * 450)); e('v_mad_u32_u24 v19, v4, s77, v19')
e('s_lshl_b32 s56, %s, 4' % sW); e('s_add_u32 s56, s56, %s' % sMB); e('s_mul_i32 s77, s56, 450'); e('s_lshl_b32 s78, %s, 5' % sNB); e('s_add_u32 s57, s77, s78')
wl = []
for k in range(8):
    wl += [f.U(['s_add_u32 s79, s57, %d' % ((16 * (k >> 2) + (k & 3)) * 28800), 'buffer_load_short_d16_hi v%d, v19, %s, s79 offen' % (96 + k, SWR)]),
           'buffer_load_short_d16_hi v%d, v19, %s, s79 offen' % (104 + k, SWI)]
psp = ['buffer_load_dwordx4 %s, v20, %s, s65 offen offset:%d sc1' % (v(128 + 4 * mt, 4), SWS, 256 * mt) for mt in range(2)]
def wsp():
    e('v_lshrrev_b32 v20, 2, v1'); e('v_lshlrev_b32 v20, 4, v20')
    f.ifnb0('L_sp4')
    e('s_lshl_b32 s65, %s, 9' % sSQ); e('s_add_u32 s65, s65, %d' % SPB)
    f.run(psp)
    f.endc('L_sp4')
e('s_lshl_b32 s60, %s, 2' % sNB); e('s_add_u32 s60, s60, %s' % sW); e('s_lshl_b32 s60, s60, 2'); e('s_and_b32 s77, %s, 3' % sMB); e('s_add_u32 s60, s60, s77')
e('s_lshl_b32 s60, s60, 3'); e('s_lshr_b32 s78, %s, 2' % sMB); e('s_add_u32 s60, s60, s78'); e('s_lshl_b32 s60, s60, 4'); e('s_add_u32 s60, s60, %d' % FL1)
e('s_lshl_b32 s62, %s, 2' % sNT); e('s_add_u32 s62, s62, s77'); e('s_lshl_b32 s62, s62, 1'); e('s_and_b32 s77, %s, 1' % sW); e('s_add_u32 s62, s62, s77'); e('s_lshl_b32 s62, s62, 3')
e('s_and_b32 s77, s2, 7'); e('s_add_u32 s62, s62, s77'); e('s_lshl_b32 s62, s62, 4')
e('s_lshr_b32 s77, %s, 1' % sW); e('s_lshl_b32 s77, s77, 13'); e('s_add_u32 s62, s62, s77'); e('s_add_u32 s62, s62, %d' % FL3)
e('s_lshr_b32 s77, %s, 3' % sMB); e('s_and_b32 s78, %s, 1' % sW); e('s_lshl_b32 s79, s78, 1'); e('s_add_u32 s77, s77, s79')
e('s_lshl_b32 s79, %s, 2' % sNB); e('s_add_u32 s77, s77, s79'); e('s_lshl_b32 s77, s77, 9'); e('s_add_u32 s63, s77, %d' % FL1)
e('v_and_b32 v9, 3, v1'); e('v_lshlrev_b32 v9, 7, v9'); e('v_bfe_u32 v10, v1, 2, 2'); e('v_lshl_add_u32 v9, v10, 4, v9')
gi = ['s_lshl_b32 s68, %s, 6' % sNT, 'v_add_u32 v80, s68, v8', 'v_cvt_f32_u32 v80, v80', 's_lshl_b32 s68, %s, 6' % sW, 'v_bfe_u32 v81, v1, 4, 1', 'v_lshl_add_u32 v81, v81, 1, v5', 'v_lshl_add_u32 v81, v81, 4, s68',
      'v_cvt_f32_u32 v81, v81', 'v_and_b32 v84, 1, v1', 'v_lshlrev_b32 v84, 31, v84', 'v_or_b32 v84, 0x3e803e80, v84', 'v_cmp_eq_u32 s[70:71], 0, v81']
gihead = list(gi)
for ct in range(4):
    gi += ['v_add_f32 v82, %s, v80' % fl(16.0 * ct), 'v_mul_f32 v82, %s, v82' % fl(1.0 / 448), 'v_mul_f32 v83, v82, v81', 'v_fract_f32 v83, v83']
    for cc in range(4):
        for q in range(4): gi.append('v_fmamk_f32 v%d, v82, %s, v83' % (88 + q, fl(4.0 * q + cc)))
        for q in range(4): gi += ['v_sin_f32 v%d, v%d' % (92 + q, 88 + q), 'v_cos_f32 v%d, v%d' % (88 + q, 88 + q)]
        for q in range(4): gi.append('v_cvt_pk_bf16_f32 v%d, v%d, -v%d' % (88 + q, 88 + q, 92 + q))
        if cc == 0: gi.append('v_cndmask_b32 v88, v88, v84, s[70:71]')
        for q in range(4): gi.append('v_accvgpr_write_b32 a%d, v%d' % (48 + 16 * cc + 4 * ct + q, 88 + q))
r = []
r += ['v_lshl_add_u32 v32, v8, 2, %s' % sW, 'v_cvt_f32_u32 v32, v32', 'v_mul_f32 v32, 0x3c000000, v32', 'v_lshlrev_b32 v34, 2, v4', 'v_cvt_f32_u32 v34, v34']
for mt in range(2):
    if mt: r.append('v_add_f32 v32, 0.5, v32')
    r.append('v_mul_f32 v33, v32, v34')
    for j in range(8): r.append('v_fmamk_f32 v%d, v32, %s, v33' % (40 + j, fl(16.0 * (j >> 2) + (j & 3))))
    for j in range(8): r += ['v_sin_f32 v%d, v%d' % (48 + j, 40 + j), 'v_cos_f32 v%d, v%d' % (40 + j, 40 + j)]
    for j in range(8):
        r += ['v_cvt_pk_bf16_f32 v%d, v%d, v%d' % (56 + (j & 3), 40 + j, 48 + j), 'v_cvt_pk_bf16_f32 v%d, -v%d, v%d' % (60 + (j & 3), 48 + j, 40 + j),
              'v_accvgpr_write_b32 a%d, v%d' % (8 * mt + j, 56 + (j & 3)), 'v_accvgpr_write_b32 a%d, v%d' % (16 + 8 * mt + j, 60 + (j & 3))]
gi = r + gi
if opt('nogen', 0): gi = ['s_sleep 1'] * 40 + [None] * 500
n1, n2, n3, n4 = opt('gi1', 90), opt('gi2', 150), opt('gi3', 217), opt('gi4', 217)
def wpatch():
    f.ifnb0('L_sp8')
    f.run([f.poll(psp, ['v130', 'v134'], sT1, 1)])
    e('v_cmp_ne_u32 vcc, 0, v8')
    for mt in range(2):
        for c2 in range(2):
            e('v_lshlrev_b32 v%d, 16, v%d' % (136 + 4 * mt + 2 * c2, 128 + 4 * mt + c2)); e('v_and_b32 v%d, 0xffff0000, v%d' % (137 + 4 * mt + 2 * c2, 128 + 4 * mt + c2))
    for k in range(8):
        mt, kk = k >> 2, k & 3
        sh0 = 'row_shl:%d' % (4 * kk) if kk else 'quad_perm:[0,1,2,3]'
        for ri in range(2):
            e('v_cndmask_b32_dpp v%d, v%d, v%d, vcc %s %s bound_ctrl:0' % (96 + 8 * ri + k, 136 + 4 * mt + ri, 96 + 8 * ri + k, sh0, DP))
            e('v_mov_b32_dpp v%d, v%d %s %s bound_ctrl:0' % (112 + 8 * ri + k, 138 + 4 * mt + ri, sh0, DP))
    f.endc('L_sp8')
def f2const():
    e('s_lshr_b32 s77, %s, 1' % sW); e('s_mul_i32 s66, s77, 0x80008000')
    for kb in range(1, 4):
        e('s_mul_i32 s77, %s, %d' % (sW, kb)); e('s_and_b32 s77, s77, 3'); e('s_and_b32 s78, s77, 1'); e('s_lshl_b32 s%d, s78, 4' % (67 + kb))
        e('s_lshr_b32 s78, s77, 1'); e('s_xor_b32 s79, s77, s78'); e('s_lshl_b32 s79, s79, 31'); e('s_lshl_b32 s78, s78, 15'); e('s_or_b32 s%d, s79, s78' % (51 + kb))
    e('v_lshlrev_b32 v22, 4, v8'); e('v_lshl_add_u32 v22, v4, 10, v22'); e('s_lshl_b32 s77, %s, 2' % sW); e('s_add_u32 s77, s77, %d' % YX); e('v_add_u32 v22, s77, v22')
    e('v_add_u32 v23, %d, v7' % YX)
    e('s_mov_b32 s77, %d' % (4 * 28672)); e('v_lshlrev_b32 v21, 4, v3'); e('v_mad_u32_u24 v21, v2, s77, v21')
    e('s_mul_i32 s58, %s, 28672' % sW); e('s_mul_i32 s78, %s, 1792' % sMB); e('s_add_u32 s58, s58, s78')
    e('s_lshl_b32 s78, %s, 7' % sNB); e('s_add_u32 s58, s58, s78'); e('s_add_u32 s58, s58, %d' % RB); e('s_add_u32 s59, s58, %d' % (32 * 28672))
    e('s_lshl_b32 s77, %s, 11' % sW); e('s_add_u32 s77, s77, %d' % TT)
    e('v_xor_b32 v14, v4, v3'); e('v_lshlrev_b32 v14, 4, v14'); e('v_lshl_add_u32 v14, v8, 7, v14'); e('v_add_u32 v14, s77, v14'); e('v_xor_b32 v15, 64, v14')
    e('v_xor_b32 v16, v2, v3'); e('v_lshlrev_b32 v16, 4, v16'); e('v_lshl_add_u32 v16, v2, 7, v16'); e('v_add_u32 v16, s77, v16')
    e('v_lshlrev_b32 v17, 14, v1')
    e('v_mov_b32 v18, %s' % sMB); e('v_cvt_f32_u32 v18, v18'); e('v_mul_f32 v18, 0x3d000000, v18'); e('v_sin_f32 v19, v18'); e('v_cos_f32 v18, v18')
p1 = 'buffer_load_dword v10, v9, %s, s63 offen %s' % (SWS, PSC)
LO, HI = 's_setprio %d' % opt('flo', 0), 's_setprio %d' % opt('fhi2', 2)
HI3 = 's_setprio %d' % opt('fhi3', 0)
f.run([LO if opt('lo1', 1) else None] + gi[:n1] + [f.S('preWT'), f.W('T'), f.S('WT'), f.flag('v24', 's60'), LO, wsp] + weave(gi[n1:n2], (wl, 0, 60)) + [(p1, 'p1')] + gi[n2:n3] + [f2const if opt('f2c', 1) else None, wpatch, HI, f.S('prepollT'), f.W('p1'), f.S('p1back'), f.poll([p1], ['v10'], sT1, 1)])
f.stamp('pollT')
e('s_and_b32 s78, %s, 1' % sW); e('s_lshl_b32 s78, s78, 4'); e('s_add_u32 s78, s78, %s' % sMB)
e('s_lshl_b32 s77, s78, 12'); e('s_add_u32 s77, s77, s55')
for q in range(4): e('buffer_load_dwordx4 %s, v7, %s, s77 offen offset:%d sc1' % (v(32 + 4 * q, 4), SWS, 1024 * q))
e('s_lshl_b32 s61, %s, 1' % sMB); e('s_add_u32 s61, s61, %s' % sHALF); e('s_lshl_b32 s61, s61, 9'); e('s_add_u32 s61, s61, %d' % GB); e('v_lshlrev_b32 v11, 3, v1')
pg = 'buffer_load_dwordx2 v[12:13], v11, %s, s61 offen sc1' % SWS
e(pg)
f.ifnb0('L_sp5')
e('v_lshlrev_b32 v64, 26, v8'); e('v_lshl_add_u32 v64, v4, 7, v64'); e('s_lshl_b32 s77, s78, 11'); e('s_add_u32 s77, s77, %d' % TVB)
for q in range(4): e('buffer_load_dwordx4 %s, v64, %s, s77 offen offset:%d sc1' % (v(48 + 4 * q, 4), SWS, 512 * q))
f.endc('L_sp5')
f.run(gi[n3:n4])
if not opt('f2c', 1): f2const()
e(f.sread(SYF))
f.run([f.scheck(SYF, 9)])
f.stamp('preF2')
def F2_fwd(D, B):
    for q in range(4):
        if q >= 2:
            for k in range(4): e('v_xor_b32 v%d, s66, v%d' % (B + 4 * q + k, B + 4 * q + k))
        for mt in range(2):
            for part in range(2):
                d = v(D + 8 * mt + 4 * part, 4)
                e('v_mfma_f32_16x16x32_bf16 %s, %s, %s, %s' % (d, ag(16 * part + 8 * mt + 4 * (q & 1), 4), v(B + 4 * q, 4), '0' if q == 0 else d))
F2_fwd(64, 32)
f.ifnb0('L_sp6'); F2_fwd(80, 48); f.endc('L_sp6')
for k in range(8):
    zr = 64 + 8 * (k >> 2) + (k & 3)
    e('v_mul_f32 v%d, v%d, v%d' % (128 + k, zr, 96 + k)); e('v_mul_f32 v%d, v%d, v%d' % (136 + k, zr, 104 + k))
for k in range(8):
    zi = 68 + 8 * (k >> 2) + (k & 3)
    e('v_fma_f32 v%d, -v%d, v%d, v%d' % (128 + k, zi, 104 + k, 128 + k)); e('v_fmac_f32 v%d, v%d, v%d' % (136 + k, zi, 96 + k))
f.ifnb0('L_sp7')
for k in range(8):
    zr = 80 + 8 * (k >> 2) + (k & 3)
    e('v_fma_f32 v%d, -v%d, v%d, v%d' % (128 + k, zr, 120 + k, 128 + k)); e('v_fmac_f32 v%d, v%d, v%d' % (136 + k, zr, 112 + k))
for k in range(8):
    zi = 84 + 8 * (k >> 2) + (k & 3)
    e('v_fma_f32 v%d, -v%d, v%d, v%d' % (128 + k, zi, 112 + k, 128 + k)); e('v_fma_f32 v%d, -v%d, v%d, v%d' % (136 + k, zi, 120 + k, 136 + k))
f.endc('L_sp7')
for k in range(8): e('v_cvt_pk_bf16_f32 v%d, v%d, -v%d' % (128 + k, 128 + k, 136 + k))
for k in range(8): e('ds_write_b32 v22, v%d offset:%d' % (128 + k, (16 * (k >> 2) + (k & 3)) * 256))
f.run([f.S('F2fwd'), f.signal(SYF, 10), f.sread(SYF), f.scheck(SYF, 10), f.S('Ysync')])
for q in range(8): e('ds_read_b128 %s, v23 offset:%d' % (v(32 + 4 * q, 4), 1024 * q))
for q in range(8):
    kb, t = q >> 1, q & 1
    if kb:
        if kb != 2:
            for j in range(4): e('v_alignbit_b32 v%d, v%d, v%d, s%d' % ((32 + 4 * q + j,) * 3 + (67 + kb,)))
        for j in range(4): e('v_xor_b32 v%d, s%d, v%d' % (32 + 4 * q + j, 51 + kb, 32 + 4 * q + j))
    for mt in range(2):
        for part in range(2):
            d = v(64 + 8 * mt + 4 * part, 4)
            e('v_mfma_f32_16x16x32_bf16 %s, %s, %s, %s' % (d, v(32 + 4 * q, 4), ag(16 * part + 8 * mt + 4 * t, 4), '0' if q == 0 else d))
for mt in range(2):
    if mt:
        for k in range(4): e('v_mul_f32 v%d, v19, v%d' % (80 + k, 76 + k)); e('v_mul_f32 v%d, v19, v%d' % (84 + k, 72 + k))
        for k in range(4): e('v_fma_f32 v%d, v18, v%d, v%d' % (72 + k, 72 + k, 80 + k)); e('v_fma_f32 v%d, v18, v%d, -v%d' % (76 + k, 76 + k, 84 + k))
    for k in range(4): e('v_cvt_pk_bf16_f32 v%d, v%d, -v%d' % (128 + 4 * mt + k, 64 + 8 * mt + k, 68 + 8 * mt + k))
    e('ds_write_b128 v%d, %s' % (14 + mt, v(128 + 4 * mt, 4)))
for u in range(2): e('ds_read_b128 %s, v16 offset:%d' % (v(136 + 4 * u, 4), 1024 * u))
e(f.sread(SYM))
for u in range(2): e('buffer_store_dwordx4 %s, v21, %s, %s offen sc1' % (v(136 + 4 * u, 4), SWS, 's58' if u == 0 else 's59'), tag='R')
f.run([f.scheck(SYM, 1), f.poll([pg], ['v13'], sT1, 1), 'v_lshlrev_b32 v11, 2, v1', 'v_add_u32 v11, %d, v11' % GL, 'ds_write_b32 v11, v12'])
f.stamp('Rst')
e('s_lshl_b32 s77, %s, 1' % sHALF); e('s_lshl_b32 s64, %s, 2' % sMB); e('s_add_u32 s64, s64, s77')
gs = ['v_lshlrev_b32 v33, 2, v4', 'v_cvt_f32_u32 v33, v33', 's_lshr_b32 s77, %s, 1' % sW, 's_add_u32 s53, s64, s77', 's_xor_b32 s52, s53, 1',
      's_lshl_b32 s77, %s, 6' % sW, 's_add_u32 s77, s77, %d' % GL, 'v_lshl_add_u32 v34, v8, 2, s77', 'ds_read_b32 v25, v34']
for lam in range(2):
    gs += ['v_lshl_add_u32 v34, v8, 7, s%d' % (52 + lam), 'v_cvt_f32_u32 v34, v34', 'v_mul_f32 v34, 0x3a000000, v34', 'v_mul_f32 v35, v34, v33']
    for q in range(4): gs.append('v_fmamk_f32 v%d, v34, %s, v35' % (40 + q, fl(1.0 * q)))
    for q in range(4): gs += ['v_sin_f32 v%d, v%d' % (44 + q, 40 + q), 'v_cos_f32 v%d, v%d' % (40 + q, 40 + q)]
    for q in range(4): gs += ['v_cvt_pk_bf16_f32 v%d, v%d, -v%d' % (96 + 8 * lam + q, 40 + q, 44 + q), 'v_cvt_pk_bf16_f32 v%d, v%d, v%d' % (100 + 8 * lam + q, 44 + q, 40 + q)]
gs += ['v_sub_f32 v11, 1.0, v25', 'v_mul_f32 v25, %s, v25' % fl(1.0 / (224 * 2048))]
gs2 = ['s_and_b32 s77, s2, 7', 's_lshl_b32 s77, s77, 13', 's_add_u32 s63, s77, %d' % FL3, 's_lshl_b32 s77, %s, 2' % sW,
       'v_add_u32 v9, s77, v4', 'v_min_u32 v9, 13, v9', 'v_cmp_lt_u32 vcc, 6, v9', 'v_subrev_u32 v12, 7, v9', 'v_cndmask_b32 v9, v9, v12, vcc', 'v_lshlrev_b32 v9, 10, v9',
       'v_cndmask_b32 v12, 0, 16, vcc', 'v_add_u32 v9, v9, v12', 'v_and_b32 v12, 3, v1', 'v_lshl_add_u32 v9, v12, 8, v9', 'v_bfe_u32 v12, v1, 2, 2', 'v_lshl_add_u32 v9, v12, 5, v9',
       's_and_b32 s77, %s, 1' % sW, 's_lshl_b32 s77, s77, 6', 'v_lshlrev_b32 v10, 4, v8', 'v_xor_b32 v10, s77, v10', 's_movk_i32 s77, 7168', 'v_mad_u32_u24 v10, v4, s77, v10',
       's_lshl_b32 s66, %s, 9' % sW, 's_add_u32 s66, s66, %d' % RB, 's_cmp_eq_u32 %s, 3' % sW, 's_cselect_b32 s67, 0x40000000, 256']
gs2[-1] = 's_movk_i32 s67, 256'; gs2.append('s_cselect_b32 s67, 0x40000000, s67')
for lam in (1, 0):
    gs2 += ['s_mul_i32 s77, s%d, 28672' % (52 + lam), 's_add_u32 s%d, s77, s66' % (52 + 2 * lam), 's_add_u32 s%d, s%d, s67' % (53 + 2 * lam, 52 + 2 * lam)]
for q in range(4): gs2.append('s_add_u32 s%d, s%d, 3584' % (68 + q, 52 + q))
p3 = ['buffer_load_dword v12, v9, %s, s63 offen %s' % (SWS, PSC), 'buffer_load_dword v13, v9, %s, s63 offen offset:128 %s' % (SWS, PSC)]
flag3 = None if (opt('nopoll', 0) >= 2 or opt('onlyfl2', 0)) else f.U(['s_mov_b64 exec, 15', ('%s v24, v17, %s, s62 offen %s' % (FST, SWS, FSC), 'flag'), 's_mov_b64 exec, -1'])
gs = gs + gihead + gi[n4:]
k1 = opt('gs1', 70)
assert (n4 - 127) % 85 == 0 or True
gi2 = []
f.run([LO if opt('lo2', 1) else None] + gs[:k1] + [f.S('preWR'), f.W('R'), f.S('WR'), flag3, LO] + gs[k1:] + gi2 + gs2 + ['s_sleep %d' % opt('rsleep', 0) if opt('rsleep', 0) else None, f.sread(SYM2), f.scheck(SYM2, opt('gate3', 4)), HI3, p3[0], (p3[1], 'p3'), f.S('prepollR'), f.W('p3'), f.S('p3back')] + [f.poll(p3, ['v12', 'v13'], sT1, 1)])
f.stamp('pollR')
def raw(q, j): return ag(16 * q + 4 * j, 4) if q < 3 else v(112 + 4 * j, 4)
def R_load(q): return ['buffer_load_dwordx4 %s, v10, %s, s%d offen offset:%d sc1' % (raw(q, j), SWS, (52 if j < 2 else 68) + q, 1792 * (j & 1)) for j in range(4)]
f.run(R_load(0) + R_load(1) + R_load(2) + R_load(3))
e('s_xor_b32 s77, %s, 1' % sHALF); e('s_mul_i32 s77, s77, 7'); e('s_add_u32 s77, s77, %s' % sNT)
e('s_lshl_b32 s78, %s, 4' % sMB); e('s_add_u32 s77, s77, s78'); e('s_lshl_b32 s77, s77, 2'); e('s_add_u32 s77, s77, %s' % sW)
e('s_lshl_b32 s61, s77, 12'); e('s_add_u32 s61, s61, %d' % PXB)
pass
D4 = ((12, 16), (20, 28))
def FR(P, h): return 128 + 8 * (P & 1) + 4 * h
def RD(P, h):
    q, cc = 2 * (P >> 2) + h, P & 3
    return [('v_accvgpr_read_b32 v%d, a%d' % (FR(P, h) + j, 16 * q + 4 * j + cc)) if q < 3 else ('v_mov_b32 v%d, v%d' % (FR(P, h) + j, 112 + 4 * j + cc)) for j in range(4)]
def S4(P): return ['v_mfma_f32_16x16x32_bf16 %s, %s, %s, 0' % (v(D4[h][part], 4), v(FR(P, h), 4), v(96 + 8 * (P >> 2) + 4 * part, 4)) for h in range(2) for part in range(2)]
def CV(P): return ['v_cvt_pk_bf16_f32 v%d, v%d, v%d' % (FR(P, h) + j, D4[h][0] + j, D4[h][1] + j) for h in range(2) for j in range(4)] + \
                  ['v_permlane16_swap_b32 v%d, v%d' % (FR(P, 0) + j, FR(P, 1) + j) for j in range(4)]
def FD(P, h):
    A = 32 + 16 * (2 * (1 - (P >> 2)) + h); cc = P & 3
    return ['v_mfma_f32_16x16x32_bf16 %s, %s, %s, %s' % (v(A + 4 * ct, 4), ag(48 + 16 * cc + 4 * ct, 4), v(FR(P, h), 4), '0' if cc == 0 else v(A + 4 * ct, 4)) for ct in range(4)]
def ship(rho):
    P = 32 + 16 * rho
    return ['s_xor_b32 s77, %s, %d' % (sW, rho), 's_mul_i32 s77, s77, 6144', 's_add_u32 s77, s77, %d' % (RED + 2048 * (rho - 1)), 'v_add_u32 v9, s77, v7'] + \
           ['v_cvt_pk_bf16_f32 v%d, v%d, v%d' % (P + k, P + 2 * k, P + 2 * k + 1) for k in range(8)] + ['ds_write_b128 v9, %s' % v(P, 4), 'ds_write_b128 v9, %s offset:1024' % v(P + 4, 4)]
pxl = ['buffer_load_dwordx4 %s, v7, %s, s61 offen offset:%d sc1' % (v(64 + 4 * k, 4), SWS, 1024 * k) for k in range(3)]
f.run(RD(0, 0) + RD(0, 1) + S4(0) + RD(1, 0) + RD(1, 1) + CV(0))
for P in range(8):
    extra = []
    if P == 5: extra = ship(2)
    if P == 6: extra = ship(3)
    if P == 7: extra = ['v_lshlrev_b32 v10, 3, v4', 's_lshl_b32 s77, %s, 7' % sNT] + ['buffer_load_dwordx2 %s, v10, %s, s77 offen offset:%d' % (v(88 + 2 * ct, 2), SB2, 32 * ct) for ct in range(4)]
    nx = P + 1 < 8; n2x = P + 2 < 8
    main = (S4(P + 1) if nx else []) + FD(P, 1) + FD(P, 0)
    o = 4 if nx else 0
    f.run(weave(main, (extra, 0, o + 2), (CV(P + 1) if nx else [], o + 2, o + 8), (RD(P + 2, 1) if n2x else [], o + 4, o + 8)) + (RD(P + 2, 0) if n2x else []))
f.run(ship(1))
f.stamp('F3')
f.run([f.signal(SYF, 11)])
f.run([f.sread(SYF), f.scheck(SYF, 11)])
e('s_mul_i32 s77, %s, 6144' % sW); e('s_add_u32 s77, s77, %d' % RED); e('v_add_u32 v9, s77, v7')
for k in range(6): e('ds_read_b128 %s, v9 offset:%d' % (v(96 + 4 * k, 4), 1024 * k))
for s in range(3):
    for k in range(8):
        e('v_lshlrev_b32 v%d, 16, v%d' % (128 + 2 * k, 96 + 8 * s + k)); e('v_and_b32 v%d, 0xffff0000, v%d' % (129 + 2 * k, 96 + 8 * s + k))
    for k in range(16): e('v_add_f32 v%d, v%d, v%d' % (32 + k, 32 + k, 128 + k))
for k in range(16): e('v_mul_f32 v%d, v25, v%d' % (32 + k, 32 + k))
for k in range(8):
    e('v_lshlrev_b32 v%d, 16, v%d' % (128 + 2 * k, 88 + k)); e('v_and_b32 v%d, 0xffff0000, v%d' % (129 + 2 * k, 88 + k))
for k in range(16): e('v_fmac_f32 v%d, v11, v%d' % (32 + k, 128 + k))
f.stamp('red')
for ct in range(4): e('ds_write_b128 v9, %s offset:%d' % (v(32 + 4 * ct, 4), 1024 * ct))
f.wait_lg()
f.barrier()
f.finish(1)

x = Role(); e = x.e
x.raw('L_aux:')
e('s_and_b32 s44, s2, 1')
e('s_bfe_u32 s45, s2, 0x20001')
e('s_bfe_u32 s46, s2, 0x20003'); e('s_lshl_b32 s46, s46, 3'); e('s_add_u32 s46, s46, s79')
e('v_lshrrev_b32 v2, 4, v1'); e('v_and_b32 v3, 15, v1'); e('v_min_u32 v3, 13, v3'); e('v_lshlrev_b32 v3, 7, v3')
e('s_movk_i32 s77, 3584'); e('v_mad_u32_u24 v2, v2, s77, v3')
e('v_lshlrev_b32 v4, 7, v1')
e('v_lshrrev_b32 v5, 4, v1'); e('v_bfe_u32 v6, v1, 2, 2'); e('v_lshl_add_u32 v5, v5, 4, v6'); e('v_mul_u32_u24 v5, 450, v5')
e('v_and_b32 v6, 3, v1'); e('v_lshlrev_b32 v6, 7, v6'); e('v_min_u32 v6, 224, v6'); e('v_add_u32 v5, v5, v6')
e('s_mul_i32 s47, s44, 1792'); e('s_mul_i32 s77, s46, %d' % (4 * 3584)); e('s_add_u32 s47, s47, s77')
e('s_mul_i32 s72, s44, 802816'); e('s_lshl_b32 s77, s46, 13'); e('s_add_u32 s72, s72, s77')
e('s_lshl_b32 s73, s46, 6'); e('s_lshl_b32 s77, s45, 2'); e('s_add_u32 s73, s73, s77'); e('s_mul_i32 s73, s73, 450'); e('s_mul_i32 s77, s44, 224'); e('s_add_u32 s73, s73, s77')
x.raw('    s_waitcnt lgkmcnt(0)')
x.srd(8, 56, 1605632); x.srd(12, 60, 1605632); x.srd(20, 50, 921600); x.srd(24, 52, 921600)
e('v_mov_b32 v8, v2'); e('v_mov_b32 v9, v4'); e('s_mov_b32 s40, s47'); e('s_mov_b32 s41, s72'); e('s_mov_b32 s42, s73')
if opt('upf', 0):
    e('s_and_b32 s77, s2, 7'); e('s_lshl_b32 s78, s46, 3'); e('s_add_u32 s77, s77, s78'); e('s_lshl_b32 s77, s77, 13')
    e('buffer_load_ubyte v10, v9, %s, s77 offen' % SW1); e('buffer_load_ubyte v11, v9, %s, s77 offen' % SW2)
    e('s_xor_b32 s78, s77, 0x100000')
    e('buffer_load_ubyte v12, v9, %s, s77 offen' % SWR); e('buffer_load_ubyte v13, v9, %s, s78 offen' % SWI)
x.srd(4, 48, 1835008); x.srd(32, 64, 896); x.srd(16, 70, WS_SIZE)
e('buffer_load_dword v24, off, %s, 0 sc1' % SWS)
e('s_lshr_b32 s47, s46, 3'); e('s_lshl_b32 s77, s45, 2'); e('s_add_u32 s47, s47, s77'); e('s_lshl_b32 s47, s47, 1'); e('s_add_u32 s47, s47, s44')
e('s_and_b32 s77, s79, 1'); e('s_lshl_b32 s77, s77, 10'); e('s_bfe_u32 s78, s79, 0x10001'); e('s_lshl_b32 s78, s78, 6'); e('s_add_u32 s77, s77, s78')
e('s_lshr_b32 s78, s79, 2'); e('s_add_u32 s77, s77, s78'); e('s_lshl_b32 s78, s47, 1'); e('s_add_u32 s77, s77, s78'); e('s_mul_i32 s72, s77, 896')
e('v_lshrrev_b32 v2, 3, v1'); e('v_and_b32 v3, 7, v1'); e('v_lshlrev_b32 v3, 4, v3'); e('s_mov_b32 s77, %d' % (128 * 896)); e('v_mad_u32_u24 v4, v2, s77, v3')
for k in range(7):
    e('buffer_load_dwordx4 %s, v4, %s, s72 offen offset:%d' % (v(32 + 4 * k, 4), SX, 128 * k)); e('buffer_load_dwordx4 %s, v3, %s, 0 offen offset:%d' % (v(64 + 4 * k, 4), SGW, 128 * k))
e('s_and_b32 s77, s2, 3'); e('s_lshl_b32 s36, s77, 5'); e('s_add_u32 s36, s36, s46')
e('s_lshr_b32 s77, s36, 3'); e('s_bfe_u32 s78, s36, 0x20001'); e('s_lshl_b32 s78, s78, 4'); e('s_add_u32 s77, s77, s78'); e('s_and_b32 s78, s36, 1'); e('s_lshl_b32 s78, s78, 10'); e('s_add_u32 s77, s77, s78')
e('v_lshrrev_b32 v26, 2, v1'); e('v_lshl_add_u32 v27, v26, 6, s77'); e('v_sub_u32 v28, 2048, v27'); e('v_and_b32 v28, 2047, v28'); e('v_and_b32 v29, 1, v1'); e('v_cmp_eq_u32 vcc, 1, v29')
e('v_bfe_u32 v29, v1, 1, 1'); e('v_mul_u32_u24 v29, 448, v29'); e('v_cndmask_b32 v27, v27, v28, vcc'); e('s_movk_i32 s77, 450'); e('v_mad_u32_u24 v27, v27, s77, v29')
e('s_bitcmp1_b32 s2, 2'); e('s_cselect_b32 s37, 0x40000000, 0')
e('buffer_load_ushort v22, v27, %s, s37 offen' % SWR); e('buffer_load_ushort v23, v27, %s, s37 offen' % SWI)
pfl = []
for k in range(4 if opt('pfw1', 1) else 0): pfl.append(['buffer_load_ubyte v%d, v8, %s, s40 offen' % (10 + k, SW1), 's_add_u32 s40, s40, %d' % (128 * 3584)])
for k in range(3): pfl.append(['buffer_load_ubyte v%d, v9, %s, s41 offen' % (14 + k, SW2), 's_add_u32 s41, s41, %d' % (32 * 8192)])
pfl.append(['buffer_load_ubyte v18, v5, %s, s42 offen' % SWR, 'buffer_load_ubyte v19, v5, %s, s42 offen' % SWI])
pfl.append(['s_cmp_ge_u32 s46, 2', 's_cselect_b32 s41, 0x40000000, s41', 'buffer_load_ubyte v17, v9, %s, s41 offen' % SW2])
if opt('pft', 0):
    e('s_and_b32 s77, s2, 7'); e('s_lshl_b32 s78, s46, 3'); e('s_add_u32 s77, s77, s78'); e('s_lshl_b32 s77, s77, 13')
    e('s_add_u32 s78, s77, %d' % (FL2 - 0x20000)); e('s_cmp_ge_u32 s77, 0x20000'); e('s_cselect_b32 s77, s78, s77')
    e('s_cmp_ge_u32 s77, %d' % (TB if opt('pft', 2) > 1 else 0x20000)); e('s_cselect_b32 s77, 0x40000000, s77')
    e('buffer_load_ubyte v25, v9, %s, s77 offen' % SWS)
PFE = opt('pfe', 0)
for y in pfl[:PFE]: x.run(y)
e('v_mov_b32 v20, 0'); e('v_mov_b32 v21, 0')
x.stamp('iss')
x.tags()
x.stamp('E')
e('v_lshlrev_b32 v22, 16, v22'); e('v_lshlrev_b32 v23, 16, v23')
e('v_add_f32_dpp v28, v22, v22 quad_perm:[1,0,3,2] %s' % DP); e('v_subrev_f32_dpp v29, v23, v23 quad_perm:[1,0,3,2] %s' % DP)
e('v_cvt_pk_bf16_f32 v28, v28, v29'); e('v_mov_b32 v30, v24'); e('v_mov_b32 v31, v24'); e('v_mov_b32_dpp v29, v28 quad_perm:[2,2,2,2] %s' % DP)
e('v_lshlrev_b32 v26, 4, v26'); e('s_lshl_b32 s77, s36, 8'); e('s_add_u32 s77, s77, %d' % SPB); e('s_add_u32 s77, s77, s37')
e('s_mov_b32 exec_lo, 0x11111111'); e('s_mov_b32 exec_hi, 0x11111111')
e('buffer_store_dwordx4 v[28:31], v26, %s, s77 offen sc1' % SWS)
e('s_mov_b64 exec, -1')
x.stamp('sp')
for k in range(28): e('v_dot2c_f32_bf16 v%d, v%d, v%d' % (20 + (k & 1), 32 + k, 64 + k))
e('v_add_f32 v20, v20, v21')
e('v_add_f32_dpp v20, v20, v20 quad_perm:[1,0,3,2] %s' % DP); e('v_add_f32_dpp v20, v20, v20 quad_perm:[2,3,0,1] %s' % DP); e('v_add_f32_dpp v20, v20, v20 row_half_mirror %s' % DP)
e('v_mul_f32 v20, %s, v20' % fl(-1.4426950408889634)); e('v_exp_f32 v20, v20'); e('v_add_f32 v20, 1.0, v20'); e('v_rcp_f32 v20, v20'); e('v_mov_b32 v21, v24')
e('s_lshl_b32 s77, s47, 9'); e('s_lshl_b32 s78, s79, 6'); e('s_add_u32 s77, s77, s78'); e('s_add_u32 s77, s77, %d' % GB); e('v_lshlrev_b32 v2, 3, v2')
e('s_mov_b32 exec_lo, 0x01010101'); e('s_mov_b32 exec_hi, 0x01010101')
e('buffer_store_dwordx2 v[20:21], v2, %s, s77 offen sc1' % SWS)
e('s_mov_b64 exec, -1')
x.stamp('g')
if DIAG: x.wait_vm_all(); x.stamp('ack')
x.barrier()
if opt('pf', 0):
    for y in pfl[PFE:]: x.run(y)
if DIAG: e('s_mov_b32 %s, s79' % sW); x.finish(0)

hdr = open('cdna_kernels/%s.s.ref' % NAME).read().split('; Override')[0]
txt = hdr + '; @launch grid=(%d,1,1) block=(512,1,1) lds=%d\n' % (NWG, LDS_SIZE)
txt += '.amdgcn_target "amdgcn-amd-amdhsa--gfx950"\n.text\n.globl %s_kernel\n.p2align 8\n.type %s_kernel,@function\n' % (NAME, NAME)
txt += c.text() + m.text() + f.text() + x.text() + 'L_end:\n    s_endpgm\n'
txt += '''.section .rodata,"a"
.p2align 6
.amdhsa_kernel %s_kernel
  .amdhsa_next_free_vgpr 256
  .amdhsa_next_free_sgpr 102
  .amdhsa_accum_offset 144
  .amdhsa_group_segment_fixed_size 0
  .amdhsa_kernarg_size 96
  .amdhsa_user_sgpr_count 2
  .amdhsa_user_sgpr_kernarg_segment_ptr 1
  .amdhsa_system_sgpr_workgroup_id_x 1
.end_amdhsa_kernel
''' % NAME
out = [x for x in sys.argv[1:] if not x.startswith('--')]
open(out[0] if out else 'cdna_kernels/%s.s' % NAME, 'w').write(txt)
if DIAG: open('names.txt', 'w').write(repr([m.names, f.names, x.names]))
print('instrs mlp', sum(m.count.values()), 'fft', sum(f.count.values()), 'nops', m.nnop, f.nnop, file=sys.stderr)
```
